```python
import torch

def _softmax(x, axis=-1):
    return torch.softmax(x, dim=axis)
def _gelu(x):
    return torch.nn.functional.gelu(x, approximate="tanh")
def _silu(x):
    return torch.nn.functional.silu(x)
def _sigmoid(x):
    return torch.sigmoid(x)
def _layernorm(x, axis=-1, eps=1e-5):
    m = x.mean(dim=axis, keepdim=True)
    v = x.var(dim=axis, keepdim=True, unbiased=False)
    return (x - m) / torch.sqrt(v + eps)
def _scatter_add(tgt, idx, src, axis=0):
    return tgt.clone().index_add_(axis, idx, src)
def _segment_sum(src, seg, n):
    out = torch.zeros((n,) + src.shape[1:], dtype=src.dtype)
    return out.index_add_(0, seg, src)
def _pad(x, pw):
    flat = tuple(v for pair in reversed(pw) for v in pair)
    return torch.nn.functional.pad(x, flat)

kernel_name = 'sequential_preLN__compressed_kv_cla__glu_gated_swiglu__decode'

def setup_inputs():

    _w = (lambda a: (lambda t: t.to(torch.bfloat16) if t.is_floating_point() else t)(torch.as_tensor(a)))
    def _A_setup():
        B, H, Sq, Sk, D, M = 2, 32, 1, 8192, 128, 640
        Dc = 4 * D
        return {
            "x": _w((lambda *s: torch.randn(*s, dtype=torch.bfloat16) * 0.05)(B, Sq, M)),
            "c_kv": _w((lambda *s: torch.randn(*s, dtype=torch.bfloat16) * 0.8)(B, Sk, Dc)),
            "w_q": _w((lambda *s: torch.randn(*s, dtype=torch.bfloat16) * 1.6)(M, H, D) * (M ** -0.5)),
            "w_uk": _w((lambda *s: torch.randn(*s, dtype=torch.bfloat16) * 1.6)(Dc, H, D) * (Dc ** -0.5)),
            "w_uv": _w((lambda *s: torch.randn(*s, dtype=torch.bfloat16) * 0.8)(Dc, H, D) * (Dc ** -0.5)),
            "w_o": _w((lambda *s: torch.randn(*s, dtype=torch.bfloat16) * 0.8)(H, D, M) * ((H * D) ** -0.5)),
        }
    _A_in = _A_setup()

    def _B_setup():
        B, S, D, F = 2, 1, 640, 1728
        return {
            "x": _w((lambda *s: torch.randn(*s, dtype=torch.bfloat16) * 0.05)(B, S, D)),
            "w1": _w((lambda *s: torch.randn(*s, dtype=torch.bfloat16) * 0.2)(D, F) * (2.0 / D) ** 0.5),
            "w3": _w((lambda *s: torch.randn(*s, dtype=torch.bfloat16) * 0.2)(D, F) * (2.0 / D) ** 0.5),
            "w2": _w((lambda *s: torch.randn(*s, dtype=torch.bfloat16) * 0.2)(F, D) * (2.0 / F) ** 0.5),
        }
    _B_in = _B_setup()

    return {
        "A_x": _A_in["x"],
        "A_c_kv": _A_in["c_kv"],
        "A_w_q": _A_in["w_q"],
        "A_w_uk": _A_in["w_uk"],
        "A_w_uv": _A_in["w_uv"],
        "A_w_o": _A_in["w_o"],
        "B_x": _B_in["x"],
        "B_w1": _B_in["w1"],
        "B_w3": _B_in["w3"],
        "B_w2": _B_in["w2"],
    }

def reference(A_x, A_c_kv, A_w_q, A_w_uk, A_w_uv, A_w_o, B_x, B_w1, B_w3, B_w2):
    def _A_ref(x, c_kv, w_q, w_uk, w_uv, w_o):
        B, Sq, M = x.shape[0], x.shape[1], x.shape[2]
        Sk = c_kv.shape[1]
        H, D = w_q.shape[1], w_q.shape[2]
        q = torch.einsum("bqm,mhd->bhqd", x, w_q)
        k = torch.einsum("bkc,chd->bhkd", c_kv, w_uk)
        v = torch.einsum("bkc,chd->bhkd", c_kv, w_uv)
        scores = torch.einsum("bhqd,bhkd->bhqk", q, k) * (D ** -0.5)
        off = Sk - Sq
        qi = torch.arange(Sq)[:, None]
        kj = torch.arange(Sk)[None, :]
        cmask = kj <= (qi + off)
        scores = torch.where(cmask[None, None], scores, -1e9)
        p = _softmax(scores, axis=-1)
        ctx = torch.einsum("bhqk,bhkd->bhqd", p, v)
        return torch.einsum("bhqd,hdm->bqm", ctx, w_o)

    def _B_ref(x, w1, w3, w2):
        gate = torch.einsum("bsd,df->bsf", x, w1)
        up = torch.einsum("bsd,df->bsf", x, w3)
        h = _silu(gate) * up
        out = torch.einsum("bsf,fd->bsd", h, w2)
        return out

    x = A_x
    h = x + _A_ref(_layernorm(x, axis=-1), A_c_kv, A_w_q, A_w_uk, A_w_uv, A_w_o)
    h2 = h + _B_ref(_layernorm(h, axis=-1), B_w1, B_w3, B_w2)
    return h2
```

```python
import sys

NAME = "sequential_preLN__compressed_kv_cla__glu_gated_swiglu__decode"
TS = int(sys.argv[2]) if len(sys.argv) > 2 else 0
OUT = sys.argv[1] if len(sys.argv) > 1 else f"cdna_kernels/{NAME}.s"

WS_QP = 0x00000
WS_QA = 0x10000
WS_ST = 0x20000
WS_CP = 0x28000
WS_HP = 0x38000
WS_ACT = 0x3D000
NCLR = 16
WS_OP = 0x100000
WS_TS = 0x800000
WS_SIZE = 0x10000000
SPIN_MAX = 40000

import struct
def fl(x):
    return '0x%08x' % struct.unpack('<I', struct.pack('<f', x))[0]
L = []
def e(s):
    L.append("    " + s)
def lab(s):
    L.append(s + ":")
def c(s):
    L.append("    ; " + s)

_uid = [0]
def uid(p):
    _uid[0] += 1
    return f"{p}_{_uid[0]}"

sWAVE = 3
sIDX = 4
sH = 5
sJQ = 6
sT0 = 7
P_X, P_CKV, P_WQ, P_WUK, P_WUV, P_WO, P_BX, P_W1, P_W3, P_W2, P_OUT, P_DBG, P_WS = [8 + 2 * i for i in range(13)]
sSPIN = 34
sT1 = 35
R_WS = 36
R_A = 40
R_B = 44
R_C = 48
R_DBG = 52
sT2, sT3, sT4, sT5 = 56, 57, 58, 59
sEX = 60
sB = 62
sS = 63
sCS = 64
sKQ = 65
sTSB = 70

def srd(r, p, nbytes):
    e(f"s_mov_b32 s{r}, s{p}")
    e(f"s_and_b32 s{r+1}, s{p+1}, 0xffff")
    e(f"s_mov_b32 s{r+2}, {nbytes:#x}")
    e(f"s_mov_b32 s{r+3}, 0x00020000")

_tsn = [0]
def ts(i):
    if TS:
        e(f"s_memrealtime s[{sTSB+2*i}:{sTSB+2*i+1}]")

def ts_flush(nslots):
    if not TS:
        return
    l1 = uid("L_tsf")
    e("s_waitcnt lgkmcnt(0)")
    e(f"s_cmp_lg_u32 s{sWAVE}, 0")
    e(f"s_cbranch_scc1 {l1}")
    e("v_mov_b32 v250, 0")
    for i in range(nslots):
        e(f"v_mov_b32 v251, s{sTSB+2*i}")
        e(f"s_lshl_b32 s{sT0}, s2, 6")
        e(f"s_add_u32 s{sT0}, s{sT0}, {WS_TS + 4*i:#x}")
        e(f"s_mov_b64 s[{sEX}:{sEX+1}], exec")
        e("s_mov_b64 exec, 1")
        e(f"buffer_store_dword v251, v250, s[{R_WS}:{R_WS+3}], s{sT0} offen")
        e(f"s_mov_b64 exec, s[{sEX}:{sEX+1}]")
        e("s_nop 1")
    lab(l1)

def allreduce(op, v, t):
    for pat in ("quad_perm:[1,0,3,2]", "quad_perm:[2,3,0,1]", "row_half_mirror", "row_mirror"):
        e("s_nop 1")
        e(f"v_{op}_f32_dpp v{v}, v{v}, v{v} {pat} row_mask:0xf bank_mask:0xf")
    e(f"v_mov_b32 v{t}, v{v}")
    e("s_nop 1")
    e(f"v_permlane16_swap_b32 v{t}, v{v}")
    e("s_nop 0")
    e(f"v_{op}_f32 v{v}, v{v}, v{t}")
    e(f"v_mov_b32 v{t}, v{v}")
    e("s_nop 1")
    e(f"v_permlane32_swap_b32 v{t}, v{v}")
    e("s_nop 0")
    e(f"v_{op}_f32 v{v}, v{v}, v{t}")

def umax_chain(dst, regs):
    regs = list(regs)
    e(f"v_max3_u32 v{dst}, v{regs[0]}, v{regs[1]}, v{regs[2]}")
    i = 3
    while i < len(regs):
        if i + 1 < len(regs):
            e(f"v_max3_u32 v{dst}, v{dst}, v{regs[i]}, v{regs[i+1]}")
            i += 2
        else:
            e(f"v_max_u32 v{dst}, v{dst}, v{regs[i]}")
            i += 1

def spin_init():
    e(f"s_mov_b32 s{sSPIN}, 0")

def spin_retry_if_vcc(top, done):
    e(f"s_cbranch_vccz {done}")
    e(f"s_add_u32 s{sSPIN}, s{sSPIN}, 1")
    e(f"s_cmp_lt_u32 s{sSPIN}, {SPIN_MAX}")
    e(f"s_cbranch_scc1 {top}")

def barrier():
    e("s_barrier")

vL = 2

hdr = open(f"cdna_kernels/{NAME}.s.ref").read().split("\n")
head = []
for line in hdr:
    if line.startswith("; @launch"):
        head.append("; @launch grid=(256,1,1) block=(512,1,1) lds=163840")
        break
    head.append(line)
head += [
    '.amdgcn_target "amdgcn-amd-amdhsa--gfx950"',
    ".text",
    f".globl {NAME}_kernel",
    ".p2align 8",
    f".type {NAME}_kernel,@function",
    f"{NAME}_kernel:",
]

e("s_cmp_ge_u32 s2, 256")
e("s_cbranch_scc1 L_end")
ts(0)
e("s_load_dwordx16 s[8:23], s[0:1], 0")
e("s_load_dwordx8 s[24:31], s[0:1], 64")
e("s_load_dwordx2 s[32:33], s[0:1], 96")
e("v_lshrrev_b32 v1, 6, v0")
e(f"v_and_b32 v{vL}, 63, v0")
e(f"v_readfirstlane_b32 s{sWAVE}, v1")
e("v_mov_b32 v3, 0")
e("s_waitcnt lgkmcnt(0)")
srd(R_WS, P_WS, WS_SIZE)
srd(R_DBG, P_DBG, 256)
e("s_cmp_ge_u32 s2, 128")
e("s_cbranch_scc1 L_arole")

LW_WQ = 0
LW_XN = 40960
LW_STG = 43520
LW_WUV = 49152
LW_TAIL = 81920
LW_CX = 147456
LW_RED = 155648

c("================= W role =================")
e(f"s_mov_b32 s{sIDX}, s2")
e(f"s_and_b32 s{sH}, s2, 31")
e(f"s_lshr_b32 s{sJQ}, s2, 5")
srd(R_A, P_X, 2560)
srd(R_B, P_WQ, 640 * 8192)
e(f"v_lshrrev_b32 v4, 4, v{vL}")
e(f"v_and_b32 v5, 15, v{vL}")
e(f"s_cmp_ge_u32 s{sWAVE}, 2")
e("s_cbranch_scc1 L_w_nox")
e(f"v_lshlrev_b32 v6, 2, v{vL}")
e(f"s_mul_i32 s{sT0}, s{sWAVE}, 1280")
for i in range(5):
    e(f"buffer_load_dword v{10+i}, v6, s[{R_A}:{R_A+3}], s{sT0} offen offset:{256*i}")
lab("L_w_nox")
e("v_lshlrev_b32 v7, 4, v5")
e("v_lshlrev_b32 v8, 5, v4")
e("v_xor_b32 v7, v7, v8")
e("v_lshlrev_b32 v8, 13, v4")
e("v_add_u32 v7, v7, v8")

def dma_256rows(rsrd, row0_sreg_expr, nper, lds_base, rows_per_wave, vtmp):
    e(f"s_mul_i32 s{sT3}, s{sWAVE}, {rows_per_wave}")
    for i in range(nper):
        e(f"s_add_u32 s{sT4}, s{sT3}, {4*i}")
        e(f"s_lshl_b32 s{sT5}, s{sT4}, 4")
        e(f"s_and_b32 s{sT5}, s{sT5}, 128")
        e(f"v_xor_b32 v{vtmp}, s{sT5}, v7")
        e(f"s_lshl_b32 s{sT5}, s{sT4}, 8")
        e(f"s_add_u32 m0, s{sT5}, {lds_base}")
        e(f"s_lshl_b32 s{sT4}, s{sT4}, 13")
        e(f"s_add_u32 s{sT4}, s{sT4}, s{sT2}")
        e(f"buffer_load_dwordx4 v{vtmp}, s[{rsrd}:{rsrd+3}], s{sT4} offen nt lds")

e(f"s_mul_i32 s{sT2}, s{sJQ}, {160*8192}")
e(f"s_lshl_b32 s{sT0}, s{sH}, 8")
e(f"s_add_u32 s{sT2}, s{sT2}, s{sT0}")
dma_256rows(R_B, None, 5, LW_WQ, 20, 9)
ts(1)
e(f"s_cmp_ge_u32 s{sWAVE}, 2")
e("s_cbranch_scc1 L_w_noln")
e("s_waitcnt vmcnt(5)")
for i in range(5):
    e(f"v_lshlrev_b32 v{20+2*i}, 16, v{10+i}")
    e(f"v_and_b32 v{21+2*i}, 0xffff0000, v{10+i}")
e("v_add_f32 v30, v20, v21")
for i in range(2, 10):
    e(f"v_add_f32 v30, v30, v{20+i}")
allreduce("add", 30, 31)
e(f"v_mul_f32 v30, {fl(1.0/640.0)}, v30")
for i in range(10):
    e(f"v_sub_f32 v{20+i}, v{20+i}, v30")
e("v_mul_f32 v32, v20, v20")
for i in range(1, 10):
    e(f"v_fmac_f32 v32, v{20+i}, v{20+i}")
allreduce("add", 32, 31)
e(f"v_mov_b32 v33, {fl(1e-5)}")
e(f"v_fmac_f32 v33, {fl(1.0/640.0)}, v32")
e("v_rsq_f32 v33, v33")
e("s_nop 0")
for i in range(10):
    e(f"v_mul_f32 v{20+i}, v{20+i}, v33")
for i in range(5):
    e(f"v_cvt_pk_bf16_f32 v{10+i}, v{20+2*i}, v{21+2*i}")
e(f"s_mul_i32 s{sT0}, s{sWAVE}, 1280")
e(f"v_add_u32 v6, s{sT0}, v6")
for i in range(5):
    e(f"ds_write_b32 v6, v{10+i} offset:{LW_XN + 256*i}")
lab("L_w_noln")
e(f"s_cmp_lg_u32 s{sWAVE}, 7")
e("s_cbranch_scc1 L_w_nopoll")
spin_init()
lab("L_w_poll")
e(f"buffer_load_dword v10, v3, s[{R_DBG}:{R_DBG+3}], 0 offen sc1")
e("s_waitcnt vmcnt(0)")
e(f"v_cmp_gt_u32 vcc, {NCLR}, v10")
spin_retry_if_vcc("L_w_poll", "L_w_nopoll")
lab("L_w_nopoll")
e(f"v_bfe_u32 v9, v{vL}, 2, 2")
e("v_and_b32 v10, 1, v4")
e("v_lshl_or_b32 v10, v10, 2, v9")
e(f"v_xor_b32 v10, s{sWAVE}, v10")
e("v_lshlrev_b32 v10, 5, v10")
e("v_lshl_add_u32 v8, v4, 3, v9")
e("v_lshl_add_u32 v8, v8, 8, v10")
e(f"v_and_b32 v10, 3, v{vL}")
e("v_lshl_add_u32 v8, v10, 3, v8")
e(f"v_and_b32 v9, 1, v{vL}")
e("v_mul_u32_u24 v9, 1280, v9")
e("v_lshl_add_u32 v9, v4, 4, v9")
e(f"s_mul_i32 s{sT0}, s{sJQ}, 320")
e(f"v_add_u32 v9, s{sT0}, v9")
e("s_waitcnt vmcnt(0) lgkmcnt(0)")
barrier()
ts(2)
for ks in range(5):
    e(f"ds_read_b64_tr_b16 v[{20+4*ks}:{21+4*ks}], v8 offset:{LW_WQ + ks*8192}")
    e(f"ds_read_b64_tr_b16 v[{22+4*ks}:{23+4*ks}], v8 offset:{LW_WQ + ks*8192 + 1024}")
    e(f"ds_read_b128 v[{40+4*ks}:{43+4*ks}], v9 offset:{LW_XN + ks*64}")
for ks in range(5):
    e(f"s_waitcnt lgkmcnt({3*(4-ks)})")
    cc = "0" if ks == 0 else "v[60:63]"
    e(f"v_mfma_f32_16x16x32_bf16 v[60:63], v[{20+4*ks}:{23+4*ks}], v[{40+4*ks}:{43+4*ks}], {cc}")
e(f"v_and_b32 v10, 1, v{vL}")
e("v_lshlrev_b32 v10, 8, v10")
e("v_lshl_add_u32 v10, v4, 3, v10")
e(f"s_lshl_b32 s{sT0}, s{sH}, 2")
e(f"s_add_u32 s{sT0}, s{sT0}, s{sJQ}")
e(f"s_lshl_b32 s{sT0}, s{sT0}, 9")
e(f"s_lshl_b32 s{sT1}, s{sWAVE}, 5")
e(f"s_add_u32 s{sT0}, s{sT0}, s{sT1}")
if WS_QP:
    e(f"s_add_u32 s{sT0}, s{sT0}, {WS_QP}")
e("v_cmp_gt_u32 vcc, 2, v5")
e("s_nop 4")
e("v_cvt_pk_bf16_f32 v64, v60, v61")
e("v_cvt_pk_bf16_f32 v65, v62, v63")
e("v_min_u32 v64, -2, v64")
e("v_min_u32 v65, -2, v65")
e(f"s_and_saveexec_b64 s[{sEX}:{sEX+1}], vcc")
e(f"buffer_store_dwordx2 v[64:65], v10, s[{R_WS}:{R_WS+3}], s{sT0} offen sc1")
e(f"s_mov_b64 exec, s[{sEX}:{sEX+1}]")
ts(3)
srd(R_A, P_WUK, 512 * 8192)
e("v_lshlrev_b32 v10, 13, v5")
e("v_lshl_add_u32 v10, v4, 4, v10")
e(f"s_lshl_b32 s{sT0}, s{sJQ}, 7")
e(f"s_lshl_b32 s{sT1}, s{sWAVE}, 4")
e(f"s_add_u32 s{sT0}, s{sT0}, s{sT1}")
e(f"s_lshl_b32 s{sT0}, s{sT0}, 13")
e(f"s_lshl_b32 s{sT1}, s{sH}, 8")
e(f"s_add_u32 s{sT0}, s{sT0}, s{sT1}")
for ks in range(4):
    e(f"buffer_load_dwordx4 v[{20+4*ks}:{23+4*ks}], v10, s[{R_A}:{R_A+3}], s{sT0} offen offset:{64*ks} nt")
e(f"v_and_b32 v10, 3, v{vL}")
e(f"v_bfe_u32 v11, v{vL}, 2, 1")
e("v_lshl_add_u32 v10, v10, 1, v11")
e("v_lshlrev_b32 v10, 8, v10")
e("v_lshl_add_u32 v10, v4, 4, v10")
e(f"s_lshl_b32 s{sT0}, s{sH}, 11")
if WS_QP:
    e(f"s_add_u32 s{sT0}, s{sT0}, {WS_QP}")
spin_init()
lab("L_w_h1")
for ks in range(4):
    e(f"buffer_load_dwordx4 v[{40+4*ks}:{43+4*ks}], v10, s[{R_WS}:{R_WS+3}], s{sT0} offen offset:{64*ks} sc1")
e("s_waitcnt vmcnt(0)")
umax_chain(11, range(40, 56))
e("v_cmp_eq_u32 vcc, -1, v11")
spin_retry_if_vcc("L_w_h1", "L_w_h1d")
lab("L_w_h1d")
ts(4)
for ks in range(4):
    cc = "0" if ks == 0 else "v[60:63]"
    e(f"v_mfma_f32_16x16x32_bf16 v[60:63], v[{40+4*ks}:{43+4*ks}], v[{20+4*ks}:{23+4*ks}], {cc}")
e("v_lshlrev_b32 v10, 8, v4")
e("v_lshl_add_u32 v10, v5, 1, v10")
e(f"s_lshl_b32 s{sT0}, s{sWAVE}, 5")
e(f"v_add_u32 v10, s{sT0}, v10")
SCALE = (128 ** -0.5) * 1.4426950408889634
e(f"s_mov_b32 s{sT1}, {fl(SCALE)}")
e(f"v_cmp_gt_u32 vcc, 32, v{vL}")
e("s_nop 4")
e("v_add_f32 v60, v60, v61")
e("v_add_f32 v62, v62, v63")
e("v_add_f32 v60, v60, v62")
e(f"v_mul_f32 v60, s{sT1}, v60")
e("v_cvt_pk_bf16_f32 v60, v60, v60")
e(f"s_and_saveexec_b64 s[{sEX}:{sEX+1}], vcc")
e(f"ds_write_b16 v10, v60 offset:{LW_STG}")
e(f"s_mov_b64 exec, s[{sEX}:{sEX+1}]")
e("s_waitcnt lgkmcnt(0)")
barrier()
e(f"s_cmp_lg_u32 s{sWAVE}, 0")
e("s_cbranch_scc1 L_w_qa_done")
e(f"v_lshlrev_b32 v10, 4, v{vL}")
e(f"v_and_b32 v10, 511, v10")
e(f"ds_read_b128 v[60:63], v10 offset:{LW_STG}")
e("v_lshlrev_b32 v11, 15, v4")
e("v_lshl_add_u32 v11, v5, 4, v11")
e(f"s_lshl_b32 s{sT0}, s{sH}, 10")
e(f"s_lshl_b32 s{sT1}, s{sJQ}, 8")
e(f"s_add_u32 s{sT0}, s{sT0}, s{sT1}")
e(f"s_add_u32 s{sT0}, s{sT0}, {WS_QA}")
e(f"v_cmp_gt_u32 vcc, 32, v{vL}")
e("s_waitcnt lgkmcnt(0)")
for i in range(4):
    e(f"v_min_u32 v{60+i}, -2, v{60+i}")
e(f"s_and_saveexec_b64 s[{sEX}:{sEX+1}], vcc")
e(f"buffer_store_dwordx4 v[60:63], v11, s[{R_WS}:{R_WS+3}], s{sT0} offen sc1")
e(f"s_mov_b64 exec, s[{sEX}:{sEX+1}]")
lab("L_w_qa_done")
barrier()
ts(5)
srd(R_B, P_WUV, 512 * 8192)
e(f"s_lshl_b32 s{sT2}, s{sJQ}, 20")
e(f"s_lshl_b32 s{sT0}, s{sH}, 8")
e(f"s_add_u32 s{sT2}, s{sT2}, s{sT0}")
dma_256rows(R_B, None, 4, LW_WUV, 16, 9)
e(f"s_cmp_ge_u32 s{sIDX}, 80")
e("s_cbranch_scc1 L_w_tail_w2")
e(f"s_mul_i32 s{sKQ}, s{sIDX}, 205")
e(f"s_lshr_b32 s{sKQ}, s{sKQ}, 12")
e(f"s_mul_i32 s{sT0}, s{sKQ}, 20")
e(f"s_sub_u32 s{sCS}, s{sIDX}, s{sT0}")
srd(R_B, P_WO, 4096 * 1280)
e(f"v_lshrrev_b32 v9, 2, v{vL}")
e("v_mul_u32_u24 v9, 1280, v9")
e(f"v_and_b32 v10, 3, v{vL}")
e("v_lshl_add_u32 v9, v10, 4, v9")
e(f"s_lshl_b32 s{sT0}, s{sKQ}, 10")
e(f"s_lshl_b32 s{sT1}, s{sWAVE}, 7")
e(f"s_add_u32 s{sT0}, s{sT0}, s{sT1}")
e(f"s_mul_i32 s{sT0}, s{sT0}, 1280")
e(f"s_lshl_b32 s{sT1}, s{sCS}, 6")
e(f"s_add_u32 s{sT0}, s{sT0}, s{sT1}")
e(f"s_lshl_b32 s{sT1}, s{sWAVE}, 13")
e(f"s_add_u32 s{sT1}, s{sT1}, {LW_TAIL}")
for i in range(8):
    e(f"s_add_u32 m0, s{sT1}, {1024*i}")
    e(f"s_add_u32 s{sT2}, s{sT0}, {16*1280*i}")
    e(f"buffer_load_dwordx4 v9, s[{R_B}:{R_B+3}], s{sT2} offen nt lds")
e("s_branch L_w_tail_issued")
lab("L_w_tail_w2")
e(f"s_cmp_ge_u32 s{sIDX}, 120")
e("s_cbranch_scc1 L_w_tail_issued")
e(f"s_sub_u32 s{sCS}, s{sIDX}, 80")
srd(R_B, P_W2, 1728 * 1280)
e(f"v_lshrrev_b32 v9, 1, v{vL}")
e("v_mul_u32_u24 v9, 1280, v9")
e(f"v_and_b32 v10, 1, v{vL}")
e("v_lshl_add_u32 v9, v10, 4, v9")
e(f"s_mul_i32 s{sT0}, s{sWAVE}, {32*1280}")
e(f"s_lshl_b32 s{sT1}, s{sCS}, 5")
e(f"s_add_u32 s{sT0}, s{sT0}, s{sT1}")
e(f"s_lshl_b32 s{sT1}, s{sWAVE}, 10")
e(f"s_add_u32 s{sT1}, s{sT1}, {LW_TAIL}")
for i in range(7):
    e(f"s_add_u32 m0, s{sT1}, {8192*i}")
    e(f"s_add_u32 s{sT2}, s{sT0}, {8*32*1280*i}")
    e(f"buffer_load_dwordx4 v9, s[{R_B}:{R_B+3}], s{sT2} offen nt lds")
lab("L_w_tail_issued")
e("s_waitcnt vmcnt(0)")
barrier()
ts(6)
e(f"v_add_u32 v11, {LW_WUV}, v8")
for ks in range(4):
    e(f"ds_read_b64_tr_b16 v[{100+4*ks}:{101+4*ks}], v11 offset:{ks*8192}")
    e(f"ds_read_b64_tr_b16 v[{102+4*ks}:{103+4*ks}], v11 offset:{ks*8192 + 1024}")
e(f"v_bfe_u32 v9, v{vL}, 2, 2")
e("v_lshl_add_u32 v9, v4, 3, v9")
e(f"v_and_b32 v10, 3, v{vL}")
e(f"s_cmp_ge_u32 s{sIDX}, 80")
e("s_cbranch_scc1 L_w_frag_w2")
e("v_lshlrev_b32 v9, 6, v9")
e("v_lshl_add_u32 v9, v10, 3, v9")
e(f"s_lshl_b32 s{sT1}, s{sWAVE}, 13")
e(f"s_add_u32 s{sT1}, s{sT1}, {LW_TAIL}")
e(f"v_add_u32 v9, s{sT1}, v9")
for ks in range(4):
    for ct in range(2):
        r = 120 + 8 * ks + 4 * ct
        e(f"ds_read_b64_tr_b16 v[{r}:{r+1}], v9 offset:{ks*2048 + ct*32}")
        e(f"ds_read_b64_tr_b16 v[{r+2}:{r+3}], v9 offset:{ks*2048 + ct*32 + 256}")
    e("s_waitcnt lgkmcnt(4)")
e("s_branch L_w_frag_done")
lab("L_w_frag_w2")
e("v_lshlrev_b32 v9, 5, v9")
e("v_lshl_add_u32 v9, v10, 3, v9")
e(f"s_lshl_b32 s{sT1}, s{sWAVE}, 10")
e(f"s_add_u32 s{sT1}, s{sT1}, {LW_TAIL}")
e(f"v_add_u32 v9, s{sT1}, v9")
for i in range(7):
    r = 120 + 4 * i
    e(f"ds_read_b64_tr_b16 v[{r}:{r+1}], v9 offset:{i*8192}")
    e(f"ds_read_b64_tr_b16 v[{r+2}:{r+3}], v9 offset:{i*8192 + 128}")
    e("s_waitcnt lgkmcnt(4)")
lab("L_w_frag_done")
e("s_waitcnt lgkmcnt(0)")
e(f"v_lshlrev_b32 v10, 8, v{vL}")
e(f"s_lshr_b32 s{sT0}, s{sWAVE}, 2")
e(f"s_lshl_b32 s{sT0}, s{sT0}, 14")
e(f"s_lshl_b32 s{sT1}, s{sH}, 3")
e(f"s_add_u32 s{sT0}, s{sT0}, s{sT1}")
e(f"s_add_u32 s{sT0}, s{sT0}, {WS_ST}")
e("v_lshlrev_b32 v12, 8, v4")
e("v_lshl_add_u32 v12, v5, 4, v12")
e(f"s_lshr_b32 s{sT2}, s{sWAVE}, 2")
e(f"s_lshl_b32 s{sT2}, s{sT2}, 5")
e(f"s_add_u32 s{sT2}, s{sT2}, s{sH}")
e(f"s_lshl_b32 s{sT2}, s{sT2}, 2")
e(f"s_add_u32 s{sT2}, s{sT2}, s{sJQ}")
e(f"s_lshl_b32 s{sT2}, s{sT2}, 6")
e(f"s_and_b32 s{sT3}, s{sWAVE}, 3")
e(f"s_lshl_b32 s{sT3}, s{sT3}, 4")
e(f"s_add_u32 s{sT2}, s{sT2}, s{sT3}")
e(f"s_lshl_b32 s{sT2}, s{sT2}, 8")
e(f"s_add_u32 s{sT2}, s{sT2}, {WS_OP}")
spin_init()
lab("L_w_h3")
e(f"buffer_load_dwordx2 v[14:15], v10, s[{R_WS}:{R_WS+3}], s{sT0} offen sc1")
e("s_waitcnt vmcnt(0)")
e("v_max_u32 v11, v14, v15")
e("v_cmp_eq_u32 vcc, -1, v11")
spin_retry_if_vcc("L_w_h3", "L_w_h3d")
lab("L_w_h3d")
ts(7)
for i in range(4):
    e(f"buffer_load_dwordx4 v[{20+4*i}:{23+4*i}], v12, s[{R_WS}:{R_WS+3}], s{sT2} offen offset:{1024*i} sc1")
e("v_mov_b32 v16, v14")
allreduce("max", 16, 17)
e("v_sub_f32 v16, v14, v16")
e("v_exp_f32 v16, v16")
e("s_nop 0")
e("v_mul_f32 v18, v16, v15")
allreduce("add", 18, 17)
e("v_rcp_f32 v18, v18")
e("s_nop 0")
e("v_mul_f32 v16, v16, v18")
e(f"v_add_u32 v17, s{sT3}, v4")
e("v_lshlrev_b32 v17, 2, v17")
for i in range(4):
    if i:
        e("v_add_u32 v17, 16, v17")
    e(f"ds_bpermute_b32 v{40+i}, v17, v16")
e("s_waitcnt lgkmcnt(0)")
for i in range(4):
    e(f"s_waitcnt vmcnt({3-i})")
    for j in range(4):
        src = 20 + 4 * i + j
        e(f"v_lshlrev_b32 v44, 16, v{src}")
        e(f"v_and_b32 v45, 0xffff0000, v{src}")
        if i == 0:
            e(f"v_mul_f32 v{50+2*j}, v{40+i}, v44")
            e(f"v_mul_f32 v{51+2*j}, v{40+i}, v45")
        else:
            e(f"v_fmac_f32 v{50+2*j}, v{40+i}, v44")
            e(f"v_fmac_f32 v{51+2*j}, v{40+i}, v45")
for j in range(4):
    e(f"v_cvt_pk_bf16_f32 v{60+j}, v{50+2*j}, v{51+2*j}")
e(f"s_lshl_b32 s{sT0}, s{sWAVE}, 2")
e(f"v_add_u32 v10, s{sT0}, v4")
e("v_and_b32 v11, 15, v10")
e("v_xor_b32 v11, v11, v5")
e("v_lshlrev_b32 v11, 4, v11")
e("v_lshl_add_u32 v10, v10, 8, v11")
e(f"v_add_u32 v10, {LW_CX}, v10")
e("ds_write_b128 v10, v[60:63]")
e("v_lshlrev_b32 v10, 8, v5")
e(f"v_add_u32 v10, {LW_CX}, v10")
for ks in range(4):
    e(f"v_add_u32 v11, {4*ks}, v4")
    e("v_xor_b32 v11, v11, v5")
    e(f"v_lshl_add_u32 v{44+ks}, v11, 4, v10")
e("s_waitcnt lgkmcnt(0)")
barrier()
ts(8)
for ks in range(4):
    e(f"ds_read_b128 v[{20+8*ks}:{23+8*ks}], v{44+ks}")
    e(f"ds_read_b128 v[{24+8*ks}:{27+8*ks}], v{44+ks} offset:4096")
for ks in range(4):
    e(f"s_waitcnt lgkmcnt({2*(3-ks)})")
    c0 = "0" if ks == 0 else "v[60:63]"
    c1 = "0" if ks == 0 else "v[64:67]"
    e(f"v_mfma_f32_16x16x32_bf16 v[60:63], v[{20+8*ks}:{23+8*ks}], v[{100+4*ks}:{103+4*ks}], {c0}")
    e(f"v_mfma_f32_16x16x32_bf16 v[64:67], v[{24+8*ks}:{27+8*ks}], v[{100+4*ks}:{103+4*ks}], {c1}")
e("s_nop 7")
e("v_add_f32 v60, v60, v61")
e("v_add_f32 v62, v62, v63")
e("v_add_f32 v64, v64, v65")
e("v_add_f32 v66, v66, v67")
e("v_add_f32 v60, v60, v62")
e("v_add_f32 v64, v64, v66")
e("s_nop 1")
e("v_permlane32_swap_b32 v60, v64")
e("s_nop 0")
e("v_add_f32 v60, v60, v64")
e("v_mov_b32 v61, v60")
e("s_nop 1")
e("v_permlane16_swap_b32 v61, v60")
e("s_nop 0")
e("v_add_f32 v60, v60, v61")
e("v_cvt_pk_bf16_f32 v60, v60, v60")
e(f"v_lshrrev_b32 v10, 5, v{vL}")
e("v_lshlrev_b32 v10, 8, v10")
e("v_lshl_add_u32 v10, v5, 1, v10")
e(f"s_lshl_b32 s{sT0}, s{sWAVE}, 5")
e(f"v_add_u32 v10, s{sT0}, v10")
e(f"ds_write_b16 v10, v60 offset:{LW_STG}")
e("s_waitcnt lgkmcnt(0)")
barrier()
e(f"s_cmp_lg_u32 s{sWAVE}, 0")
e("s_cbranch_scc1 L_w_cp_done")
e(f"v_lshlrev_b32 v10, 4, v{vL}")
e(f"v_and_b32 v10, 511, v10")
e(f"ds_read_b128 v[60:63], v10 offset:{LW_STG}")
e("v_lshlrev_b32 v11, 13, v4")
e("v_lshl_add_u32 v11, v5, 4, v11")
e(f"s_lshl_b32 s{sT0}, s{sJQ}, 14")
e(f"s_lshl_b32 s{sT1}, s{sH}, 8")
e(f"s_add_u32 s{sT0}, s{sT0}, s{sT1}")
e(f"s_add_u32 s{sT0}, s{sT0}, {WS_CP}")
e(f"v_cmp_gt_u32 vcc, 32, v{vL}")
e("s_waitcnt lgkmcnt(0)")
for i in range(4):
    e(f"v_min_u32 v{60+i}, -2, v{60+i}")
e(f"s_and_saveexec_b64 s[{sEX}:{sEX+1}], vcc")
e(f"buffer_store_dwordx4 v[60:63], v11, s[{R_WS}:{R_WS+3}], s{sT0} offen sc1")
e(f"s_mov_b64 exec, s[{sEX}:{sEX+1}]")
lab("L_w_cp_done")
ts(9)
e(f"s_cmp_ge_u32 s{sIDX}, 80")
e("s_cbranch_scc1 L_w_stage7")
e(f"v_and_b32 v10, 3, v{vL}")
e(f"v_bfe_u32 v11, v{vL}, 2, 1")
e("v_lshl_add_u32 v10, v10, 1, v11")
e("v_lshlrev_b32 v10, 13, v10")
e("v_lshl_add_u32 v10, v4, 4, v10")
e(f"s_lshl_b32 s{sT0}, s{sKQ}, 11")
e(f"s_lshl_b32 s{sT1}, s{sWAVE}, 8")
e(f"s_add_u32 s{sT0}, s{sT0}, s{sT1}")
e(f"s_add_u32 s{sT0}, s{sT0}, {WS_CP}")
spin_init()
lab("L_w_h4")
for ks in range(4):
    e(f"buffer_load_dwordx4 v[{20+4*ks}:{23+4*ks}], v10, s[{R_WS}:{R_WS+3}], s{sT0} offen offset:{64*ks} sc1")
e("s_waitcnt vmcnt(0)")
umax_chain(11, range(20, 36))
e("v_cmp_eq_u32 vcc, -1, v11")
spin_retry_if_vcc("L_w_h4", "L_w_h4d")
lab("L_w_h4d")
ts(10)
for ks in range(4):
    for ct in range(2):
        d = 60 + 4 * ct
        cc = "0" if ks == 0 else f"v[{d}:{d+3}]"
        r = 120 + 8 * ks + 4 * ct
        e(f"v_mfma_f32_16x16x32_bf16 v[{d}:{d+3}], v[{20+4*ks}:{23+4*ks}], v[{r}:{r+3}], {cc}")
e("v_lshlrev_b32 v10, 7, v4")
e("v_lshl_add_u32 v10, v5, 2, v10")
e(f"s_lshl_b32 s{sT0}, s{sWAVE}, 8")
e(f"s_add_u32 s{sT0}, s{sT0}, {LW_RED}")
e(f"v_add_u32 v10, s{sT0}, v10")
e(f"v_cmp_gt_u32 vcc, 32, v{vL}")
e("s_nop 4")
e("v_add_f32 v60, v60, v61")
e("v_add_f32 v62, v62, v63")
e("v_add_f32 v64, v64, v65")
e("v_add_f32 v66, v66, v67")
e("v_add_f32 v60, v60, v62")
e("v_add_f32 v64, v64, v66")
e(f"s_and_saveexec_b64 s[{sEX}:{sEX+1}], vcc")
e("ds_write_b32 v10, v60")
e("ds_write_b32 v10, v64 offset:64")
e(f"s_mov_b64 exec, s[{sEX}:{sEX+1}]")
e("s_waitcnt lgkmcnt(0)")
barrier()
e(f"s_cmp_lg_u32 s{sWAVE}, 0")
e("s_cbranch_scc1 L_w_fin")
e(f"v_lshlrev_b32 v10, 2, v{vL}")
e(f"v_add_u32 v10, {LW_RED}, v10")
for i in range(8):
    e(f"ds_read_b32 v{20+i}, v10 offset:{256*i}")
e(f"v_lshrrev_b32 v11, 5, v{vL}")
e("v_mul_u32_u24 v11, 2560, v11")
e(f"v_and_b32 v12, 31, v{vL}")
e("v_lshl_add_u32 v11, v12, 2, v11")
e(f"s_mul_i32 s{sT0}, s{sKQ}, 5120")
e(f"s_lshl_b32 s{sT1}, s{sCS}, 7")
e(f"s_add_u32 s{sT0}, s{sT0}, s{sT1}")
e(f"s_add_u32 s{sT0}, s{sT0}, {WS_HP}")
e("s_waitcnt lgkmcnt(0)")
e("v_add_f32 v20, v20, v21")
e("v_add_f32 v22, v22, v23")
e("v_add_f32 v24, v24, v25")
e("v_add_f32 v26, v26, v27")
e("v_add_f32 v20, v20, v22")
e("v_add_f32 v24, v24, v26")
e("v_add_f32 v20, v20, v24")
e("v_min_u32 v20, -2, v20")
e(f"buffer_store_dword v20, v11, s[{R_WS}:{R_WS+3}], s{sT0} offen sc1")
ts(11)
e("s_branch L_w_fin")
lab("L_w_stage7")
e(f"s_cmp_ge_u32 s{sIDX}, 120")
e("s_cbranch_scc1 L_w_fin")
srd(R_A, P_X, 2560)
e("v_and_b32 v12, 1, v4")
e("v_mul_u32_u24 v10, 2560, v12")
e("v_lshl_add_u32 v10, v5, 2, v10")
e("v_mul_u32_u24 v13, 1280, v12")
e("v_lshl_add_u32 v13, v5, 1, v13")
e(f"s_cmp_lg_u32 s{sWAVE}, 0")
e("s_cbranch_scc1 L_w_s7_noh")
e(f"s_lshl_b32 s{sT1}, s{sCS}, 5")
e(f"buffer_load_ushort v70, v13, s[{R_A}:{R_A+3}], s{sT1} offen")
e(f"s_lshl_b32 s{sT0}, s{sCS}, 6")
e(f"s_add_u32 s{sT0}, s{sT0}, {WS_HP}")
spin_init()
lab("L_w_h5b")
for kq in range(4):
    if kq:
        e(f"s_add_u32 s{sT2}, s{sT0}, {5120*kq}")
        e(f"buffer_load_dword v{72+kq}, v10, s[{R_WS}:{R_WS+3}], s{sT2} offen sc1")
    else:
        e(f"buffer_load_dword v72, v10, s[{R_WS}:{R_WS+3}], s{sT0} offen sc1")
e("s_waitcnt vmcnt(0)")
umax_chain(11, range(72, 76))
e("v_cmp_eq_u32 vcc, -1, v11")
spin_retry_if_vcc("L_w_h5b", "L_w_h5bd")
lab("L_w_h5bd")
e("v_lshlrev_b32 v70, 16, v70")
e("v_add_f32 v72, v72, v73")
e("v_add_f32 v74, v74, v75")
e("v_add_f32 v72, v72, v74")
e("v_add_f32 v70, v70, v72")
e("v_cvt_pk_bf16_f32 v70, v70, v70")
e("v_and_b32 v70, 0xffff0000, v70")
lab("L_w_s7_noh")
e(f"v_and_b32 v10, 1, v{vL}")
e("v_mul_u32_u24 v10, 3456, v10")
e("v_lshl_add_u32 v10, v4, 4, v10")
e(f"s_lshl_b32 s{sT0}, s{sWAVE}, 6")
e(f"s_add_u32 s{sT0}, s{sT0}, {WS_ACT}")
for j in range(4):
    e(f"v_mov_b32 v{44+j}, 0")
spin_init()
lab("L_w_h6")
for i in range(6):
    e(f"buffer_load_dwordx4 v[{20+4*i}:{23+4*i}], v10, s[{R_WS}:{R_WS+3}], s{sT0} offen offset:{512*i} sc1")
e(f"s_cmp_ge_u32 s{sWAVE}, 6")
e("s_cbranch_scc1 L_w_h6_skip")
e(f"buffer_load_dwordx4 v[44:47], v10, s[{R_WS}:{R_WS+3}], s{sT0} offen offset:{512*6} sc1")
lab("L_w_h6_skip")
e("s_waitcnt vmcnt(0)")
umax_chain(11, range(20, 48))
e("v_cmp_eq_u32 vcc, -1, v11")
spin_retry_if_vcc("L_w_h6", "L_w_h6d")
lab("L_w_h6d")
ts(10)
for i in range(7):
    cc = "0" if i == 0 else "v[60:63]"
    e(f"v_mfma_f32_16x16x32_bf16 v[60:63], v[{20+4*i}:{23+4*i}], v[{120+4*i}:{123+4*i}], {cc}")
e("v_lshlrev_b32 v10, 2, v5")
e(f"s_lshl_b32 s{sT0}, s{sWAVE}, 7")
e(f"s_add_u32 s{sT0}, s{sT0}, {LW_RED}")
e(f"v_add_u32 v10, s{sT0}, v10")
e(f"v_cmp_gt_u32 vcc, 16, v{vL}")
e("s_nop 6")
e(f"s_and_saveexec_b64 s[{sEX}:{sEX+1}], vcc")
e("ds_write_b32 v10, v60")
e("ds_write_b32 v10, v61 offset:64")
e(f"s_mov_b64 exec, s[{sEX}:{sEX+1}]")
e("s_waitcnt lgkmcnt(0)")
barrier()
e(f"s_cmp_lg_u32 s{sWAVE}, 0")
e("s_cbranch_scc1 L_w_fin")
e(f"v_and_b32 v10, 31, v{vL}")
e("v_lshlrev_b32 v10, 2, v10")
e(f"v_add_u32 v10, {LW_RED}, v10")
for i in range(8):
    e(f"ds_read_b32 v{20+i}, v10 offset:{128*i}")
srd(R_A, P_OUT, 2560)
e(f"s_lshl_b32 s{sT1}, s{sCS}, 5")
e(f"v_cmp_gt_u32 vcc, 32, v{vL}")
e("s_waitcnt lgkmcnt(0)")
e("v_add_f32 v20, v20, v21")
e("v_add_f32 v22, v22, v23")
e("v_add_f32 v24, v24, v25")
e("v_add_f32 v26, v26, v27")
e("v_add_f32 v20, v20, v22")
e("v_add_f32 v24, v24, v26")
e("v_add_f32 v20, v20, v24")
e("v_add_f32 v20, v20, v70")
e("v_cvt_pk_bf16_f32 v20, v20, v20")
e(f"s_and_saveexec_b64 s[{sEX}:{sEX+1}], vcc")
e(f"buffer_store_short v20, v13, s[{R_A}:{R_A+3}], s{sT1} offen")
e(f"s_mov_b64 exec, s[{sEX}:{sEX+1}]")
ts(11)
lab("L_w_fin")
ts_flush(12)
e("s_endpgm")

LA_C = 0
LA_Q = 131072
LA_P = LA_Q
LA_MX = LA_Q + 8192
LA_LS = LA_Q + 8704
LA_O = 0
LA_W13 = 32768
LA_H = 81920
LA_STAT = 86016
LA_RED = 87040

lab("L_arole")
c("================= A role =================")
e(f"s_sub_u32 s{sIDX}, s2, 128")
e(f"s_lshr_b32 s{sB}, s{sIDX}, 6")
e(f"s_and_b32 s{sS}, s{sIDX}, 63")
srd(R_A, P_CKV, 2 * 8192 * 1024)
e(f"v_lshrrev_b32 v4, 4, v{vL}")
e(f"v_and_b32 v5, 15, v{vL}")
e(f"s_cmp_ge_u32 s{sIDX}, {NCLR}")
e("s_cbranch_scc1 L_a_noclr")
e("v_lshlrev_b32 v6, 4, v0")
for j in range(4):
    e(f"v_mov_b32 v{8+j}, -1")
e(f"s_lshl_b32 s{sT0}, s{sIDX}, 14")
e(f"s_add_u32 s{sT1}, s{sT0}, 8192")
e(f"buffer_store_dwordx4 v[8:11], v6, s[{R_WS}:{R_WS+3}], s{sT0} offen sc1")
e(f"buffer_store_dwordx4 v[8:11], v6, s[{R_WS}:{R_WS+3}], s{sT1} offen sc1")
lab("L_a_noclr")
e(f"v_lshlrev_b32 v6, 4, v{vL}")
e(f"s_lshl_b32 s{sT0}, s{sIDX}, 7")
e(f"s_lshl_b32 s{sT1}, s{sWAVE}, 4")
e(f"s_add_u32 s{sT0}, s{sT0}, s{sT1}")
e(f"s_lshl_b32 s{sT0}, s{sT0}, 10")
e(f"s_lshl_b32 s{sT1}, s{sWAVE}, 14")
def gsw(i):
    return ((i & 3) << 2) | ((i >> 2) & 3)
for i in range(16):
    e(f"v_xor_b32 v7, {gsw(i) << 4}, v6")
    e(f"s_add_u32 m0, s{sT1}, {1024*i + LA_C}")
    e(f"s_add_u32 s{sT2}, s{sT0}, {1024*i}")
    e(f"buffer_load_dwordx4 v7, s[{R_A}:{R_A+3}], s{sT2} offen nt lds")
ts(1)
e(f"s_cmp_ge_u32 s{sIDX}, {NCLR}")
e("s_cbranch_scc1 L_a_noclr2")
e("s_waitcnt vmcnt(16)")
barrier()
e(f"s_cmp_lg_u32 s{sWAVE}, 0")
e("s_cbranch_scc1 L_a_noclr2")
e(f"s_mov_b32 s{sT0}, 1")
e(f"s_atomic_add s{sT0}, s[{P_DBG}:{P_DBG+1}], 0")
lab("L_a_noclr2")
e("v_and_b32 v8, 3, v5")
e("v_lshrrev_b32 v9, 2, v5")
e("v_lshl_or_b32 v8, v8, 2, v9")
e(f"v_lshrrev_b32 v9, 5, v{vL}")
e(f"v_and_b32 v10, 31, v{vL}")
e("v_lshlrev_b32 v10, 10, v10")
e(f"s_and_b32 s{sT0}, s{sWAVE}, 3")
e(f"s_lshl_b32 s{sT0}, s{sT0}, 15")
for kk in range(8):
    e(f"v_add_u32 v11, {2*kk}, v9")
    e("v_xor_b32 v11, v11, v8")
    e("v_lshl_add_u32 v11, v11, 4, v10")
    e(f"v_add_u32 v{200+kk}, s{sT0}, v11")
    e(f"v_add_u32 v{208+kk}, {LA_Q}, v11")
e(f"v_bfe_u32 v11, v{vL}, 2, 2")
e("v_lshrrev_b32 v12, 1, v4")
e("v_lshl_or_b32 v13, v11, 2, v12")
e("v_lshl_add_u32 v14, v12, 2, v11")
e("v_lshlrev_b32 v14, 10, v14")
e(f"s_lshr_b32 s{sT0}, s{sWAVE}, 1")
e(f"s_lshl_b32 s{sT0}, s{sT0}, 8")
e(f"v_add_u32 v14, s{sT0}, v14")
e(f"v_and_b32 v15, 1, v{vL}")
e("v_lshl_add_u32 v14, v15, 3, v14")
e("v_and_b32 v15, 1, v4")
e("v_lshlrev_b32 v15, 1, v15")
e(f"v_bfe_u32 v16, v{vL}, 1, 1")
e("v_or_b32 v15, v15, v16")
e(f"s_and_b32 s{sT0}, s{sWAVE}, 1")
e(f"s_lshl_b32 s{sT0}, s{sT0}, 3")
e(f"v_or_b32 v15, s{sT0}, v15")
e("v_xor_b32 v15, v15, v13")
for ct in range(2):
    for rd in range(2):
        x = (4 * ct) ^ (2 * rd)
        r = 216 + 4 * ct + 2 * rd
        e(f"v_xor_b32 v16, {x}, v15")
        e(f"v_lshl_add_u32 v{r}, v16, 4, v14")
        if rd:
            e(f"v_add_u32 v{r}, 8192, v{r}")
        e(f"v_add_u32 v{r+1}, 0x10000, v{r}")
e("v_lshlrev_b32 v6, 4, v0")
e(f"s_lshl_b32 s{sT0}, s{sB}, 15")
e(f"s_add_u32 s{sT0}, s{sT0}, {WS_QA}")
for i in range(1, 4):
    e(f"s_add_u32 s{sT2+i-1}, s{sT0}, {8192*i}")
spin_init()
lab("L_a_h2")
e(f"buffer_load_dword v7, v3, s[{R_DBG}:{R_DBG+3}], 0 offen sc1")
e(f"buffer_load_dwordx4 v[20:23], v6, s[{R_WS}:{R_WS+3}], s{sT0} offen sc1")
for i in range(1, 4):
    e(f"buffer_load_dwordx4 v[{20+4*i}:{23+4*i}], v6, s[{R_WS}:{R_WS+3}], s{sT2+i-1} offen sc1")
e("s_waitcnt vmcnt(0)")
umax_chain(11, range(20, 36))
e("v_cmp_eq_u32 vcc, -1, v11")
e(f"v_cmp_gt_u32 s[{sEX}:{sEX+1}], {NCLR}, v7")
e("s_nop 1")
e(f"s_or_b64 s[{sEX}:{sEX+1}], vcc, s[{sEX}:{sEX+1}]")
e("s_cbranch_scc0 L_a_h2d")
e(f"s_add_u32 s{sSPIN}, s{sSPIN}, 1")
e(f"s_cmp_lt_u32 s{sSPIN}, {SPIN_MAX}")
e("s_cbranch_scc1 L_a_h2")
lab("L_a_h2d")
ts(2)
e(f"s_and_b32 s{sT0}, s{sWAVE}, 3")
e(f"s_lshl_b32 s{sT0}, s{sT0}, 2")
e(f"s_lshr_b32 s{sT1}, s{sWAVE}, 2")
e(f"s_or_b32 s{sT0}, s{sT0}, s{sT1}")
e(f"v_xor_b32 v7, s{sT0}, v{vL}")
e("v_lshlrev_b32 v7, 4, v7")
e(f"s_lshl_b32 s{sT1}, s{sWAVE}, 10")
e(f"s_add_u32 s{sT1}, s{sT1}, {LA_Q}")
e(f"v_add_u32 v7, s{sT1}, v7")
e("v_xor_b32 v8, 32, v7")
for i in range(4):
    a = "v7" if (i & 1) == 0 else "v8"
    e(f"ds_write_b128 {a}, v[{20+4*i}:{23+4*i}] offset:{8192*i}")
e("s_waitcnt vmcnt(0) lgkmcnt(0)")
barrier()
ts(3)
e(f"s_cmp_ge_u32 s{sWAVE}, 4")
e("s_cbranch_scc1 L_a_s_done")
DEPTH = 6
def s_read(ks):
    slot = ks % 8
    j, kk = ks >> 3, ks & 7
    e(f"ds_read_b128 v[{20+8*slot}:{23+8*slot}], v{200+kk} offset:{256*j}")
    e(f"ds_read_b128 v[{24+8*slot}:{27+8*slot}], v{208+kk} offset:{256*j}")
for ks in range(DEPTH):
    s_read(ks)
for ks in range(32):
    outstanding = min(DEPTH, 32 - ks)
    e(f"s_waitcnt lgkmcnt({2*(outstanding-1)})")
    slot = ks % 8
    cc = "0" if ks == 0 else "v[100:115]"
    e(f"v_mfma_f32_32x32x16_bf16 v[100:115], v[{20+8*slot}:{23+8*slot}], v[{24+8*slot}:{27+8*slot}], {cc}")
    if ks + DEPTH < 32:
        s_read(ks + DEPTH)
e("s_nop 15")
e("v_max3_f32 v20, v100, v101, v102")
for i in range(3, 15, 2):
    e(f"v_max3_f32 v20, v20, v{100+i}, v{101+i}")
e("v_max_f32 v20, v20, v115")
e("v_mov_b32 v21, v20")
e("s_nop 1")
e("v_permlane32_swap_b32 v21, v20")
e("s_nop 0")
e("v_max_f32 v20, v20, v21")
lab("L_a_s_done")
barrier()
ts(4)
e(f"v_and_b32 v22, 31, v{vL}")
e("v_lshlrev_b32 v22, 4, v22")
e(f"v_add_u32 v22, {LA_MX}, v22")
e(f"s_cmp_ge_u32 s{sWAVE}, 4")
e("s_cbranch_scc1 L_a_mx_done")
e(f"s_lshl_b32 s{sT0}, s{sWAVE}, 2")
e(f"v_add_u32 v23, s{sT0}, v22")
e("ds_write_b32 v23, v20")
e("s_waitcnt lgkmcnt(0)")
lab("L_a_mx_done")
barrier()
e(f"s_cmp_ge_u32 s{sWAVE}, 4")
e("s_cbranch_scc1 L_a_p_done")
e("ds_read_b128 v[24:27], v22")
e("s_waitcnt lgkmcnt(0)")
e("v_max3_f32 v230, v24, v25, v26")
e("v_max_f32 v230, v230, v27")
for i in range(16):
    e(f"v_sub_f32 v{100+i}, v{100+i}, v230")
for i in range(16):
    e(f"v_exp_f32 v{100+i}, v{100+i}")
e("s_nop 0")
e("v_add_f32 v24, v100, v101")
for i in range(2, 16):
    e(f"v_add_f32 v24, v24, v{100+i}")
for i in range(8):
    e(f"v_cvt_pk_bf16_f32 v{28+i}, v{100+2*i}, v{101+2*i}")
e("v_mov_b32 v25, v24")
e(f"v_lshlrev_b32 v26, 4, v{vL}")
e(f"s_lshl_b32 s{sT1}, s{sWAVE}, 11")
e(f"s_add_u32 s{sT1}, s{sT1}, {LA_P}")
e("v_permlane32_swap_b32 v25, v24")
e(f"v_add_u32 v26, s{sT1}, v26")
e("v_add_f32 v24, v24, v25")
e("ds_write_b128 v26, v[28:31]")
e("ds_write_b128 v26, v[32:35] offset:1024")
e(f"ds_write_b32 v23, v24 offset:{LA_LS - LA_MX}")
e("s_waitcnt lgkmcnt(0)")
lab("L_a_p_done")
barrier()
ts(5)
e(f"v_lshlrev_b32 v26, 4, v{vL}")
e(f"v_add_u32 v26, {LA_P}, v26")
def pv_read(kk):
    base = 64 + 8 * (kk % 4)
    hi = kk >> 2
    off = (kk & 3) * 16384
    e(f"ds_read_b128 v[{32+4*kk}:{35+4*kk}], v26 offset:{1024*kk}")
    for ct in range(2):
        for rd in range(2):
            r = base + 4 * ct + 2 * rd
            e(f"ds_read_b64_tr_b16 v[{r}:{r+1}], v{216+4*ct+2*rd+hi} offset:{off}")
PD = 3
for kk in range(PD):
    pv_read(kk)
for kk in range(8):
    outstanding = min(PD, 8 - kk)
    e(f"s_waitcnt lgkmcnt({5*(outstanding-1)})")
    base = 64 + 8 * (kk % 4)
    for ct in range(2):
        d = 100 + 16 * ct
        cc = "0" if kk == 0 else f"v[{d}:{d+15}]"
        e(f"v_mfma_f32_32x32x16_bf16 v[{d}:{d+15}], v[{base+4*ct}:{base+4*ct+3}], v[{32+4*kk}:{35+4*kk}], {cc}")
    if kk + PD < 8:
        pv_read(kk + PD)
e(f"v_and_b32 v20, 31, v{vL}")
e("v_lshlrev_b32 v21, 10, v20")
e(f"v_lshrrev_b32 v22, 5, v{vL}")
e("v_lshl_add_u32 v21, v22, 3, v21")
e(f"s_lshl_b32 s{sT0}, s{sWAVE}, 3")
e(f"v_xor_b32 v22, s{sT0}, v5")
barrier()
ts(6)
e("s_nop 7")
for ct in range(2):
    for i4 in range(4):
        d = 100 + 16 * ct + 4 * i4
        e(f"v_cvt_pk_bf16_f32 v24, v{d}, v{d+1}")
        e(f"v_cvt_pk_bf16_f32 v25, v{d+2}, v{d+3}")
        e(f"v_xor_b32 v23, {4*ct + i4}, v22")
        e("v_lshl_add_u32 v23, v23, 4, v21")
        e(f"ds_write_b64 v23, v[24:25] offset:{LA_O}")
e("s_waitcnt lgkmcnt(0)")
barrier()
e(f"s_lshl_b32 s{sT0}, s{sWAVE}, 2")
e("v_lshlrev_b32 v21, 14, v4")
e("v_lshl_add_u32 v21, v5, 4, v21")
e(f"s_lshl_b32 s{sT1}, s{sB}, 5")
e(f"s_add_u32 s{sT1}, s{sT1}, s{sT0}")
e(f"s_lshl_b32 s{sT1}, s{sT1}, 16")
e(f"s_lshl_b32 s{sT2}, s{sS}, 8")
e(f"s_add_u32 s{sT1}, s{sT1}, s{sT2}")
e(f"s_add_u32 s{sT1}, s{sT1}, {WS_OP}")
for i in range(4):
    e(f"s_add_u32 s{sT2}, s{sT0}, {i}")
    e(f"s_and_b32 s{sT3}, s{sT2}, 15")
    e(f"v_xor_b32 v20, s{sT3}, v{vL}")
    e("v_lshlrev_b32 v20, 4, v20")
    e(f"s_lshl_b32 s{sT2}, s{sT2}, 10")
    e(f"v_add_u32 v20, s{sT2}, v20")
    e(f"ds_read_b128 v[{32+4*i}:{35+4*i}], v20 offset:{LA_O}")
for i in range(4):
    e(f"s_waitcnt lgkmcnt({3-i})")
    e(f"s_add_u32 s{sT2}, s{sT1}, {65536*i}")
    e(f"buffer_store_dwordx4 v[{32+4*i}:{35+4*i}], v21, s[{R_WS}:{R_WS+3}], s{sT2} offen sc1")
ts(7)
e(f"v_and_b32 v22, 31, v{vL}")
e("v_lshlrev_b32 v23, 4, v22")
e(f"v_add_u32 v23, {LA_LS}, v23")
e("ds_read_b128 v[24:27], v23")
e("v_lshlrev_b32 v22, 3, v22")
e(f"s_lshl_b32 s{sT1}, s{sIDX}, 8")
e(f"s_add_u32 s{sT1}, s{sT1}, {WS_ST}")
e("s_waitcnt lgkmcnt(0)")
e("v_add_f32 v24, v24, v25")
e("v_add_f32 v26, v26, v27")
e("v_add_f32 v25, v24, v26")
e("v_min_u32 v24, -2, v230")
e("v_min_u32 v25, -2, v25")
e(f"v_cmp_gt_u32 vcc, 32, v{vL}")
e("s_waitcnt vmcnt(0)")
barrier()
ts(8)
e(f"s_cmp_lg_u32 s{sWAVE}, 0")
e("s_cbranch_scc1 L_a_st_done")
e(f"s_and_saveexec_b64 s[{sEX}:{sEX+1}], vcc")
e(f"buffer_store_dwordx2 v[24:25], v22, s[{R_WS}:{R_WS+3}], s{sT1} offen sc1")
e(f"s_mov_b64 exec, s[{sEX}:{sEX+1}]")
lab("L_a_st_done")
e(f"s_cmp_ge_u32 s{sIDX}, 108")
e("s_cbranch_scc1 L_a_fin")
barrier()
e(f"s_and_b32 s{sT0}, s{sWAVE}, 1")
e(f"s_cmp_eq_u32 s{sT0}, 0")
e(f"s_cselect_b32 s{R_B}, s{P_W1}, s{P_W3}")
e(f"s_cselect_b32 s{R_B+1}, s{P_W1+1}, s{P_W3+1}")
e(f"s_and_b32 s{R_B+1}, s{R_B+1}, 0xffff")
e(f"s_mov_b32 s{R_B+2}, {640*3456}")
e(f"s_mov_b32 s{R_B+3}, 0x00020000")
e(f"v_lshrrev_b32 v9, 1, v{vL}")
e("v_mul_u32_u24 v9, 3456, v9")
e(f"v_and_b32 v10, 1, v{vL}")
e("v_lshl_add_u32 v9, v10, 4, v9")
e(f"s_lshr_b32 s{sKQ}, s{sWAVE}, 1")
e(f"s_mul_i32 s{sT0}, s{sKQ}, {160*3456}")
e(f"s_lshl_b32 s{sT1}, s{sIDX}, 5")
e(f"s_add_u32 s{sT0}, s{sT0}, s{sT1}")
e(f"s_mul_i32 s{sT1}, s{sWAVE}, 5120")
e(f"s_add_u32 s{sT1}, s{sT1}, {LA_W13}")
for i in range(5):
    e(f"s_add_u32 m0, s{sT1}, {1024*i}")
    e(f"s_add_u32 s{sT2}, s{sT0}, {32*3456*i}")
    e(f"buffer_load_dwordx4 v9, s[{R_B}:{R_B+3}], s{sT2} offen nt lds")
srd(R_A, P_X, 2560)
e(f"s_lshr_b32 s{sB}, s{sWAVE}, 2")
e(f"s_and_b32 s{sS}, s{sWAVE}, 3")
e(f"v_min_u32 v12, 39, v{vL}")
e("v_lshlrev_b32 v13, 3, v12")
e(f"s_mul_i32 s{sT2}, s{sB}, 1280")
e(f"s_mul_i32 s{sT3}, s{sS}, 320")
e(f"s_add_u32 s{sT2}, s{sT2}, s{sT3}")
e(f"buffer_load_dwordx2 v[14:15], v13, s[{R_A}:{R_A+3}], s{sT2} offen")
e("v_lshlrev_b32 v16, 2, v0")
e("v_mov_b32 v17, 0x3f803f80")
e("v_cmp_gt_u32 vcc, 320, v0")
e(f"v_add_u32 v16, {LA_H + 2560}, v16")
e(f"s_and_saveexec_b64 s[{sEX}:{sEX+1}], vcc")
e("ds_write_b32 v16, v17")
e(f"s_mov_b64 exec, s[{sEX}:{sEX+1}]")
e(f"v_bfe_u32 v9, v{vL}, 2, 2")
e("v_lshl_add_u32 v9, v4, 3, v9")
e("v_lshlrev_b32 v9, 5, v9")
e(f"v_and_b32 v10, 3, v{vL}")
e("v_lshl_add_u32 v9, v10, 3, v9")
e(f"v_add_u32 v9, s{sT1}, v9")
e("s_waitcnt vmcnt(0)")
for ks in range(5):
    r = 120 + 4 * ks
    e(f"ds_read_b64_tr_b16 v[{r}:{r+1}], v9 offset:{ks*1024}")
    e(f"ds_read_b64_tr_b16 v[{r+2}:{r+3}], v9 offset:{ks*1024 + 128}")
ts(9)
e("v_lshlrev_b32 v13, 4, v12")
e(f"s_lshl_b32 s{sT0}, s{sT2}, 1")
e(f"s_add_u32 s{sT0}, s{sT0}, {WS_HP}")
for kq in range(1, 4):
    e(f"s_add_u32 s{sT3+kq-1}, s{sT0}, {5120*kq}")
spin_init()
lab("L_a_h5")
e(f"buffer_load_dwordx4 v[20:23], v13, s[{R_WS}:{R_WS+3}], s{sT0} offen sc1")
for kq in range(1, 4):
    e(f"buffer_load_dwordx4 v[{20+4*kq}:{23+4*kq}], v13, s[{R_WS}:{R_WS+3}], s{sT3+kq-1} offen sc1")
e("s_waitcnt vmcnt(0)")
umax_chain(11, range(20, 36))
e("v_cmp_eq_u32 vcc, -1, v11")
spin_retry_if_vcc("L_a_h5", "L_a_h5d")
lab("L_a_h5d")
ts(10)
e("v_lshlrev_b32 v40, 16, v14")
e("v_and_b32 v41, 0xffff0000, v14")
e("v_lshlrev_b32 v42, 16, v15")
e("v_and_b32 v43, 0xffff0000, v15")
for j in range(4):
    e(f"v_add_f32 v{20+j}, v{20+j}, v{24+j}")
    e(f"v_add_f32 v{28+j}, v{28+j}, v{32+j}")
for j in range(4):
    e(f"v_add_f32 v{20+j}, v{20+j}, v{28+j}")
for j in range(4):
    e(f"v_add_f32 v{40+j}, v{40+j}, v{20+j}")
e("v_cvt_pk_bf16_f32 v44, v40, v41")
e("v_cvt_pk_bf16_f32 v45, v42, v43")
e("v_lshlrev_b32 v16, 3, v12")
e(f"s_add_u32 s{sT2}, s{sT2}, {LA_H}")
e(f"v_add_u32 v16, s{sT2}, v16")
e("ds_write_b64 v16, v[44:45]")
e("v_lshlrev_b32 v40, 16, v44")
e("v_and_b32 v41, 0xffff0000, v44")
e("v_lshlrev_b32 v42, 16, v45")
e("v_and_b32 v43, 0xffff0000, v45")
e(f"v_cmp_gt_u32 vcc, 40, v{vL}")
e("v_add_f32 v46, v40, v41")
e("v_add_f32 v47, v42, v43")
e("v_add_f32 v46, v46, v47")
e("v_cndmask_b32 v46, 0, v46, vcc")
allreduce("add", 46, 47)
e(f"v_mul_f32 v46, {fl(1.0/160.0)}, v46")
for j in range(4):
    e(f"v_sub_f32 v{40+j}, v{40+j}, v46")
e("v_mul_f32 v48, v40, v40")
for j in range(1, 4):
    e(f"v_fmac_f32 v48, v{40+j}, v{40+j}")
e("v_cndmask_b32 v48, 0, v48, vcc")
allreduce("add", 48, 47)
e("v_mov_b32 v47, v48")
e(f"s_lshl_b32 s{sT0}, s{sWAVE}, 3")
e(f"s_add_u32 s{sT0}, s{sT0}, {LA_STAT}")
e(f"v_mov_b32 v16, s{sT0}")
e("ds_write_b64 v16, v[46:47]")
e("v_min_u32 v16, 2, v5")
e("v_mul_u32_u24 v16, 1280, v16")
e("v_lshl_add_u32 v16, v4, 4, v16")
e(f"s_mul_i32 s{sT0}, s{sKQ}, 320")
e(f"s_add_u32 s{sT0}, s{sT0}, {LA_H}")
e(f"v_add_u32 v16, s{sT0}, v16")
e("s_waitcnt lgkmcnt(0)")
barrier()
for ks in range(5):
    e(f"ds_read_b128 v[{20+4*ks}:{23+4*ks}], v16 offset:{64*ks}")
for ks in range(5):
    e(f"s_waitcnt lgkmcnt({4-ks})")
    cc = "0" if ks == 0 else "v[60:63]"
    e(f"v_mfma_f32_16x16x32_bf16 v[60:63], v[{20+4*ks}:{23+4*ks}], v[{120+4*ks}:{123+4*ks}], {cc}")
e("v_lshlrev_b32 v10, 2, v5")
e(f"s_mul_i32 s{sT0}, s{sWAVE}, 192")
e(f"s_add_u32 s{sT0}, s{sT0}, {LA_RED}")
e(f"v_add_u32 v10, s{sT0}, v10")
e(f"v_cmp_gt_u32 vcc, 16, v{vL}")
e("s_nop 6")
e(f"s_and_saveexec_b64 s[{sEX}:{sEX+1}], vcc")
e("ds_write_b32 v10, v60")
e("ds_write_b32 v10, v61 offset:64")
e("ds_write_b32 v10, v62 offset:128")
e(f"s_mov_b64 exec, s[{sEX}:{sEX+1}]")
e("s_waitcnt lgkmcnt(0)")
barrier()
e(f"s_cmp_lg_u32 s{sWAVE}, 0")
e("s_cbranch_scc1 L_a_fin")
e("v_and_b32 v12, 1, v4")
e("v_lshlrev_b32 v10, 6, v12")
e("v_lshl_add_u32 v10, v5, 2, v10")
e(f"v_add_u32 v10, {LA_RED}, v10")
e("v_lshlrev_b32 v11, 2, v5")
e(f"v_add_u32 v11, {LA_RED + 128}, v11")
for w in range(8):
    e(f"ds_read_b32 v{20+w}, v10 offset:{192*w}")
for w in range(8):
    e(f"ds_read_b32 v{28+w}, v11 offset:{192*w}")
e("s_waitcnt lgkmcnt(8)")
e("v_lshlrev_b32 v13, 5, v12")
e(f"v_add_u32 v13, {LA_STAT}, v13")
e("ds_read_b128 v[40:43], v13")
e("ds_read_b128 v[44:47], v13 offset:16")
e("s_waitcnt lgkmcnt(0)")
e("v_add_f32 v20, v20, v22")
e("v_add_f32 v24, v24, v26")
e("v_add_f32 v20, v20, v24")
e("v_add_f32 v21, v21, v23")
e("v_add_f32 v25, v25, v27")
e("v_add_f32 v21, v21, v25")
e("v_add_f32 v28, v28, v30")
e("v_add_f32 v32, v32, v34")
e("v_add_f32 v28, v28, v32")
e("v_add_f32 v29, v29, v31")
e("v_add_f32 v33, v33, v35")
e("v_add_f32 v29, v29, v33")
e("v_add_f32 v48, v40, v42")
e("v_add_f32 v49, v44, v46")
e("v_add_f32 v48, v48, v49")
e("v_mul_f32 v48, 0.25, v48")
e("v_add_f32 v49, v41, v43")
e("v_add_f32 v50, v45, v47")
e("v_add_f32 v49, v49, v50")
e("v_sub_f32 v40, v40, v48")
e("v_sub_f32 v42, v42, v48")
e("v_sub_f32 v44, v44, v48")
e("v_sub_f32 v46, v46, v48")
e("v_mul_f32 v50, v40, v40")
e("v_fmac_f32 v50, v42, v42")
e("v_fmac_f32 v50, v44, v44")
e("v_fmac_f32 v50, v46, v46")
e("v_fmac_f32 v49, 0x43200000, v50")
e(f"v_mov_b32 v51, {fl(1e-5)}")
e(f"v_fmac_f32 v51, {fl(1.0/640.0)}, v49")
e("v_rsq_f32 v51, v51")
e("v_fma_f32 v20, -v48, v28, v20")
e("v_fma_f32 v21, -v48, v29, v21")
e("v_mul_f32 v20, v20, v51")
e("v_mul_f32 v21, v21, v51")
e("v_mul_f32 v22, 0xbfb8aa3b, v20")
e("v_exp_f32 v22, v22")
e("s_nop 0")
e("v_add_f32 v22, 1.0, v22")
e("v_rcp_f32 v22, v22")
e("s_nop 0")
e("v_mul_f32 v20, v20, v22")
e("v_mul_f32 v20, v20, v21")
e("s_nop 1")
e("v_mov_b32_dpp v21, v20 quad_perm:[1,1,3,3] row_mask:0xf bank_mask:0xf")
e("s_nop 0")
e("v_cvt_pk_bf16_f32 v20, v20, v21")
e("v_min_u32 v20, -2, v20")
e("v_mul_u32_u24 v10, 3456, v12")
e("v_lshl_add_u32 v10, v5, 1, v10")
e(f"s_lshl_b32 s{sT0}, s{sIDX}, 5")
e(f"s_add_u32 s{sT0}, s{sT0}, {WS_ACT}")
e(f"s_mov_b64 s[{sEX}:{sEX+1}], exec")
e("s_mov_b32 exec_lo, 0x55555555")
e("s_mov_b32 exec_hi, 0")
e(f"buffer_store_dword v20, v10, s[{R_WS}:{R_WS+3}], s{sT0} offen sc1")
e(f"s_mov_b64 exec, s[{sEX}:{sEX+1}]")
ts(11)
lab("L_a_fin")
ts_flush(12)
lab("L_end")
e("s_endpgm")

tail = [
    '.section .rodata,"a"',
    ".p2align 6",
    f".amdhsa_kernel {NAME}_kernel",
    "  .amdhsa_next_free_vgpr 256",
    "  .amdhsa_next_free_sgpr 102",
    "  .amdhsa_accum_offset 256",
    "  .amdhsa_group_segment_fixed_size 0",
    "  .amdhsa_kernarg_size 104",
    "  .amdhsa_user_sgpr_count 2",
    "  .amdhsa_user_sgpr_kernarg_segment_ptr 1",
    "  .amdhsa_system_sgpr_workgroup_id_x 1",
    ".end_amdhsa_kernel",
]
open(OUT, "w").write("\n".join(head + L + tail) + "\n")
print("wrote", OUT, len(L), "lines")
```

```python
import sys

NAME = "sequential_preLN__compressed_kv_cla__glu_gated_swiglu__decode"
TS = int(sys.argv[2]) if len(sys.argv) > 2 else 0
OUT = sys.argv[1] if len(sys.argv) > 1 else f"cdna_kernels/{NAME}.s"

WS_QP = 0x00000
WS_QA = 0x10000
WS_ST = 0x20000
WS_CP = 0x28000
WS_HP = 0x38000
WS_ACT = 0x3D000
NCLR = 32
WS_OP = 0x100000
WS_TS = 0x800000
WS_SIZE = 0x10000000
SPIN_MAX = 40000

import struct
def fl(x):
    return '0x%08x' % struct.unpack('<I', struct.pack('<f', x))[0]
L = []
def e(s):
    L.append("    " + s)
def lab(s):
    L.append(s + ":")
def c(s):
    L.append("    ; " + s)

_uid = [0]
def uid(p):
    _uid[0] += 1
    return f"{p}_{_uid[0]}"

sWAVE = 3
sIDX = 4
sH = 5
sJQ = 6
sT0 = 7
P_X, P_CKV, P_WQ, P_WUK, P_WUV, P_WO, P_BX, P_W1, P_W3, P_W2, P_OUT, P_DBG, P_WS = [8 + 2 * i for i in range(13)]
sSPIN = 34
sT1 = 35
R_WS = 36
R_A = 40
R_B = 44
R_C = 48
R_DBG = 52
sT2, sT3, sT4, sT5 = 56, 57, 58, 59
sEX = 60
sB = 62
sS = 63
sCS = 64
sKQ = 65
sTSB = 70

def srd(r, p, nbytes):
    e(f"s_mov_b32 s{r}, s{p}")
    e(f"s_and_b32 s{r+1}, s{p+1}, 0xffff")
    e(f"s_mov_b32 s{r+2}, {nbytes:#x}")
    e(f"s_mov_b32 s{r+3}, 0x00020000")

_tsn = [0]
def ts(i):
    if TS:
        e(f"s_memrealtime s[{sTSB+2*i}:{sTSB+2*i+1}]")

def ts_flush(nslots):
    if not TS:
        return
    l1 = uid("L_tsf")
    e("s_waitcnt lgkmcnt(0)")
    e(f"s_cmp_lg_u32 s{sWAVE}, 0")
    e(f"s_cbranch_scc1 {l1}")
    e("v_mov_b32 v250, 0")
    for i in range(nslots):
        e(f"v_mov_b32 v251, s{sTSB+2*i}")
        e(f"s_lshl_b32 s{sT0}, s2, 6")
        e(f"s_add_u32 s{sT0}, s{sT0}, {WS_TS + 4*i:#x}")
        e(f"s_mov_b64 s[{sEX}:{sEX+1}], exec")
        e("s_mov_b64 exec, 1")
        e(f"buffer_store_dword v251, v250, s[{R_WS}:{R_WS+3}], s{sT0} offen")
        e(f"s_mov_b64 exec, s[{sEX}:{sEX+1}]")
        e("s_nop 1")
    lab(l1)

def allreduce(op, v, t):
    for pat in ("quad_perm:[1,0,3,2]", "quad_perm:[2,3,0,1]", "row_half_mirror", "row_mirror"):
        e("s_nop 1")
        e(f"v_{op}_f32_dpp v{v}, v{v}, v{v} {pat} row_mask:0xf bank_mask:0xf")
    e(f"v_mov_b32 v{t}, v{v}")
    e("s_nop 1")
    e(f"v_permlane16_swap_b32 v{t}, v{v}")
    e("s_nop 0")
    e(f"v_{op}_f32 v{v}, v{v}, v{t}")
    e(f"v_mov_b32 v{t}, v{v}")
    e("s_nop 1")
    e(f"v_permlane32_swap_b32 v{t}, v{v}")
    e("s_nop 0")
    e(f"v_{op}_f32 v{v}, v{v}, v{t}")

def umax_chain(dst, regs):
    regs = list(regs)
    e(f"v_max3_u32 v{dst}, v{regs[0]}, v{regs[1]}, v{regs[2]}")
    i = 3
    while i < len(regs):
        if i + 1 < len(regs):
            e(f"v_max3_u32 v{dst}, v{dst}, v{regs[i]}, v{regs[i+1]}")
            i += 2
        else:
            e(f"v_max_u32 v{dst}, v{dst}, v{regs[i]}")
            i += 1

def spin_init():
    e(f"s_mov_b32 s{sSPIN}, 0")

def spin_retry_if_vcc(top, done, sleep=0):
    e(f"s_cbranch_vccz {done}")
    if sleep:
        e(f"s_sleep {sleep}")
    e(f"s_add_u32 s{sSPIN}, s{sSPIN}, 1")
    e(f"s_cmp_lt_u32 s{sSPIN}, {SPIN_MAX}")
    e(f"s_cbranch_scc1 {top}")

def barrier():
    e("s_barrier")

vL = 2

hdr = open(f"cdna_kernels/{NAME}.s.ref").read().split("\n")
head = []
for line in hdr:
    if line.startswith("; @launch"):
        head.append("; @launch grid=(256,1,1) block=(512,1,1) lds=163840")
        break
    head.append(line)
head += [
    '.amdgcn_target "amdgcn-amd-amdhsa--gfx950"',
    ".text",
    f".globl {NAME}_kernel",
    ".p2align 8",
    f".type {NAME}_kernel,@function",
    f"{NAME}_kernel:",
]

e("s_cmp_ge_u32 s2, 256")
e("s_cbranch_scc1 L_end")
ts(0)
e("s_load_dwordx16 s[8:23], s[0:1], 0")
e("s_load_dwordx8 s[24:31], s[0:1], 64")
e("s_load_dwordx2 s[32:33], s[0:1], 96")
e("v_lshrrev_b32 v1, 6, v0")
e(f"v_and_b32 v{vL}, 63, v0")
e(f"v_readfirstlane_b32 s{sWAVE}, v1")
e("v_mov_b32 v3, 0")
e("s_waitcnt lgkmcnt(0)")
srd(R_WS, P_WS, WS_SIZE)
srd(R_DBG, P_DBG, 256)
e("s_cmp_ge_u32 s2, 128")
e("s_cbranch_scc1 L_arole")


LW_WQ = 0
LW_XN = 40960
LW_STG = 43520
LW_RED = 131072
LW_H = 135168
LW_STAT = 139264
sA0, sA1, sA2, sA3 = 66, 67, 68, 69

def exec_save_and(mask="vcc"):
    e(f"s_and_saveexec_b64 s[{sEX}:{sEX+1}], {mask}")
def exec_restore():
    e(f"s_mov_b64 exec, s[{sEX}:{sEX+1}]")

c("================= W role =================")
e(f"s_mov_b32 s{sIDX}, s2")
e(f"s_and_b32 s{sH}, s2, 31")
e(f"s_lshr_b32 s{sJQ}, s2, 5")
srd(R_A, P_X, 2560)
srd(R_B, P_WQ, 640 * 8192)
e(f"v_lshrrev_b32 v4, 4, v{vL}")
e(f"v_and_b32 v5, 15, v{vL}")
e(f"v_lshlrev_b32 v6, 2, v{vL}")
e(f"s_cmp_ge_u32 s{sWAVE}, 2")
e("s_cbranch_scc1 L_w_nox")
e(f"s_mul_i32 s{sT0}, s{sWAVE}, 1280")
for i in range(5):
    e(f"buffer_load_dword v{10+i}, v6, s[{R_A}:{R_A+3}], s{sT0} offen offset:{256*i}")
lab("L_w_nox")
e("v_lshlrev_b32 v7, 4, v5")
e("v_lshlrev_b32 v8, 5, v4")
e("v_xor_b32 v7, v7, v8")
e("v_lshlrev_b32 v8, 13, v4")
e("v_add_u32 v7, v7, v8")
e(f"s_mul_i32 s{sT2}, s{sJQ}, {160*8192}")
e(f"s_lshl_b32 s{sT0}, s{sH}, 8")
e(f"s_add_u32 s{sT2}, s{sT2}, s{sT0}")
e(f"s_mul_i32 s{sT3}, s{sWAVE}, 20")
for i in range(5):
    e(f"s_add_u32 s{sT4}, s{sT3}, {4*i}")
    e(f"s_lshl_b32 s{sT5}, s{sT4}, 4")
    e(f"s_and_b32 s{sT5}, s{sT5}, 128")
    e(f"v_xor_b32 v9, s{sT5}, v7")
    e(f"s_lshl_b32 m0, s{sT4}, 8")
    e(f"s_lshl_b32 s{sT4}, s{sT4}, 13")
    e(f"s_add_u32 s{sT4}, s{sT4}, s{sT2}")
    e(f"buffer_load_dwordx4 v9, s[{R_B}:{R_B+3}], s{sT4} offen nt lds")
ts(1)
e(f"s_cmp_ge_u32 s{sWAVE}, 2")
e("s_cbranch_scc1 L_w_noln")
e("s_waitcnt vmcnt(5)")
for i in range(5):
    e(f"v_lshlrev_b32 v{20+2*i}, 16, v{10+i}")
    e(f"v_and_b32 v{21+2*i}, 0xffff0000, v{10+i}")
e("v_add_f32 v30, v20, v21")
for i in range(2, 10):
    e(f"v_add_f32 v30, v30, v{20+i}")
allreduce("add", 30, 31)
e(f"v_mul_f32 v30, {fl(1.0/640.0)}, v30")
for i in range(10):
    e(f"v_sub_f32 v{20+i}, v{20+i}, v30")
e("v_mul_f32 v32, v20, v20")
for i in range(1, 10):
    e(f"v_fmac_f32 v32, v{20+i}, v{20+i}")
allreduce("add", 32, 31)
e(f"v_mov_b32 v33, {fl(1e-5)}")
e(f"v_fmac_f32 v33, {fl(1.0/640.0)}, v32")
e("v_rsq_f32 v33, v33")
e("s_nop 0")
for i in range(10):
    e(f"v_mul_f32 v{20+i}, v{20+i}, v33")
for i in range(5):
    e(f"v_cvt_pk_bf16_f32 v{10+i}, v{20+2*i}, v{21+2*i}")
e(f"s_mul_i32 s{sT0}, s{sWAVE}, 1280")
e(f"v_add_u32 v6, s{sT0}, v6")
for i in range(5):
    e(f"ds_write_b32 v6, v{10+i} offset:{LW_XN + 256*i}")
lab("L_w_noln")
e(f"v_bfe_u32 v200, v{vL}, 2, 2")
e(f"v_and_b32 v201, 3, v{vL}")
e("v_lshl_add_u32 v202, v4, 3, v200")
e("v_and_b32 v10, 1, v4")
e("v_lshl_or_b32 v10, v10, 2, v200")
e(f"v_xor_b32 v10, s{sWAVE}, v10")
e("v_lshlrev_b32 v10, 5, v10")
e("v_lshl_add_u32 v8, v202, 8, v10")
e("v_lshl_add_u32 v8, v201, 3, v8")
e(f"v_and_b32 v9, 1, v{vL}")
e("v_mul_u32_u24 v9, 1280, v9")
e("v_lshl_add_u32 v9, v4, 4, v9")
e(f"s_mul_i32 s{sT0}, s{sJQ}, 320")
e(f"v_add_u32 v9, s{sT0}, v9")
e(f"v_and_b32 v203, 1, v{vL}")
e("v_lshlrev_b32 v203, 8, v203")
e("v_lshl_add_u32 v203, v4, 3, v203")
e(f"s_lshl_b32 s{sA0}, s{sH}, 2")
e(f"s_add_u32 s{sA0}, s{sA0}, s{sJQ}")
e(f"s_lshl_b32 s{sA0}, s{sA0}, 9")
e(f"s_lshl_b32 s{sT1}, s{sWAVE}, 5")
e(f"s_add_u32 s{sA0}, s{sA0}, s{sT1}")
srd(R_A, P_WUK, 512 * 8192)
e("v_lshlrev_b32 v204, 13, v5")
e("v_lshl_add_u32 v204, v4, 4, v204")
e(f"s_lshl_b32 s{sA1}, s{sJQ}, 7")
e(f"s_lshl_b32 s{sT1}, s{sWAVE}, 4")
e(f"s_add_u32 s{sA1}, s{sA1}, s{sT1}")
e(f"s_lshl_b32 s{sA1}, s{sA1}, 13")
e(f"s_lshl_b32 s{sT1}, s{sH}, 8")
e(f"s_add_u32 s{sA1}, s{sA1}, s{sT1}")
e(f"v_bfe_u32 v11, v{vL}, 2, 1")
e("v_lshl_add_u32 v206, v201, 1, v11")
e("v_lshlrev_b32 v205, 8, v206")
e("v_lshl_add_u32 v205, v4, 4, v205")
e(f"s_lshl_b32 s{sA2}, s{sH}, 11")
e("v_lshlrev_b32 v207, 8, v4")
e("v_lshl_add_u32 v207, v5, 1, v207")
e(f"s_lshl_b32 s{sT0}, s{sWAVE}, 5")
e(f"v_add_u32 v207, s{sT0}, v207")
e(f"v_lshlrev_b32 v208, 4, v{vL}")
e("v_and_b32 v208, 511, v208")
e("v_lshlrev_b32 v209, 15, v4")
e("v_lshl_add_u32 v209, v5, 4, v209")
e(f"s_lshl_b32 s{sA3}, s{sH}, 10")
e(f"s_lshl_b32 s{sT1}, s{sJQ}, 8")
e(f"s_add_u32 s{sA3}, s{sA3}, s{sT1}")
e(f"s_add_u32 s{sA3}, s{sA3}, {WS_QA}")
e(f"s_cmp_lg_u32 s{sWAVE}, 7")
e("s_cbranch_scc1 L_w_nopoll")
spin_init()
lab("L_w_poll")
e(f"buffer_load_dword v10, v3, s[{R_DBG}:{R_DBG+3}], 0 offen sc1")
e("s_waitcnt vmcnt(0)")
e(f"v_cmp_gt_u32 vcc, {NCLR}, v10")
spin_retry_if_vcc("L_w_poll", "L_w_nopoll", 1)
lab("L_w_nopoll")
e("v_cmp_gt_u32 vcc, 2, v5")
e("s_waitcnt vmcnt(0) lgkmcnt(0)")
barrier()
ts(2)
for ks in range(5):
    e(f"ds_read_b64_tr_b16 v[{20+4*ks}:{21+4*ks}], v8 offset:{LW_WQ + ks*8192}")
    e(f"ds_read_b64_tr_b16 v[{22+4*ks}:{23+4*ks}], v8 offset:{LW_WQ + ks*8192 + 1024}")
    e(f"ds_read_b128 v[{40+4*ks}:{43+4*ks}], v9 offset:{LW_XN + ks*64}")
for ks in range(5):
    e(f"s_waitcnt lgkmcnt({3*(4-ks)})")
    cc = "0" if ks == 0 else "v[60:63]"
    e(f"v_mfma_f32_16x16x32_bf16 v[60:63], v[{20+4*ks}:{23+4*ks}], v[{40+4*ks}:{43+4*ks}], {cc}")
e("s_nop 7")
e("v_cvt_pk_bf16_f32 v64, v60, v61")
e("v_cvt_pk_bf16_f32 v65, v62, v63")
e("v_min_u32 v64, -2, v64")
e("v_min_u32 v65, -2, v65")
exec_save_and()
e(f"buffer_store_dwordx2 v[64:65], v203, s[{R_WS}:{R_WS+3}], s{sA0} offen sc1")
exec_restore()
barrier()
ts(3)
for ks in range(4):
    e(f"buffer_load_dwordx4 v[{20+4*ks}:{23+4*ks}], v204, s[{R_A}:{R_A+3}], s{sA1} offen offset:{64*ks} nt")
spin_init()
lab("L_w_h1")
for ks in range(4):
    e(f"buffer_load_dwordx4 v[{40+4*ks}:{43+4*ks}], v205, s[{R_WS}:{R_WS+3}], s{sA2} offen offset:{64*ks} sc1")
e("s_waitcnt vmcnt(0)")
umax_chain(11, range(40, 56))
e("v_cmp_eq_u32 vcc, -1, v11")
spin_retry_if_vcc("L_w_h1", "L_w_h1d", 1)
lab("L_w_h1d")
ts(4)
for ks in range(4):
    cc = "0" if ks == 0 else "v[60:63]"
    e(f"v_mfma_f32_16x16x32_bf16 v[60:63], v[{40+4*ks}:{43+4*ks}], v[{20+4*ks}:{23+4*ks}], {cc}")
SCALE = (128 ** -0.5) * 1.4426950408889634
e(f"s_mov_b32 s{sT1}, {fl(SCALE)}")
e(f"v_cmp_gt_u32 vcc, 32, v{vL}")
e("s_nop 6")
e("v_add_f32 v60, v60, v61")
e("v_add_f32 v62, v62, v63")
e("v_add_f32 v60, v60, v62")
e(f"v_mul_f32 v60, s{sT1}, v60")
e("v_cvt_pk_bf16_f32 v60, v60, v60")
exec_save_and()
e(f"ds_write_b16 v207, v60 offset:{LW_STG}")
exec_restore()
e("s_waitcnt lgkmcnt(0)")
barrier()
e(f"s_cmp_lg_u32 s{sWAVE}, 0")
e("s_cbranch_scc1 L_w_qa_done")
e(f"ds_read_b128 v[60:63], v208 offset:{LW_STG}")
e("s_waitcnt lgkmcnt(0)")
for i in range(4):
    e(f"v_min_u32 v{60+i}, -2, v{60+i}")
exec_save_and()
e(f"buffer_store_dwordx4 v[60:63], v209, s[{R_WS}:{R_WS+3}], s{sA3} offen sc1")
exec_restore()
lab("L_w_qa_done")
barrier()
ts(5)
e(f"s_cmp_ge_u32 s{sIDX}, 114")
e("s_cbranch_scc1 L_w_fin")
e(f"s_cmp_ge_u32 s{sIDX}, 94")
e("s_cbranch_scc1 L_t7")
e(f"s_cmp_ge_u32 s{sIDX}, 40")
e("s_cbranch_scc1 L_t6")
c("---- T5 ----")
e(f"s_mul_i32 s{sKQ}, s{sIDX}, 26")
e(f"s_lshr_b32 s{sKQ}, s{sKQ}, 8")
e(f"s_mul_i32 s{sT0}, s{sKQ}, 10")
e(f"s_sub_u32 s{sCS}, s{sIDX}, s{sT0}")
srd(R_B, P_WO, 4096 * 1280)
e(f"v_lshrrev_b32 v9, 3, v{vL}")
e("v_mul_u32_u24 v9, 1280, v9")
e(f"v_and_b32 v10, 7, v{vL}")
e("v_lshl_add_u32 v9, v10, 4, v9")
e(f"s_lshl_b32 s{sT0}, s{sKQ}, 10")
e(f"s_lshl_b32 s{sT1}, s{sWAVE}, 7")
e(f"s_add_u32 s{sT0}, s{sT0}, s{sT1}")
e(f"s_mul_i32 s{sT0}, s{sT0}, 1280")
e(f"s_lshl_b32 s{sT1}, s{sCS}, 7")
e(f"s_add_u32 s{sT0}, s{sT0}, s{sT1}")
e(f"s_lshl_b32 s{sT1}, s{sWAVE}, 14")
for i in range(16):
    e(f"s_add_u32 m0, s{sT1}, {1024*i}")
    e(f"s_add_u32 s{sT2}, s{sT0}, {8*1280*i}")
    e(f"buffer_load_dwordx4 v9, s[{R_B}:{R_B+3}], s{sT2} offen nt lds")
e("v_lshlrev_b32 v9, 7, v202")
e("v_lshl_add_u32 v9, v201, 3, v9")
e(f"v_add_u32 v9, s{sT1}, v9")
e("v_lshlrev_b32 v10, 13, v206")
e("v_lshl_add_u32 v10, v4, 4, v10")
e(f"s_lshl_b32 s{sA0}, s{sKQ}, 11")
e(f"s_lshl_b32 s{sT1}, s{sWAVE}, 8")
e(f"s_add_u32 s{sA0}, s{sA0}, s{sT1}")
e(f"s_add_u32 s{sA0}, s{sA0}, {WS_CP}")
e("v_lshlrev_b32 v12, 8, v4")
e("v_lshl_add_u32 v12, v5, 2, v12")
e(f"s_lshl_b32 s{sT0}, s{sWAVE}, 9")
e(f"s_add_u32 s{sT0}, s{sT0}, {LW_RED}")
e(f"v_add_u32 v12, s{sT0}, v12")
e(f"v_lshlrev_b32 v14, 2, v{vL}")
e(f"s_and_b32 s{sT0}, s{sWAVE}, 1")
e(f"s_lshl_b32 s{sT1}, s{sT0}, 8")
e(f"s_add_u32 s{sT1}, s{sT1}, {LW_RED}")
e(f"v_add_u32 v13, s{sT1}, v14")
e(f"s_lshl_b32 s{sA1}, s{sKQ}, 1")
e(f"s_add_u32 s{sA1}, s{sA1}, s{sT0}")
e(f"s_mul_i32 s{sA1}, s{sA1}, 2560")
e(f"s_lshl_b32 s{sT1}, s{sCS}, 8")
e(f"s_add_u32 s{sA1}, s{sA1}, s{sT1}")
e(f"s_add_u32 s{sA1}, s{sA1}, {WS_HP}")
e("s_waitcnt vmcnt(0)")
ts(6)
for ks in range(4):
    for ct in range(4):
        r = 100 + 16 * ks + 4 * ct
        e(f"ds_read_b64_tr_b16 v[{r}:{r+1}], v9 offset:{ks*4096 + ct*32}")
        e(f"ds_read_b64_tr_b16 v[{r+2}:{r+3}], v9 offset:{ks*4096 + ct*32 + 512}")
    e("s_waitcnt lgkmcnt(0)")
spin_init()
lab("L_w_h4")
for ks in range(4):
    e(f"buffer_load_dwordx4 v[{20+4*ks}:{23+4*ks}], v10, s[{R_WS}:{R_WS+3}], s{sA0} offen offset:{64*ks} sc1")
e("s_waitcnt vmcnt(0)")
umax_chain(11, range(20, 36))
e("v_cmp_eq_u32 vcc, -1, v11")
spin_retry_if_vcc("L_w_h4", "L_w_h4d", 2)
lab("L_w_h4d")
ts(10)
for ks in range(4):
    for ct in range(4):
        d = 60 + 4 * ct
        cc = "0" if ks == 0 else f"v[{d}:{d+3}]"
        r = 100 + 16 * ks + 4 * ct
        e(f"v_mfma_f32_16x16x32_bf16 v[{d}:{d+3}], v[{20+4*ks}:{23+4*ks}], v[{r}:{r+3}], {cc}")
e(f"v_cmp_gt_u32 vcc, 32, v{vL}")
e("s_nop 4")
for ct in range(4):
    d = 60 + 4 * ct
    e(f"v_add_f32 v{d}, v{d}, v{d+1}")
    e(f"v_add_f32 v{d+2}, v{d+2}, v{d+3}")
for ct in range(4):
    d = 60 + 4 * ct
    e(f"v_add_f32 v{d}, v{d}, v{d+2}")
exec_save_and()
for ct in range(4):
    e(f"ds_write_b32 v12, v{60+4*ct} offset:{64*ct}")
exec_restore()
e("s_waitcnt lgkmcnt(0)")
barrier()
e(f"s_cmp_ge_u32 s{sWAVE}, 2")
e("s_cbranch_scc1 L_w_fin")
for i in range(8):
    e(f"ds_read_b32 v{20+i}, v13 offset:{512*i}")
e("s_waitcnt lgkmcnt(0)")
e("v_add_f32 v20, v20, v21")
e("v_add_f32 v22, v22, v23")
e("v_add_f32 v24, v24, v25")
e("v_add_f32 v26, v26, v27")
e("v_add_f32 v20, v20, v22")
e("v_add_f32 v24, v24, v26")
e("v_add_f32 v20, v20, v24")
e("v_min_u32 v20, -2, v20")
e(f"buffer_store_dword v20, v14, s[{R_WS}:{R_WS+3}], s{sA1} offen sc1")
ts(11)
e("s_branch L_w_fin")
lab("L_t6")
c("---- T6 ----")
e(f"s_sub_u32 s{sCS}, s{sIDX}, 40")
e(f"s_and_b32 s{sT0}, s{sWAVE}, 1")
e(f"s_cmp_eq_u32 s{sT0}, 0")
e(f"s_cselect_b32 s{R_B}, s{P_W1}, s{P_W3}")
e(f"s_cselect_b32 s{R_B+1}, s{P_W1+1}, s{P_W3+1}")
e(f"s_and_b32 s{R_B+1}, s{R_B+1}, 0xffff")
e(f"s_mov_b32 s{R_B+2}, {640*3456}")
e(f"s_mov_b32 s{R_B+3}, 0x00020000")
e(f"v_lshrrev_b32 v9, 2, v{vL}")
e("v_mul_u32_u24 v9, 3456, v9")
e("v_lshl_add_u32 v9, v201, 4, v9")
e(f"s_lshr_b32 s{sKQ}, s{sWAVE}, 1")
e(f"s_mul_i32 s{sT0}, s{sKQ}, {160*3456}")
e(f"s_lshl_b32 s{sT1}, s{sCS}, 6")
e(f"s_add_u32 s{sT0}, s{sT0}, s{sT1}")
e(f"s_mul_i32 s{sT1}, s{sWAVE}, 10240")
for i in range(10):
    e(f"s_add_u32 m0, s{sT1}, {1024*i}")
    e(f"s_add_u32 s{sT2}, s{sT0}, {16*3456*i}")
    e(f"buffer_load_dwordx4 v9, s[{R_B}:{R_B+3}], s{sT2} offen nt lds")
srd(R_A, P_X, 2560)
e(f"s_lshr_b32 s{sB}, s{sWAVE}, 2")
e(f"s_and_b32 s{sS}, s{sWAVE}, 3")
e(f"v_min_u32 v12, 39, v{vL}")
e("v_lshlrev_b32 v13, 3, v12")
e(f"s_mul_i32 s{sT2}, s{sB}, 1280")
e(f"s_mul_i32 s{sT3}, s{sS}, 320")
e(f"s_add_u32 s{sT2}, s{sT2}, s{sT3}")
e(f"buffer_load_dwordx2 v[14:15], v13, s[{R_A}:{R_A+3}], s{sT2} offen")
e("v_lshlrev_b32 v16, 2, v0")
e("v_mov_b32 v17, 0x3f803f80")
e("v_cmp_gt_u32 vcc, 320, v0")
e(f"v_add_u32 v16, {LW_H + 2560}, v16")
exec_save_and()
e("ds_write_b32 v16, v17")
exec_restore()
e("v_lshlrev_b32 v9, 6, v202")
e("v_lshl_add_u32 v9, v201, 3, v9")
e(f"v_add_u32 v9, s{sT1}, v9")
e("v_lshlrev_b32 v210, 4, v12")
e(f"s_lshl_b32 s{sA0}, s{sT2}, 1")
e(f"s_add_u32 s{sA0}, s{sA0}, {WS_HP}")
for kq in range(1, 4):
    e(f"s_add_u32 s{sA0+kq}, s{sA0}, {5120*kq}")
e(f"s_add_u32 s{sT2}, s{sT2}, {LW_H}")
e(f"v_add_u32 v211, s{sT2}, v13")
e(f"s_lshl_b32 s{sT0}, s{sWAVE}, 3")
e(f"s_add_u32 s{sT0}, s{sT0}, {LW_STAT}")
e(f"v_mov_b32 v212, s{sT0}")
e("v_min_u32 v213, 2, v5")
e("v_mul_u32_u24 v213, 1280, v213")
e("v_lshl_add_u32 v213, v4, 4, v213")
e(f"s_mul_i32 s{sT0}, s{sKQ}, 320")
e(f"s_add_u32 s{sT0}, s{sT0}, {LW_H}")
e(f"v_add_u32 v213, s{sT0}, v213")
e("v_lshlrev_b32 v214, 2, v5")
e(f"s_mul_i32 s{sT0}, s{sWAVE}, 384")
e(f"s_add_u32 s{sT0}, s{sT0}, {LW_RED}")
e(f"v_add_u32 v214, s{sT0}, v214")
e(f"v_lshrrev_b32 v16, 5, v{vL}")
e(f"v_and_b32 v17, 31, v{vL}")
e("v_lshlrev_b32 v215, 7, v16")
e("v_lshl_add_u32 v215, v17, 2, v215")
e(f"v_add_u32 v215, {LW_RED}, v215")
e("v_lshlrev_b32 v216, 2, v17")
e(f"v_add_u32 v216, {LW_RED + 256}, v216")
e("v_lshlrev_b32 v217, 5, v16")
e(f"v_add_u32 v217, {LW_STAT}, v217")
e("v_mul_u32_u24 v218, 3456, v16")
e("v_lshl_add_u32 v218, v17, 1, v218")
e(f"s_lshl_b32 s{sCS}, s{sCS}, 6")
e(f"s_add_u32 s{sCS}, s{sCS}, {WS_ACT}")
e("s_waitcnt vmcnt(0)")
ts(6)
for ks in range(5):
    for ct in range(2):
        r = 100 + 8 * ks + 4 * ct
        e(f"ds_read_b64_tr_b16 v[{r}:{r+1}], v9 offset:{ks*2048 + ct*32}")
        e(f"ds_read_b64_tr_b16 v[{r+2}:{r+3}], v9 offset:{ks*2048 + ct*32 + 256}")
    e("s_waitcnt lgkmcnt(4)")
e("v_lshlrev_b32 v40, 16, v14")
e("v_and_b32 v41, 0xffff0000, v14")
e("v_lshlrev_b32 v42, 16, v15")
e("v_and_b32 v43, 0xffff0000, v15")
e("s_waitcnt lgkmcnt(0)")
spin_init()
lab("L_w_h5")
for kq in range(4):
    e(f"buffer_load_dwordx4 v[{20+4*kq}:{23+4*kq}], v210, s[{R_WS}:{R_WS+3}], s{sA0+kq} offen sc1")
e("s_waitcnt vmcnt(0)")
umax_chain(11, range(20, 36))
e("v_cmp_eq_u32 vcc, -1, v11")
spin_retry_if_vcc("L_w_h5", "L_w_h5d", 2)
lab("L_w_h5d")
ts(10)
for j in range(4):
    e(f"v_add_f32 v{20+j}, v{20+j}, v{24+j}")
    e(f"v_add_f32 v{28+j}, v{28+j}, v{32+j}")
for j in range(4):
    e(f"v_add_f32 v{40+j}, v{40+j}, v{20+j}")
for j in range(4):
    e(f"v_add_f32 v{40+j}, v{40+j}, v{28+j}")
e("v_cvt_pk_bf16_f32 v44, v40, v41")
e("v_cvt_pk_bf16_f32 v45, v42, v43")
e("ds_write_b64 v211, v[44:45]")
e("v_lshlrev_b32 v40, 16, v44")
e("v_and_b32 v41, 0xffff0000, v44")
e("v_lshlrev_b32 v42, 16, v45")
e("v_and_b32 v43, 0xffff0000, v45")
e(f"v_cmp_gt_u32 vcc, 40, v{vL}")
e("v_add_f32 v46, v40, v41")
e("v_add_f32 v47, v42, v43")
e("v_add_f32 v46, v46, v47")
e("v_cndmask_b32 v46, 0, v46, vcc")
e("s_waitcnt lgkmcnt(0)")
barrier()
for ks in range(5):
    e(f"ds_read_b128 v[{20+4*ks}:{23+4*ks}], v213 offset:{64*ks}")
allreduce("add", 46, 47)
e(f"v_mul_f32 v46, {fl(1.0/160.0)}, v46")
for ks in range(5):
    e(f"s_waitcnt lgkmcnt({4-ks})")
    for ct in range(2):
        d = 60 + 4 * ct
        cc = "0" if ks == 0 else f"v[{d}:{d+3}]"
        r = 100 + 8 * ks + 4 * ct
        e(f"v_mfma_f32_16x16x32_bf16 v[{d}:{d+3}], v[{20+4*ks}:{23+4*ks}], v[{r}:{r+3}], {cc}")
for j in range(4):
    e(f"v_sub_f32 v{40+j}, v{40+j}, v46")
e("v_mul_f32 v48, v40, v40")
for j in range(1, 4):
    e(f"v_fmac_f32 v48, v{40+j}, v{40+j}")
e("v_cndmask_b32 v48, 0, v48, vcc")
allreduce("add", 48, 47)
e("v_mov_b32 v47, v48")
e("ds_write_b64 v212, v[46:47]")
e(f"v_cmp_gt_u32 vcc, 16, v{vL}")
exec_save_and()
for ct in range(2):
    for r in range(3):
        e(f"ds_write_b32 v214, v{60+4*ct+r} offset:{128*r + 64*ct}")
exec_restore()
e("s_waitcnt lgkmcnt(0)")
barrier()
e(f"s_cmp_lg_u32 s{sWAVE}, 0")
e("s_cbranch_scc1 L_w_fin")
e("ds_read_b128 v[40:43], v217")
e("ds_read_b128 v[44:47], v217 offset:16")
for w in range(8):
    e(f"ds_read_b32 v{20+w}, v215 offset:{384*w}")
e("s_waitcnt lgkmcnt(8)")
for w in range(8):
    e(f"ds_read_b32 v{28+w}, v216 offset:{384*w}")
e("v_add_f32 v48, v40, v42")
e("v_add_f32 v49, v44, v46")
e("v_add_f32 v50, v41, v43")
e("v_add_f32 v51, v45, v47")
e("v_add_f32 v48, v48, v49")
e("v_add_f32 v49, v50, v51")
e("v_mul_f32 v48, 0.25, v48")
e("v_sub_f32 v40, v40, v48")
e("v_sub_f32 v42, v42, v48")
e("v_sub_f32 v44, v44, v48")
e("v_sub_f32 v46, v46, v48")
e("v_mul_f32 v50, v40, v40")
e("v_mul_f32 v51, v42, v42")
e("v_fmac_f32 v50, v44, v44")
e("v_fmac_f32 v51, v46, v46")
e("v_add_f32 v50, v50, v51")
e("v_fmac_f32 v49, 0x43200000, v50")
e(f"v_mov_b32 v51, {fl(1e-5)}")
e(f"v_fmac_f32 v51, {fl(1.0/640.0)}, v49")
e("v_rsq_f32 v51, v51")
e("s_waitcnt lgkmcnt(8)")
e("v_add_f32 v20, v20, v22")
e("v_add_f32 v24, v24, v26")
e("v_add_f32 v21, v21, v23")
e("v_add_f32 v25, v25, v27")
e("v_add_f32 v20, v20, v24")
e("v_add_f32 v21, v21, v25")
e("s_waitcnt lgkmcnt(0)")
e("v_add_f32 v28, v28, v30")
e("v_add_f32 v32, v32, v34")
e("v_add_f32 v29, v29, v31")
e("v_add_f32 v33, v33, v35")
e("v_add_f32 v28, v28, v32")
e("v_add_f32 v29, v29, v33")
e("v_fma_f32 v20, -v48, v28, v20")
e("v_fma_f32 v21, -v48, v29, v21")
e("v_mul_f32 v20, v20, v51")
e("v_mul_f32 v21, v21, v51")
e("v_mul_f32 v22, 0xbfb8aa3b, v20")
e("v_exp_f32 v22, v22")
e("v_mul_f32 v20, v20, v21")
e("v_add_f32 v22, 1.0, v22")
e("v_rcp_f32 v22, v22")
e("s_nop 0")
e("v_mul_f32 v20, v20, v22")
e("s_nop 1")
e("v_mov_b32_dpp v21, v20 quad_perm:[1,1,3,3] row_mask:0xf bank_mask:0xf")
e("s_nop 0")
e("v_cvt_pk_bf16_f32 v20, v20, v21")
e("v_min_u32 v20, -2, v20")
e(f"s_mov_b64 s[{sEX}:{sEX+1}], exec")
e("s_mov_b32 exec_lo, 0x55555555")
e("s_mov_b32 exec_hi, 0x55555555")
e(f"buffer_store_dword v20, v218, s[{R_WS}:{R_WS+3}], s{sCS} offen sc1")
exec_restore()
ts(11)
e("s_branch L_w_fin")
lab("L_t7")
c("---- T7 ----")
e(f"s_sub_u32 s{sCS}, s{sIDX}, 94")
srd(R_B, P_W2, 1728 * 1280)
e(f"v_lshrrev_b32 v9, 2, v{vL}")
e("v_mul_u32_u24 v9, 1280, v9")
e("v_lshl_add_u32 v9, v201, 4, v9")
e(f"s_mul_i32 s{sT0}, s{sWAVE}, {32*1280}")
e(f"s_lshl_b32 s{sT1}, s{sCS}, 6")
e(f"s_add_u32 s{sT0}, s{sT0}, s{sT1}")
e(f"s_lshl_b32 s{sT1}, s{sWAVE}, 11")
for i in range(7):
    for j in range(2):
        e(f"s_add_u32 m0, s{sT1}, {16384*i + 1024*j}")
        e(f"s_add_u32 s{sT2}, s{sT0}, {(8*32*i + 16*j)*1280}")
        e(f"buffer_load_dwordx4 v9, s[{R_B}:{R_B+3}], s{sT2} offen nt lds")
srd(R_A, P_X, 2560)
srd(R_C, P_OUT, 2560)
e(f"v_lshrrev_b32 v16, 5, v{vL}")
e(f"v_and_b32 v17, 31, v{vL}")
e("v_mul_u32_u24 v210, 2560, v16")
e("v_lshl_add_u32 v210, v17, 2, v210")
e("v_mul_u32_u24 v211, 1280, v16")
e("v_lshl_add_u32 v211, v17, 1, v211")
e(f"s_lshl_b32 s{sKQ}, s{sCS}, 6")
e(f"buffer_load_ushort v70, v211, s[{R_A}:{R_A+3}], s{sKQ} offen")
e(f"s_lshl_b32 s{sA0}, s{sCS}, 7")
e(f"s_add_u32 s{sA0}, s{sA0}, {WS_HP}")
for kq in range(1, 4):
    e(f"s_add_u32 s{sA0+kq}, s{sA0}, {5120*kq}")
e("v_lshlrev_b32 v9, 6, v202")
e("v_lshl_add_u32 v9, v201, 3, v9")
e(f"v_add_u32 v9, s{sT1}, v9")
e("v_add_u32 v10, 0x10000, v9")
e(f"v_and_b32 v212, 1, v{vL}")
e("v_mul_u32_u24 v212, 3456, v212")
e("v_lshl_add_u32 v212, v4, 4, v212")
e(f"s_lshl_b32 s{sB}, s{sWAVE}, 6")
e(f"s_add_u32 s{sB}, s{sB}, {WS_ACT}")
e("v_lshlrev_b32 v213, 2, v5")
e(f"s_lshl_b32 s{sT0}, s{sWAVE}, 8")
e(f"s_add_u32 s{sT0}, s{sT0}, {LW_RED}")
e(f"v_add_u32 v213, s{sT0}, v213")
e(f"v_lshlrev_b32 v214, 2, v{vL}")
e(f"v_add_u32 v214, {LW_RED}, v214")
for j in range(4):
    e(f"v_mov_b32 v{44+j}, 0")
e("s_waitcnt vmcnt(0)")
ts(6)
for i in range(7):
    a = "v9" if i < 4 else "v10"
    off = (i & 3) * 16384
    for ct in range(2):
        r = 100 + 8 * i + 4 * ct
        e(f"ds_read_b64_tr_b16 v[{r}:{r+1}], {a} offset:{off + ct*32}")
        e(f"ds_read_b64_tr_b16 v[{r+2}:{r+3}], {a} offset:{off + ct*32 + 256}")
    e("s_waitcnt lgkmcnt(4)")
e("s_waitcnt lgkmcnt(0)")
e(f"s_cmp_lg_u32 s{sWAVE}, 0")
e("s_cbranch_scc1 L_w_s7_noh")
spin_init()
lab("L_w_h5b")
for kq in range(4):
    e(f"buffer_load_dword v{72+kq}, v210, s[{R_WS}:{R_WS+3}], s{sA0+kq} offen sc1")
e("s_waitcnt vmcnt(0)")
umax_chain(11, range(72, 76))
e("v_cmp_eq_u32 vcc, -1, v11")
spin_retry_if_vcc("L_w_h5b", "L_w_h5bd", 2)
lab("L_w_h5bd")
e("v_lshlrev_b32 v70, 16, v70")
e("v_add_f32 v72, v72, v73")
e("v_add_f32 v74, v74, v75")
e("v_add_f32 v70, v70, v72")
e("v_add_f32 v70, v70, v74")
e("v_cvt_pk_bf16_f32 v70, v70, v70")
e("v_and_b32 v70, 0xffff0000, v70")
lab("L_w_s7_noh")
spin_init()
lab("L_w_h6")
for i in range(6):
    e(f"buffer_load_dwordx4 v[{20+4*i}:{23+4*i}], v212, s[{R_WS}:{R_WS+3}], s{sB} offen offset:{512*i} sc1")
e(f"s_cmp_ge_u32 s{sWAVE}, 6")
e("s_cbranch_scc1 L_w_h6_skip")
e(f"buffer_load_dwordx4 v[44:47], v212, s[{R_WS}:{R_WS+3}], s{sB} offen offset:{512*6} sc1")
lab("L_w_h6_skip")
e("s_waitcnt vmcnt(0)")
umax_chain(11, range(20, 48))
e("v_cmp_eq_u32 vcc, -1, v11")
spin_retry_if_vcc("L_w_h6", "L_w_h6d", 2)
lab("L_w_h6d")
ts(10)
for i in range(7):
    for ct in range(2):
        d = 60 + 4 * ct
        cc = "0" if i == 0 else f"v[{d}:{d+3}]"
        r = 100 + 8 * i + 4 * ct
        e(f"v_mfma_f32_16x16x32_bf16 v[{d}:{d+3}], v[{20+4*i}:{23+4*i}], v[{r}:{r+3}], {cc}")
e(f"v_cmp_gt_u32 vcc, 16, v{vL}")
e("s_nop 6")
exec_save_and()
e("ds_write_b32 v213, v60")
e("ds_write_b32 v213, v61 offset:128")
e("ds_write_b32 v213, v64 offset:64")
e("ds_write_b32 v213, v65 offset:192")
exec_restore()
e("s_waitcnt lgkmcnt(0)")
barrier()
e(f"s_cmp_lg_u32 s{sWAVE}, 0")
e("s_cbranch_scc1 L_w_fin")
for i in range(8):
    e(f"ds_read_b32 v{20+i}, v214 offset:{256*i}")
e("s_waitcnt lgkmcnt(0)")
e("v_add_f32 v20, v20, v21")
e("v_add_f32 v22, v22, v23")
e("v_add_f32 v24, v24, v25")
e("v_add_f32 v26, v26, v27")
e("v_add_f32 v20, v20, v22")
e("v_add_f32 v24, v24, v26")
e("v_add_f32 v20, v20, v70")
e("v_add_f32 v20, v20, v24")
e("v_cvt_pk_bf16_f32 v20, v20, v20")
e(f"buffer_store_short v20, v211, s[{R_C}:{R_C+3}], s{sKQ} offen")
ts(11)
lab("L_w_fin")
ts_flush(12)
e("s_endpgm")

LA_C = 0
LA_Q = 131072
LA_P = LA_Q
LA_MX = LA_Q + 8192
LA_LS = LA_Q + 8704
LA_O = 0
LA_WUV = 32768
LA_CX = 65536
LA_CF = 73728
LA_STG = 74752

lab("L_arole")
c("================= A role =================")
e(f"s_sub_u32 s{sIDX}, s2, 128")
e(f"s_lshr_b32 s{sB}, s{sIDX}, 6")
e(f"s_and_b32 s{sS}, s{sIDX}, 63")
e(f"s_and_b32 s{sH}, s{sIDX}, 31")
e(f"s_lshr_b32 s{sJQ}, s{sIDX}, 5")
srd(R_A, P_CKV, 2 * 8192 * 1024)
e(f"v_lshrrev_b32 v4, 4, v{vL}")
e(f"v_and_b32 v5, 15, v{vL}")
e(f"v_lshlrev_b32 v6, 4, v{vL}")
e(f"s_cmp_ge_u32 s{sIDX}, {NCLR}")
e("s_cbranch_scc1 L_a_noclr")
e(f"s_cmp_lg_u32 s{sWAVE}, 0")
e("s_cbranch_scc1 L_a_noclr")
for j in range(4):
    e(f"v_mov_b32 v{8+j}, -1")
e(f"s_lshl_b32 s{sT0}, s{sIDX}, 13")
e(f"s_add_u32 s{sT1}, s{sT0}, 4096")
for j in range(4):
    e(f"buffer_store_dwordx4 v[8:11], v6, s[{R_WS}:{R_WS+3}], s{sT0} offen offset:{1024*j} sc1")
for j in range(4):
    e(f"buffer_store_dwordx4 v[8:11], v6, s[{R_WS}:{R_WS+3}], s{sT1} offen offset:{1024*j} sc1")
e("s_waitcnt vmcnt(0)")
e(f"s_mov_b32 s{sT0}, 1")
e(f"s_atomic_add s{sT0}, s[{P_DBG}:{P_DBG+1}], 0")
lab("L_a_noclr")
e(f"s_lshl_b32 s{sT0}, s{sIDX}, 7")
e(f"s_lshl_b32 s{sT1}, s{sWAVE}, 4")
e(f"s_add_u32 s{sT0}, s{sT0}, s{sT1}")
e(f"s_lshl_b32 s{sT0}, s{sT0}, 10")
e(f"s_lshl_b32 s{sT1}, s{sWAVE}, 14")
def gsw(i):
    return ((i & 3) << 2) | ((i >> 2) & 3)
for i in range(16):
    e(f"v_xor_b32 v7, {gsw(i) << 4}, v6")
    e(f"s_add_u32 m0, s{sT1}, {1024*i + LA_C}")
    e(f"s_add_u32 s{sT2}, s{sT0}, {1024*i}")
    e(f"buffer_load_dwordx4 v7, s[{R_A}:{R_A+3}], s{sT2} offen nt lds")
ts(1)
e("v_lshlrev_b32 v240, 4, v0")
e(f"s_lshl_b32 s{sA0}, s{sB}, 15")
e(f"s_add_u32 s{sA0}, s{sA0}, {WS_QA}")
for i in range(1, 4):
    e(f"s_add_u32 s{sA0+i}, s{sA0}, {8192*i}")
def qa_gather():
    e(f"buffer_load_dword v7, v3, s[{R_DBG}:{R_DBG+3}], 0 offen sc1")
    for i in range(4):
        e(f"buffer_load_dwordx4 v[{20+4*i}:{23+4*i}], v240, s[{R_WS}:{R_WS+3}], s{sA0+i} offen sc1")
qa_gather()
e("v_and_b32 v8, 3, v5")
e("v_lshrrev_b32 v9, 2, v5")
e("v_lshl_or_b32 v8, v8, 2, v9")
e(f"v_lshrrev_b32 v9, 5, v{vL}")
e(f"v_and_b32 v17, 31, v{vL}")
e("v_lshlrev_b32 v10, 10, v17")
e(f"s_and_b32 s{sT0}, s{sWAVE}, 3")
e(f"s_lshl_b32 s{sT0}, s{sT0}, 15")
for kk in range(8):
    e(f"v_add_u32 v11, {2*kk}, v9")
    e("v_xor_b32 v11, v11, v8")
    e("v_lshl_add_u32 v11, v11, 4, v10")
    e(f"v_add_u32 v{200+kk}, s{sT0}, v11")
    e(f"v_add_u32 v{208+kk}, {LA_Q}, v11")
e(f"v_bfe_u32 v11, v{vL}, 2, 2")
e("v_lshrrev_b32 v12, 1, v4")
e("v_lshl_or_b32 v13, v11, 2, v12")
e("v_lshl_add_u32 v14, v12, 2, v11")
e("v_lshlrev_b32 v14, 10, v14")
e(f"s_lshr_b32 s{sT0}, s{sWAVE}, 1")
e(f"s_lshl_b32 s{sT0}, s{sT0}, 8")
e(f"v_add_u32 v14, s{sT0}, v14")
e(f"v_and_b32 v15, 1, v{vL}")
e("v_lshl_add_u32 v14, v15, 3, v14")
e("v_and_b32 v15, 1, v4")
e("v_lshlrev_b32 v15, 1, v15")
e(f"v_bfe_u32 v16, v{vL}, 1, 1")
e("v_or_b32 v15, v15, v16")
e(f"s_and_b32 s{sT0}, s{sWAVE}, 1")
e(f"s_lshl_b32 s{sT0}, s{sT0}, 3")
e(f"v_or_b32 v15, s{sT0}, v15")
e("v_xor_b32 v15, v15, v13")
for ct in range(2):
    for rd in range(2):
        x = (4 * ct) ^ (2 * rd)
        r = 216 + 4 * ct + 2 * rd
        e(f"v_xor_b32 v16, {x}, v15")
        e(f"v_lshl_add_u32 v{r}, v16, 4, v14")
        if rd:
            e(f"v_add_u32 v{r}, 8192, v{r}")
        e(f"v_add_u32 v{r+1}, 0x10000, v{r}")
e(f"s_and_b32 s{sT0}, s{sWAVE}, 3")
e(f"s_lshl_b32 s{sT0}, s{sT0}, 2")
e(f"s_lshr_b32 s{sT1}, s{sWAVE}, 2")
e(f"s_or_b32 s{sT0}, s{sT0}, s{sT1}")
e(f"v_xor_b32 v241, s{sT0}, v{vL}")
e("v_lshlrev_b32 v241, 4, v241")
e(f"s_lshl_b32 s{sT1}, s{sWAVE}, 10")
e(f"s_add_u32 s{sT1}, s{sT1}, {LA_Q}")
e(f"v_add_u32 v241, s{sT1}, v241")
e("v_xor_b32 v242, 32, v241")
e("v_lshlrev_b32 v243, 4, v17")
e(f"v_add_u32 v243, {LA_MX}, v243")
e(f"s_and_b32 s{sT0}, s{sWAVE}, 3")
e(f"s_lshl_b32 s{sT1}, s{sT0}, 2")
e(f"v_add_u32 v244, s{sT1}, v243")
e(f"v_add_u32 v246, {LA_P}, v6")
e(f"s_lshl_b32 s{sT1}, s{sT0}, 11")
e(f"v_add_u32 v245, s{sT1}, v246")
e("v_lshl_add_u32 v12, v9, 3, v10")
e(f"s_lshl_b32 s{sT0}, s{sWAVE}, 3")
e(f"v_xor_b32 v13, s{sT0}, v5")
for j in range(8):
    e(f"v_xor_b32 v14, {j}, v13")
    e(f"v_lshl_add_u32 v{160+j}, v14, 4, v12")
e(f"s_lshl_b32 s{sT0}, s{sWAVE}, 2")
for i in range(4):
    e(f"s_add_u32 s{sT2}, s{sT0}, {i}")
    e(f"s_and_b32 s{sT3}, s{sT2}, 15")
    e(f"v_xor_b32 v14, s{sT3}, v{vL}")
    e("v_lshlrev_b32 v14, 4, v14")
    e(f"s_lshl_b32 s{sT2}, s{sT2}, 10")
    e(f"v_add_u32 v{168+i}, s{sT2}, v14")
e("v_lshlrev_b32 v172, 14, v4")
e("v_lshl_add_u32 v172, v5, 4, v172")
e(f"s_lshl_b32 s{sCS}, s{sB}, 5")
e(f"s_add_u32 s{sCS}, s{sCS}, s{sT0}")
e(f"s_lshl_b32 s{sCS}, s{sCS}, 16")
e(f"s_lshl_b32 s{sT2}, s{sS}, 8")
e(f"s_add_u32 s{sCS}, s{sCS}, s{sT2}")
e(f"s_add_u32 s{sCS}, s{sCS}, {WS_OP}")
e("v_lshlrev_b32 v173, 3, v17")
e(f"s_lshl_b32 s{sKQ}, s{sIDX}, 8")
e(f"s_add_u32 s{sKQ}, s{sKQ}, {WS_ST}")
srd(R_B, P_WUV, 512 * 8192)
e("v_lshlrev_b32 v174, 4, v5")
e("v_lshlrev_b32 v14, 5, v4")
e("v_xor_b32 v174, v174, v14")
e("v_lshl_add_u32 v174, v4, 13, v174")
e("v_xor_b32 v175, 128, v174")
e(f"s_lshl_b32 s{sT0}, s{sWAVE}, 12")
e(f"s_add_u32 s{sT0}, s{sT0}, {LA_WUV}")
e(f"v_add_u32 v176, s{sT0}, v6")
e("v_and_b32 v14, 1, v4")
e("v_lshl_or_b32 v14, v14, 2, v11")
e(f"v_xor_b32 v14, s{sWAVE}, v14")
e("v_lshlrev_b32 v14, 5, v14")
e("v_lshl_add_u32 v177, v4, 3, v11")
e("v_lshl_add_u32 v177, v177, 8, v14")
e(f"v_and_b32 v14, 3, v{vL}")
e("v_lshl_add_u32 v177, v14, 3, v177")
e(f"v_add_u32 v177, {LA_WUV}, v177")
e(f"v_lshlrev_b32 v178, 8, v{vL}")
e("v_lshlrev_b32 v179, 8, v4")
e("v_lshl_add_u32 v179, v5, 4, v179")
e(f"v_and_b32 v14, 3, v{vL}")
e("v_lshl_add_u32 v14, v4, 2, v14")
e("v_lshl_add_u32 v14, v14, 2, v11")
e("v_lshlrev_b32 v180, 2, v14")
e(f"s_lshr_b32 s{sT0}, s{sWAVE}, 2")
e(f"s_lshl_b32 s{sT0}, s{sT0}, 8")
e(f"s_add_u32 s{sT0}, s{sT0}, {LA_CF}")
e(f"v_add_u32 v180, s{sT0}, v180")
e(f"s_and_b32 s{sT1}, s{sWAVE}, 3")
e(f"s_lshl_b32 s{sT1}, s{sT1}, 6")
e(f"s_add_u32 s{sT0}, s{sT0}, s{sT1}")
e("v_lshlrev_b32 v181, 4, v4")
e(f"v_add_u32 v181, s{sT0}, v181")
e(f"s_lshl_b32 s{sT0}, s{sWAVE}, 2")
e(f"v_add_u32 v14, s{sT0}, v4")
e("v_and_b32 v15, 15, v14")
e("v_xor_b32 v15, v15, v5")
e("v_lshlrev_b32 v15, 4, v15")
e("v_lshl_add_u32 v182, v14, 8, v15")
e(f"v_add_u32 v182, {LA_CX}, v182")
e("v_lshlrev_b32 v14, 8, v5")
e(f"v_add_u32 v14, {LA_CX}, v14")
for ks in range(4):
    e(f"v_add_u32 v15, {4*ks}, v4")
    e("v_xor_b32 v15, v15, v5")
    e(f"v_lshl_add_u32 v{184+ks}, v15, 4, v14")
e("v_lshlrev_b32 v188, 8, v9")
e("v_lshl_add_u32 v188, v5, 1, v188")
e(f"s_lshl_b32 s{sT0}, s{sWAVE}, 5")
e(f"s_add_u32 s{sT0}, s{sT0}, {LA_STG}")
e(f"v_add_u32 v188, s{sT0}, v188")
e("v_and_b32 v189, 511, v6")
e(f"v_add_u32 v189, {LA_STG}, v189")
e("v_lshlrev_b32 v190, 13, v4")
e("v_lshl_add_u32 v190, v5, 4, v190")
spin_init()
lab("L_a_h2")
e("s_waitcnt vmcnt(0)")
umax_chain(11, range(20, 36))
e("v_cmp_eq_u32 vcc, -1, v11")
e(f"v_cmp_gt_u32 s[{sEX}:{sEX+1}], {NCLR}, v7")
e("s_nop 1")
e(f"s_or_b64 s[{sEX}:{sEX+1}], vcc, s[{sEX}:{sEX+1}]")
e("s_cbranch_scc0 L_a_h2d")
e("s_sleep 6")
e(f"s_add_u32 s{sSPIN}, s{sSPIN}, 1")
e(f"s_cmp_ge_u32 s{sSPIN}, {SPIN_MAX}")
e("s_cbranch_scc1 L_a_h2d")
qa_gather()
e("s_branch L_a_h2")
lab("L_a_h2d")
ts(2)
for i in range(4):
    a = "v241" if (i & 1) == 0 else "v242"
    e(f"ds_write_b128 {a}, v[{20+4*i}:{23+4*i}] offset:{8192*i}")
e(f"s_lshl_b32 s{sT0}, s{sJQ}, 7")
e(f"s_lshl_b32 s{sT1}, s{sWAVE}, 4")
e(f"s_add_u32 s{sT0}, s{sT0}, s{sT1}")
e(f"s_lshl_b32 s{sT0}, s{sT0}, 13")
e(f"s_lshl_b32 s{sT1}, s{sH}, 8")
e(f"s_add_u32 s{sT0}, s{sT0}, s{sT1}")
for i in range(4):
    a = "v174" if (i >> 1) == 0 else "v175"
    if i:
        e(f"s_add_u32 s{sT0}, s{sT0}, {4*8192}")
    e(f"buffer_load_dwordx4 v[{224+4*i}:{227+4*i}], {a}, s[{R_B}:{R_B+3}], s{sT0} offen nt")
e("s_waitcnt lgkmcnt(0)")
barrier()
ts(3)
e(f"s_cmp_ge_u32 s{sWAVE}, 4")
e("s_cbranch_scc1 L_a_s_done")
DEPTH = 6
def s_read(ks):
    slot = ks % 8
    j, kk = ks >> 3, ks & 7
    e(f"ds_read_b128 v[{20+8*slot}:{23+8*slot}], v{200+kk} offset:{256*j}")
    e(f"ds_read_b128 v[{24+8*slot}:{27+8*slot}], v{208+kk} offset:{256*j}")
for ks in range(DEPTH):
    s_read(ks)
for ks in range(32):
    outstanding = min(DEPTH, 32 - ks)
    e(f"s_waitcnt lgkmcnt({2*(outstanding-1)})")
    slot = ks % 8
    cc = "0" if ks == 0 else "v[100:115]"
    e(f"v_mfma_f32_32x32x16_bf16 v[100:115], v[{20+8*slot}:{23+8*slot}], v[{24+8*slot}:{27+8*slot}], {cc}")
    if ks + DEPTH < 32:
        s_read(ks + DEPTH)
lab("L_a_s_done")
barrier()
ts(4)
e(f"s_cmp_ge_u32 s{sWAVE}, 4")
e("s_cbranch_scc1 L_a_mx_done")
e("s_nop 9")
e("v_max3_f32 v20, v100, v101, v102")
e("v_max3_f32 v21, v103, v104, v105")
e("v_max3_f32 v22, v106, v107, v108")
e("v_max3_f32 v23, v109, v110, v111")
e("v_max3_f32 v24, v112, v113, v114")
e("v_max3_f32 v20, v20, v21, v115")
e("v_max3_f32 v22, v22, v23, v24")
e("v_max_f32 v20, v20, v22")
e("v_mov_b32 v21, v20")
e("s_nop 1")
e("v_permlane32_swap_b32 v21, v20")
e("s_nop 0")
e("v_max_f32 v20, v20, v21")
e("ds_write_b32 v244, v20")
e("s_waitcnt lgkmcnt(0)")
lab("L_a_mx_done")
barrier()
e(f"s_cmp_ge_u32 s{sWAVE}, 4")
e("s_cbranch_scc1 L_a_p_done")
e("ds_read_b128 v[24:27], v243")
e("s_waitcnt lgkmcnt(0)")
e("v_max3_f32 v247, v24, v25, v26")
e("v_max_f32 v247, v247, v27")
for i in range(16):
    e(f"v_sub_f32 v{100+i}, v{100+i}, v247")
    if i >= 1:
        e(f"v_exp_f32 v{100+i-1}, v{100+i-1}")
e("v_exp_f32 v115, v115")
for i in range(4):
    e(f"v_cvt_pk_bf16_f32 v{28+i}, v{100+2*i}, v{101+2*i}")
e("ds_write_b128 v245, v[28:31]")
for i in range(4, 8):
    e(f"v_cvt_pk_bf16_f32 v{28+i}, v{100+2*i}, v{101+2*i}")
e("ds_write_b128 v245, v[32:35] offset:1024")
e("s_waitcnt lgkmcnt(0)")
lab("L_a_p_done")
barrier()
ts(5)
def pv_read(kk):
    base = 64 + 8 * (kk % 4)
    hi = kk >> 2
    off = (kk & 3) * 16384
    e(f"ds_read_b128 v[{32+4*kk}:{35+4*kk}], v246 offset:{1024*kk}")
    for ct in range(2):
        for rd in range(2):
            r = base + 4 * ct + 2 * rd
            e(f"ds_read_b64_tr_b16 v[{r}:{r+1}], v{216+4*ct+2*rd+hi} offset:{off}")
PD = 3
for kk in range(PD):
    pv_read(kk)
for i in range(8):
    e(f"v_add_f32 v{20+i}, v{100+2*i}, v{101+2*i}")
for i in range(4):
    e(f"v_add_f32 v{20+i}, v{20+2*i}, v{21+2*i}")
e("v_add_f32 v20, v20, v21")
e("v_add_f32 v22, v22, v23")
e("v_add_f32 v20, v20, v22")
e("v_mov_b32 v21, v20")
e("s_nop 1")
e("v_permlane32_swap_b32 v21, v20")
e("s_nop 0")
e("v_add_f32 v248, v20, v21")
for kk in range(8):
    outstanding = min(PD, 8 - kk)
    e(f"s_waitcnt lgkmcnt({5*(outstanding-1)})")
    base = 64 + 8 * (kk % 4)
    for ct in range(2):
        d = 100 + 16 * ct
        cc = "0" if kk == 0 else f"v[{d}:{d+15}]"
        e(f"v_mfma_f32_32x32x16_bf16 v[{d}:{d+15}], v[{base+4*ct}:{base+4*ct+3}], v[{32+4*kk}:{35+4*kk}], {cc}")
    if kk + PD < 8:
        pv_read(kk + PD)
e(f"s_cmp_ge_u32 s{sWAVE}, 4")
e("s_cbranch_scc1 L_a_ls_done")
e(f"ds_write_b32 v244, v248 offset:{LA_LS - LA_MX}")
lab("L_a_ls_done")
barrier()
ts(6)
e("s_nop 7")
for ct in range(2):
    for i4 in range(4):
        d = 100 + 16 * ct + 4 * i4
        t = 20 + 2 * (4 * ct + i4)
        e(f"v_cvt_pk_bf16_f32 v{t}, v{d}, v{d+1}")
        e(f"v_cvt_pk_bf16_f32 v{t+1}, v{d+2}, v{d+3}")
        e(f"ds_write_b64 v{160+4*ct+i4}, v[{t}:{t+1}] offset:{LA_O}")
e("s_waitcnt lgkmcnt(0)")
barrier()
for i in range(4):
    e(f"ds_read_b128 v[{40+4*i}:{43+4*i}], v{168+i} offset:{LA_O}")
e(f"ds_read_b128 v[24:27], v243 offset:{LA_LS - LA_MX}")
for i in range(4):
    e(f"s_waitcnt lgkmcnt({4-i})")
    if i:
        e(f"s_add_u32 s{sCS}, s{sCS}, 65536")
    e(f"buffer_store_dwordx4 v[{40+4*i}:{43+4*i}], v172, s[{R_WS}:{R_WS+3}], s{sCS} offen sc1")
ts(7)
e("s_waitcnt vmcnt(4)")
for i in range(4):
    e(f"ds_write_b128 v176, v[{224+4*i}:{227+4*i}] offset:{1024*i}")
e("v_add_f32 v24, v24, v25")
e("v_add_f32 v26, v26, v27")
e("v_add_f32 v25, v24, v26")
e("v_min_u32 v24, -2, v247")
e("v_min_u32 v25, -2, v25")
e(f"v_cmp_gt_u32 vcc, 32, v{vL}")
e("s_waitcnt vmcnt(0) lgkmcnt(0)")
barrier()
ts(8)
e(f"s_cmp_lg_u32 s{sWAVE}, 0")
e("s_cbranch_scc1 L_a_st_done")
exec_save_and()
e(f"buffer_store_dwordx2 v[24:25], v173, s[{R_WS}:{R_WS+3}], s{sKQ} offen sc1")
exec_restore()
lab("L_a_st_done")
for ks in range(4):
    e(f"ds_read_b64_tr_b16 v[{100+4*ks}:{101+4*ks}], v177 offset:{ks*8192}")
    e(f"ds_read_b64_tr_b16 v[{102+4*ks}:{103+4*ks}], v177 offset:{ks*8192 + 1024}")
e(f"s_lshr_b32 s{sT0}, s{sWAVE}, 2")
e(f"s_lshl_b32 s{sA0}, s{sT0}, 14")
e(f"s_lshl_b32 s{sT1}, s{sH}, 3")
e(f"s_add_u32 s{sA0}, s{sA0}, s{sT1}")
e(f"s_add_u32 s{sA0}, s{sA0}, {WS_ST}")
e(f"s_lshl_b32 s{sA1}, s{sT0}, 5")
e(f"s_add_u32 s{sA1}, s{sA1}, s{sH}")
e(f"s_lshl_b32 s{sA1}, s{sA1}, 2")
e(f"s_add_u32 s{sA1}, s{sA1}, s{sJQ}")
e(f"s_lshl_b32 s{sA1}, s{sA1}, 6")
e(f"s_and_b32 s{sT3}, s{sWAVE}, 3")
e(f"s_lshl_b32 s{sT1}, s{sT3}, 4")
e(f"s_add_u32 s{sA1}, s{sA1}, s{sT1}")
e(f"s_lshl_b32 s{sA1}, s{sA1}, 8")
e(f"s_add_u32 s{sA1}, s{sA1}, {WS_OP}")
e(f"s_lshl_b32 s{sA2}, s{sJQ}, 14")
e(f"s_lshl_b32 s{sT1}, s{sH}, 8")
e(f"s_add_u32 s{sA2}, s{sA2}, s{sT1}")
e(f"s_add_u32 s{sA2}, s{sA2}, {WS_CP}")
e(f"s_cmp_lg_u32 s{sT3}, 1")
e("s_cbranch_scc1 L_a_h3d")
spin_init()
lab("L_a_h3")
e(f"buffer_load_dwordx2 v[14:15], v178, s[{R_WS}:{R_WS+3}], s{sA0} offen sc1")
e("s_waitcnt vmcnt(0)")
e("v_max_u32 v11, v14, v15")
e("v_cmp_eq_u32 vcc, -1, v11")
spin_retry_if_vcc("L_a_h3", "L_a_h3d", 1)
lab("L_a_h3d")
barrier()
ts(9)
for i in range(4):
    e(f"buffer_load_dwordx4 v[{20+4*i}:{23+4*i}], v179, s[{R_WS}:{R_WS+3}], s{sA1} offen offset:{1024*i} sc1")
e(f"s_cmp_lg_u32 s{sT3}, 1")
e("s_cbranch_scc1 L_a_cf_done")
e("v_mov_b32 v16, v14")
allreduce("max", 16, 17)
e("v_sub_f32 v16, v14, v16")
e("v_exp_f32 v16, v16")
e("s_nop 0")
e("v_mul_f32 v18, v16, v15")
allreduce("add", 18, 17)
e("v_rcp_f32 v18, v18")
e("s_nop 0")
e("v_mul_f32 v16, v16, v18")
e("ds_write_b32 v180, v16")
e("s_waitcnt lgkmcnt(0)")
lab("L_a_cf_done")
barrier()
e("ds_read_b128 v[40:43], v181")
e("s_waitcnt lgkmcnt(0)")
for i in range(4):
    e(f"s_waitcnt vmcnt({3-i})")
    for j in range(4):
        src = 20 + 4 * i + j
        e(f"v_lshlrev_b32 v{44+2*j}, 16, v{src}")
        e(f"v_and_b32 v{45+2*j}, 0xffff0000, v{src}")
    for j in range(8):
        if i == 0:
            e(f"v_mul_f32 v{52+j}, v{40+i}, v{44+j}")
        else:
            e(f"v_fmac_f32 v{52+j}, v{40+i}, v{44+j}")
for j in range(4):
    e(f"v_cvt_pk_bf16_f32 v{60+j}, v{52+2*j}, v{53+2*j}")
e("ds_write_b128 v182, v[60:63]")
e("s_waitcnt lgkmcnt(0)")
barrier()
ts(10)
for ks in range(4):
    e(f"ds_read_b128 v[{20+8*ks}:{23+8*ks}], v{184+ks}")
    e(f"ds_read_b128 v[{24+8*ks}:{27+8*ks}], v{184+ks} offset:4096")
for ks in range(4):
    e(f"s_waitcnt lgkmcnt({2*(3-ks)})")
    c0 = "0" if ks == 0 else "v[60:63]"
    c1 = "0" if ks == 0 else "v[64:67]"
    e(f"v_mfma_f32_16x16x32_bf16 v[60:63], v[{20+8*ks}:{23+8*ks}], v[{100+4*ks}:{103+4*ks}], {c0}")
    e(f"v_mfma_f32_16x16x32_bf16 v[64:67], v[{24+8*ks}:{27+8*ks}], v[{100+4*ks}:{103+4*ks}], {c1}")
e(f"v_cmp_gt_u32 vcc, 32, v{vL}")
e("s_nop 6")
e("v_add_f32 v60, v60, v61")
e("v_add_f32 v62, v62, v63")
e("v_add_f32 v64, v64, v65")
e("v_add_f32 v66, v66, v67")
e("v_add_f32 v60, v60, v62")
e("v_add_f32 v64, v64, v66")
e("s_nop 1")
e("v_permlane32_swap_b32 v60, v64")
e("s_nop 0")
e("v_add_f32 v60, v60, v64")
e("v_mov_b32 v61, v60")
e("s_nop 1")
e("v_permlane16_swap_b32 v61, v60")
e("s_nop 0")
e("v_add_f32 v60, v60, v61")
e("v_cvt_pk_bf16_f32 v60, v60, v60")
e("ds_write_b16 v188, v60")
e("s_waitcnt lgkmcnt(0)")
barrier()
e(f"s_cmp_lg_u32 s{sWAVE}, 0")
e("s_cbranch_scc1 L_a_fin")
e("ds_read_b128 v[60:63], v189")
e("s_waitcnt lgkmcnt(0)")
for i in range(4):
    e(f"v_min_u32 v{60+i}, -2, v{60+i}")
exec_save_and()
e(f"buffer_store_dwordx4 v[60:63], v190, s[{R_WS}:{R_WS+3}], s{sA2} offen sc1")
exec_restore()
ts(11)
lab("L_a_fin")
ts_flush(12)
lab("L_end")
e("s_endpgm")

tail = [
    '.section .rodata,"a"',
    ".p2align 6",
    f".amdhsa_kernel {NAME}_kernel",
    "  .amdhsa_next_free_vgpr 256",
    "  .amdhsa_next_free_sgpr 102",
    "  .amdhsa_accum_offset 256",
    "  .amdhsa_group_segment_fixed_size 0",
    "  .amdhsa_kernarg_size 104",
    "  .amdhsa_user_sgpr_count 2",
    "  .amdhsa_user_sgpr_kernarg_segment_ptr 1",
    "  .amdhsa_system_sgpr_workgroup_id_x 1",
    ".end_amdhsa_kernel",
]
open(OUT, "w").write("\n".join(head + L + tail) + "\n")
print("wrote", OUT, len(L), "lines")
```

```python
import sys

NAME = "sequential_preLN__compressed_kv_cla__glu_gated_swiglu__decode"
TS = int(sys.argv[2]) if len(sys.argv) > 2 else 0
OUT = sys.argv[1] if len(sys.argv) > 1 else f"cdna_kernels/{NAME}.s"

WS_QP = 0x00000
WS_QA = 0x10000
WS_ST = 0x20000
WS_CP = 0x28000
WS_HP = 0x38000
WS_ACT = 0x3D000
NCLR = 32
WS_OP = 0x100000
WS_TS = 0x800000
WS_SIZE = 0x10000000
SPIN_MAX = 40000

import struct
def fl(x):
    return '0x%08x' % struct.unpack('<I', struct.pack('<f', x))[0]
L = []
def e(s):
    L.append("    " + s)
def lab(s):
    L.append(s + ":")
def c(s):
    L.append("    ; " + s)

_uid = [0]
def uid(p):
    _uid[0] += 1
    return f"{p}_{_uid[0]}"

sWAVE = 3
sIDX = 4
sH = 5
sJQ = 6
sT0 = 7
P_X, P_CKV, P_WQ, P_WUK, P_WUV, P_WO, P_BX, P_W1, P_W3, P_W2, P_OUT, P_DBG, P_WS = [8 + 2 * i for i in range(13)]
sSPIN = 34
sT1 = 35
R_WS = 36
R_A = 40
R_B = 44
R_C = 48
R_DBG = 52
sT2, sT3, sT4, sT5 = 56, 57, 58, 59
sEX = 60
sB = 62
sS = 63
sCS = 64
sKQ = 65
sTSB = 70

def srd(r, p, nbytes):
    e(f"s_mov_b32 s{r}, s{p}")
    e(f"s_and_b32 s{r+1}, s{p+1}, 0xffff")
    e(f"s_mov_b32 s{r+2}, {nbytes:#x}")
    e(f"s_mov_b32 s{r+3}, 0x00020000")

_tsn = [0]
def ts(i):
    if TS:
        e(f"s_memrealtime s[{sTSB+2*i}:{sTSB+2*i+1}]")

def ts_flush(nslots):
    if not TS:
        return
    if TS == 3:
        l1 = uid("L_tsf")
        e("s_waitcnt lgkmcnt(0)")
        e(f"s_cmp_lg_u32 s{sWAVE}, 0")
        e(f"s_cbranch_scc1 {l1}")
        l2 = uid("L_tsg")
        e("s_cmp_eq_u32 s2, 94")
        e(f"s_cbranch_scc1 {l2}")
        e("s_cmp_lg_u32 s2, 200")
        e(f"s_cbranch_scc1 {l1}")
        lab(l2)
        e("v_mov_b32 v250, 0")
        e("s_cmp_eq_u32 s2, 94")
        e(f"s_cselect_b32 s{sT1}, 4, 32")
        for k, (a, b) in enumerate(zip([1, 2, 4, 5, 6, 10, 11, 11], [1, 2, 3, 6, 8, 9, 10, 11])):
            e("s_cmp_eq_u32 s2, 94")
            e(f"s_cselect_b32 s{sT0}, s{sTSB+2*a}, s{sTSB+2*b}")
            e(f"s_sub_u32 s{sT0}, s{sT0}, s{sTSB}")
            e(f"v_mov_b32 v251, s{sT0}")
            e(f"s_mov_b64 s[{sEX}:{sEX+1}], exec")
            e("s_mov_b64 exec, 1")
            if k == 7:
                e("s_cmp_eq_u32 s2, 94")
                e(f"s_cselect_b32 s{sT1}, 28, s{sT1}")
            e(f"buffer_store_dword v251, v250, s[{R_DBG}:{R_DBG+3}], s{sT1} offen")
            e(f"s_mov_b64 exec, s[{sEX}:{sEX+1}]")
            e(f"s_add_u32 s{sT1}, s{sT1}, 4")
        lab(l1)
        return
    l1 = uid("L_tsf")
    e("s_waitcnt lgkmcnt(0)")
    e(f"s_cmp_lg_u32 s{sWAVE}, 0")
    e(f"s_cbranch_scc1 {l1}")
    e("v_mov_b32 v250, 0")
    for i in range(nslots):
        e(f"v_mov_b32 v251, s{sTSB+2*i}")
        e(f"s_lshl_b32 s{sT0}, s2, 6")
        e(f"s_add_u32 s{sT0}, s{sT0}, {WS_TS + 4*i:#x}")
        e(f"s_mov_b64 s[{sEX}:{sEX+1}], exec")
        e("s_mov_b64 exec, 1")
        e(f"buffer_store_dword v251, v250, s[{R_WS}:{R_WS+3}], s{sT0} offen")
        e(f"s_mov_b64 exec, s[{sEX}:{sEX+1}]")
        e("s_nop 1")
    lab(l1)

def allreduce(op, v, t):
    for pat in ("quad_perm:[1,0,3,2]", "quad_perm:[2,3,0,1]", "row_half_mirror", "row_mirror"):
        e("s_nop 1")
        e(f"v_{op}_f32_dpp v{v}, v{v}, v{v} {pat} row_mask:0xf bank_mask:0xf")
    e(f"v_mov_b32 v{t}, v{v}")
    e("s_nop 1")
    e(f"v_permlane16_swap_b32 v{t}, v{v}")
    e("s_nop 0")
    e(f"v_{op}_f32 v{v}, v{v}, v{t}")
    e(f"v_mov_b32 v{t}, v{v}")
    e("s_nop 1")
    e(f"v_permlane32_swap_b32 v{t}, v{v}")
    e("s_nop 0")
    e(f"v_{op}_f32 v{v}, v{v}, v{t}")

def umax_chain(dst, regs):
    regs = list(regs)
    e(f"v_max3_u32 v{dst}, v{regs[0]}, v{regs[1]}, v{regs[2]}")
    i = 3
    while i < len(regs):
        if i + 1 < len(regs):
            e(f"v_max3_u32 v{dst}, v{dst}, v{regs[i]}, v{regs[i+1]}")
            i += 2
        else:
            e(f"v_max_u32 v{dst}, v{dst}, v{regs[i]}")
            i += 1

def spin_init():
    e(f"s_mov_b32 s{sSPIN}, 0")

def spin_retry_if_vcc(top, done, sleep=0):
    e(f"s_cbranch_vccz {done}")
    if sleep:
        e(f"s_sleep {sleep}")
    e(f"s_add_u32 s{sSPIN}, s{sSPIN}, 1")
    e(f"s_cmp_lt_u32 s{sSPIN}, {SPIN_MAX}")
    e(f"s_cbranch_scc1 {top}")

def barrier():
    e("s_barrier")

vL = 2

hdr = open(f"cdna_kernels/{NAME}.s.ref").read().split("\n")
head = []
for line in hdr:
    if line.startswith("; @launch"):
        head.append("; @launch grid=(256,1,1) block=(512,1,1) lds=163840")
        break
    head.append(line)
head += [
    '.amdgcn_target "amdgcn-amd-amdhsa--gfx950"',
    ".text",
    f".globl {NAME}_kernel",
    ".p2align 8",
    f".type {NAME}_kernel,@function",
    f"{NAME}_kernel:",
]

e("s_cmp_ge_u32 s2, 256")
e("s_cbranch_scc1 L_end")
ts(0)
e("s_load_dwordx16 s[8:23], s[0:1], 0")
e("s_load_dwordx8 s[24:31], s[0:1], 64")
e("s_load_dwordx2 s[32:33], s[0:1], 96")
e("v_lshrrev_b32 v1, 6, v0")
e(f"v_and_b32 v{vL}, 63, v0")
e(f"v_readfirstlane_b32 s{sWAVE}, v1")
e("v_mov_b32 v3, 0")
e("s_waitcnt lgkmcnt(0)")
srd(R_WS, P_WS, WS_SIZE)
srd(R_DBG, P_DBG, 256)
e("s_cmp_ge_u32 s2, 128")
e("s_cbranch_scc1 L_arole")


LW_WQ = 0
LW_XN = 40960
LW_STG = 43520
LW_RED = 131072
LW_H = 135168
LW_STAT = 139264
sA0, sA1, sA2, sA3 = 66, 67, 68, 69

def exec_save_and(mask="vcc"):
    e(f"s_and_saveexec_b64 s[{sEX}:{sEX+1}], {mask}")
def exec_restore():
    e(f"s_mov_b64 exec, s[{sEX}:{sEX+1}]")

c("================= W role =================")
e(f"s_mov_b32 s{sIDX}, s2")
e(f"s_and_b32 s{sH}, s2, 31")
e(f"s_lshr_b32 s{sJQ}, s2, 5")
srd(R_A, P_X, 2560)
srd(R_B, P_WQ, 640 * 8192)
e(f"v_lshrrev_b32 v4, 4, v{vL}")
e(f"v_and_b32 v5, 15, v{vL}")
e(f"v_lshlrev_b32 v6, 2, v{vL}")
e(f"s_cmp_ge_u32 s{sWAVE}, 2")
e("s_cbranch_scc1 L_w_nox")
e(f"s_mul_i32 s{sT0}, s{sWAVE}, 1280")
for i in range(5):
    e(f"buffer_load_dword v{10+i}, v6, s[{R_A}:{R_A+3}], s{sT0} offen offset:{256*i}")
lab("L_w_nox")
e("v_lshlrev_b32 v7, 4, v5")
e("v_lshlrev_b32 v8, 5, v4")
e("v_xor_b32 v7, v7, v8")
e("v_lshlrev_b32 v8, 13, v4")
e("v_add_u32 v7, v7, v8")
e(f"s_mul_i32 s{sT2}, s{sJQ}, {160*8192}")
e(f"s_lshl_b32 s{sT0}, s{sH}, 8")
e(f"s_add_u32 s{sT2}, s{sT2}, s{sT0}")
e(f"s_mul_i32 s{sT3}, s{sWAVE}, 20")
for i in range(5):
    e(f"s_add_u32 s{sT4}, s{sT3}, {4*i}")
    e(f"s_lshl_b32 s{sT5}, s{sT4}, 4")
    e(f"s_and_b32 s{sT5}, s{sT5}, 128")
    e(f"v_xor_b32 v9, s{sT5}, v7")
    e(f"s_lshl_b32 m0, s{sT4}, 8")
    e(f"s_lshl_b32 s{sT4}, s{sT4}, 13")
    e(f"s_add_u32 s{sT4}, s{sT4}, s{sT2}")
    e(f"buffer_load_dwordx4 v9, s[{R_B}:{R_B+3}], s{sT4} offen nt lds")
ts(1)
e(f"s_cmp_ge_u32 s{sWAVE}, 2")
e("s_cbranch_scc1 L_w_noln")
e("s_waitcnt vmcnt(5)")
for i in range(5):
    e(f"v_lshlrev_b32 v{20+2*i}, 16, v{10+i}")
    e(f"v_and_b32 v{21+2*i}, 0xffff0000, v{10+i}")
e("v_add_f32 v30, v20, v21")
for i in range(2, 10):
    e(f"v_add_f32 v30, v30, v{20+i}")
allreduce("add", 30, 31)
e(f"v_mul_f32 v30, {fl(1.0/640.0)}, v30")
for i in range(10):
    e(f"v_sub_f32 v{20+i}, v{20+i}, v30")
e("v_mul_f32 v32, v20, v20")
for i in range(1, 10):
    e(f"v_fmac_f32 v32, v{20+i}, v{20+i}")
allreduce("add", 32, 31)
e(f"v_mov_b32 v33, {fl(1e-5)}")
e(f"v_fmac_f32 v33, {fl(1.0/640.0)}, v32")
e("v_rsq_f32 v33, v33")
e("s_nop 0")
for i in range(10):
    e(f"v_mul_f32 v{20+i}, v{20+i}, v33")
for i in range(5):
    e(f"v_cvt_pk_bf16_f32 v{10+i}, v{20+2*i}, v{21+2*i}")
e(f"s_mul_i32 s{sT0}, s{sWAVE}, 1280")
e(f"v_add_u32 v6, s{sT0}, v6")
for i in range(5):
    e(f"ds_write_b32 v6, v{10+i} offset:{LW_XN + 256*i}")
lab("L_w_noln")
e(f"v_bfe_u32 v200, v{vL}, 2, 2")
e(f"v_and_b32 v201, 3, v{vL}")
e("v_lshl_add_u32 v202, v4, 3, v200")
e("v_and_b32 v10, 1, v4")
e("v_lshl_or_b32 v10, v10, 2, v200")
e(f"v_xor_b32 v10, s{sWAVE}, v10")
e("v_lshlrev_b32 v10, 5, v10")
e("v_lshl_add_u32 v8, v202, 8, v10")
e("v_lshl_add_u32 v8, v201, 3, v8")
e(f"v_and_b32 v9, 1, v{vL}")
e("v_mul_u32_u24 v9, 1280, v9")
e("v_lshl_add_u32 v9, v4, 4, v9")
e(f"s_mul_i32 s{sT0}, s{sJQ}, 320")
e(f"v_add_u32 v9, s{sT0}, v9")
e(f"v_and_b32 v203, 1, v{vL}")
e("v_lshlrev_b32 v203, 8, v203")
e("v_lshl_add_u32 v203, v4, 3, v203")
e(f"s_lshl_b32 s{sA0}, s{sH}, 2")
e(f"s_add_u32 s{sA0}, s{sA0}, s{sJQ}")
e(f"s_lshl_b32 s{sA0}, s{sA0}, 9")
e(f"s_lshl_b32 s{sT1}, s{sWAVE}, 5")
e(f"s_add_u32 s{sA0}, s{sA0}, s{sT1}")
srd(R_A, P_WUK, 512 * 8192)
e("v_lshlrev_b32 v204, 13, v5")
e("v_lshl_add_u32 v204, v4, 4, v204")
e(f"s_lshl_b32 s{sA1}, s{sJQ}, 7")
e(f"s_lshl_b32 s{sT1}, s{sWAVE}, 4")
e(f"s_add_u32 s{sA1}, s{sA1}, s{sT1}")
e(f"s_lshl_b32 s{sA1}, s{sA1}, 13")
e(f"s_lshl_b32 s{sT1}, s{sH}, 8")
e(f"s_add_u32 s{sA1}, s{sA1}, s{sT1}")
e(f"v_bfe_u32 v11, v{vL}, 2, 1")
e("v_lshl_add_u32 v206, v201, 1, v11")
e("v_lshlrev_b32 v205, 8, v206")
e("v_lshl_add_u32 v205, v4, 4, v205")
e(f"s_lshl_b32 s{sA2}, s{sH}, 11")
e("v_lshlrev_b32 v207, 8, v4")
e("v_lshl_add_u32 v207, v5, 1, v207")
e(f"s_lshl_b32 s{sT0}, s{sWAVE}, 5")
e(f"v_add_u32 v207, s{sT0}, v207")
e(f"v_lshlrev_b32 v208, 4, v{vL}")
e("v_and_b32 v208, 511, v208")
e("v_lshlrev_b32 v209, 15, v4")
e("v_lshl_add_u32 v209, v5, 4, v209")
e(f"s_lshl_b32 s{sA3}, s{sH}, 10")
e(f"s_lshl_b32 s{sT1}, s{sJQ}, 8")
e(f"s_add_u32 s{sA3}, s{sA3}, s{sT1}")
e(f"s_add_u32 s{sA3}, s{sA3}, {WS_QA}")
e(f"s_cmp_lg_u32 s{sWAVE}, 7")
e("s_cbranch_scc1 L_w_nopoll")
spin_init()
lab("L_w_poll")
e(f"buffer_load_dword v10, v3, s[{R_DBG}:{R_DBG+3}], 0 offen sc1")
e("s_waitcnt vmcnt(0)")
e(f"v_cmp_gt_u32 vcc, {NCLR}, v10")
spin_retry_if_vcc("L_w_poll", "L_w_nopoll", 1)
lab("L_w_nopoll")
e("v_cmp_gt_u32 vcc, 2, v5")
e("s_waitcnt vmcnt(0) lgkmcnt(0)")
barrier()
ts(2)
for ks in range(5):
    e(f"ds_read_b64_tr_b16 v[{20+4*ks}:{21+4*ks}], v8 offset:{LW_WQ + ks*8192}")
    e(f"ds_read_b64_tr_b16 v[{22+4*ks}:{23+4*ks}], v8 offset:{LW_WQ + ks*8192 + 1024}")
    e(f"ds_read_b128 v[{40+4*ks}:{43+4*ks}], v9 offset:{LW_XN + ks*64}")
for ks in range(5):
    e(f"s_waitcnt lgkmcnt({3*(4-ks)})")
    cc = "0" if ks == 0 else "v[60:63]"
    e(f"v_mfma_f32_16x16x32_bf16 v[60:63], v[{20+4*ks}:{23+4*ks}], v[{40+4*ks}:{43+4*ks}], {cc}")
e("s_nop 7")
e("v_cvt_pk_bf16_f32 v64, v60, v61")
e("v_cvt_pk_bf16_f32 v65, v62, v63")
e("v_min_u32 v64, -2, v64")
e("v_min_u32 v65, -2, v65")
exec_save_and()
e(f"buffer_store_dwordx2 v[64:65], v203, s[{R_WS}:{R_WS+3}], s{sA0} offen sc1")
exec_restore()
barrier()
ts(3)
for ks in range(4):
    e(f"buffer_load_dwordx4 v[{20+4*ks}:{23+4*ks}], v204, s[{R_A}:{R_A+3}], s{sA1} offen offset:{64*ks} nt")
spin_init()
lab("L_w_h1")
for ks in range(4):
    e(f"buffer_load_dwordx4 v[{40+4*ks}:{43+4*ks}], v205, s[{R_WS}:{R_WS+3}], s{sA2} offen offset:{64*ks} sc1")
e("s_waitcnt vmcnt(0)")
umax_chain(11, range(40, 56))
e("v_cmp_eq_u32 vcc, -1, v11")
spin_retry_if_vcc("L_w_h1", "L_w_h1d", 1)
lab("L_w_h1d")
ts(4)
for ks in range(4):
    cc = "0" if ks == 0 else "v[60:63]"
    e(f"v_mfma_f32_16x16x32_bf16 v[60:63], v[{40+4*ks}:{43+4*ks}], v[{20+4*ks}:{23+4*ks}], {cc}")
SCALE = (128 ** -0.5) * 1.4426950408889634
e(f"s_mov_b32 s{sT1}, {fl(SCALE)}")
e(f"v_cmp_gt_u32 vcc, 32, v{vL}")
e("s_nop 6")
e("v_add_f32 v60, v60, v61")
e("v_add_f32 v62, v62, v63")
e("v_add_f32 v60, v60, v62")
e(f"v_mul_f32 v60, s{sT1}, v60")
e("v_cvt_pk_bf16_f32 v60, v60, v60")
exec_save_and()
e(f"ds_write_b16 v207, v60 offset:{LW_STG}")
exec_restore()
e("s_waitcnt lgkmcnt(0)")
barrier()
e(f"s_cmp_lg_u32 s{sWAVE}, 0")
e("s_cbranch_scc1 L_w_qa_done")
e(f"ds_read_b128 v[60:63], v208 offset:{LW_STG}")
e("s_waitcnt lgkmcnt(0)")
for i in range(4):
    e(f"v_min_u32 v{60+i}, -2, v{60+i}")
exec_save_and()
e(f"buffer_store_dwordx4 v[60:63], v209, s[{R_WS}:{R_WS+3}], s{sA3} offen sc1")
exec_restore()
lab("L_w_qa_done")
barrier()
ts(5)
e(f"s_cmp_ge_u32 s{sIDX}, 114")
e("s_cbranch_scc1 L_w_fin")
e(f"s_cmp_ge_u32 s{sIDX}, 94")
e("s_cbranch_scc1 L_t7")
e(f"s_cmp_ge_u32 s{sIDX}, 40")
e("s_cbranch_scc1 L_t6")
c("---- T5 ----")
e(f"s_mul_i32 s{sKQ}, s{sIDX}, 26")
e(f"s_lshr_b32 s{sKQ}, s{sKQ}, 8")
e(f"s_mul_i32 s{sT0}, s{sKQ}, 10")
e(f"s_sub_u32 s{sCS}, s{sIDX}, s{sT0}")
srd(R_B, P_WO, 4096 * 1280)
e(f"v_lshrrev_b32 v9, 3, v{vL}")
e("v_mul_u32_u24 v9, 1280, v9")
e(f"v_and_b32 v10, 7, v{vL}")
e("v_lshl_add_u32 v9, v10, 4, v9")
e(f"s_lshl_b32 s{sT0}, s{sKQ}, 10")
e(f"s_lshl_b32 s{sT1}, s{sWAVE}, 7")
e(f"s_add_u32 s{sT0}, s{sT0}, s{sT1}")
e(f"s_mul_i32 s{sT0}, s{sT0}, 1280")
e(f"s_lshl_b32 s{sT1}, s{sCS}, 7")
e(f"s_add_u32 s{sT0}, s{sT0}, s{sT1}")
e(f"s_lshl_b32 s{sT1}, s{sWAVE}, 14")
for i in range(16):
    e(f"s_add_u32 m0, s{sT1}, {1024*i}")
    e(f"s_add_u32 s{sT2}, s{sT0}, {8*1280*i}")
    e(f"buffer_load_dwordx4 v9, s[{R_B}:{R_B+3}], s{sT2} offen nt lds")
e("v_lshlrev_b32 v9, 7, v202")
e("v_lshl_add_u32 v9, v201, 3, v9")
e(f"v_add_u32 v9, s{sT1}, v9")
e("v_lshlrev_b32 v10, 13, v206")
e("v_lshl_add_u32 v10, v4, 4, v10")
e(f"s_lshl_b32 s{sA0}, s{sKQ}, 11")
e(f"s_lshl_b32 s{sT1}, s{sWAVE}, 8")
e(f"s_add_u32 s{sA0}, s{sA0}, s{sT1}")
e(f"s_add_u32 s{sA0}, s{sA0}, {WS_CP}")
e("v_lshlrev_b32 v12, 8, v4")
e("v_lshl_add_u32 v12, v5, 2, v12")
e(f"s_lshl_b32 s{sT0}, s{sWAVE}, 9")
e(f"s_add_u32 s{sT0}, s{sT0}, {LW_RED}")
e(f"v_add_u32 v12, s{sT0}, v12")
e(f"v_lshlrev_b32 v14, 2, v{vL}")
e(f"s_and_b32 s{sT0}, s{sWAVE}, 1")
e(f"s_lshl_b32 s{sT1}, s{sT0}, 8")
e(f"s_add_u32 s{sT1}, s{sT1}, {LW_RED}")
e(f"v_add_u32 v13, s{sT1}, v14")
e(f"s_lshl_b32 s{sA1}, s{sKQ}, 1")
e(f"s_add_u32 s{sA1}, s{sA1}, s{sT0}")
e(f"s_mul_i32 s{sA1}, s{sA1}, 2560")
e(f"s_lshl_b32 s{sT1}, s{sCS}, 8")
e(f"s_add_u32 s{sA1}, s{sA1}, s{sT1}")
e(f"s_add_u32 s{sA1}, s{sA1}, {WS_HP}")
e("s_waitcnt vmcnt(0)")
ts(6)
for ks in range(4):
    for ct in range(4):
        r = 100 + 16 * ks + 4 * ct
        e(f"ds_read_b64_tr_b16 v[{r}:{r+1}], v9 offset:{ks*4096 + ct*32}")
        e(f"ds_read_b64_tr_b16 v[{r+2}:{r+3}], v9 offset:{ks*4096 + ct*32 + 512}")
    e("s_waitcnt lgkmcnt(0)")
spin_init()
lab("L_w_h4")
for ks in range(4):
    e(f"buffer_load_dwordx4 v[{20+4*ks}:{23+4*ks}], v10, s[{R_WS}:{R_WS+3}], s{sA0} offen offset:{64*ks} sc1")
e("s_waitcnt vmcnt(0)")
umax_chain(11, range(20, 36))
e("v_cmp_eq_u32 vcc, -1, v11")
spin_retry_if_vcc("L_w_h4", "L_w_h4d", 2)
lab("L_w_h4d")
ts(10)
for ks in range(4):
    for ct in range(4):
        d = 60 + 4 * ct
        cc = "0" if ks == 0 else f"v[{d}:{d+3}]"
        r = 100 + 16 * ks + 4 * ct
        e(f"v_mfma_f32_16x16x32_bf16 v[{d}:{d+3}], v[{20+4*ks}:{23+4*ks}], v[{r}:{r+3}], {cc}")
e(f"v_cmp_gt_u32 vcc, 32, v{vL}")
e("s_nop 4")
for ct in range(4):
    d = 60 + 4 * ct
    e(f"v_add_f32 v{d}, v{d}, v{d+1}")
    e(f"v_add_f32 v{d+2}, v{d+2}, v{d+3}")
for ct in range(4):
    d = 60 + 4 * ct
    e(f"v_add_f32 v{d}, v{d}, v{d+2}")
exec_save_and()
for ct in range(4):
    e(f"ds_write_b32 v12, v{60+4*ct} offset:{64*ct}")
exec_restore()
e("s_waitcnt lgkmcnt(0)")
barrier()
e(f"s_cmp_ge_u32 s{sWAVE}, 2")
e("s_cbranch_scc1 L_w_fin")
for i in range(8):
    e(f"ds_read_b32 v{20+i}, v13 offset:{512*i}")
e("s_waitcnt lgkmcnt(0)")
e("v_add_f32 v20, v20, v21")
e("v_add_f32 v22, v22, v23")
e("v_add_f32 v24, v24, v25")
e("v_add_f32 v26, v26, v27")
e("v_add_f32 v20, v20, v22")
e("v_add_f32 v24, v24, v26")
e("v_add_f32 v20, v20, v24")
e("v_min_u32 v20, -2, v20")
e(f"buffer_store_dword v20, v14, s[{R_WS}:{R_WS+3}], s{sA1} offen sc1")
ts(11)
e("s_branch L_w_fin")
lab("L_t6")
c("---- T6 ----")
e(f"s_sub_u32 s{sCS}, s{sIDX}, 40")
e(f"s_and_b32 s{sT0}, s{sWAVE}, 1")
e(f"s_cmp_eq_u32 s{sT0}, 0")
e(f"s_cselect_b32 s{R_B}, s{P_W1}, s{P_W3}")
e(f"s_cselect_b32 s{R_B+1}, s{P_W1+1}, s{P_W3+1}")
e(f"s_and_b32 s{R_B+1}, s{R_B+1}, 0xffff")
e(f"s_mov_b32 s{R_B+2}, {640*3456}")
e(f"s_mov_b32 s{R_B+3}, 0x00020000")
e(f"v_lshrrev_b32 v9, 2, v{vL}")
e("v_mul_u32_u24 v9, 3456, v9")
e("v_lshl_add_u32 v9, v201, 4, v9")
e(f"s_lshr_b32 s{sKQ}, s{sWAVE}, 1")
e(f"s_mul_i32 s{sT0}, s{sKQ}, {160*3456}")
e(f"s_lshl_b32 s{sT1}, s{sCS}, 6")
e(f"s_add_u32 s{sT0}, s{sT0}, s{sT1}")
e(f"s_mul_i32 s{sT1}, s{sWAVE}, 10240")
for i in range(10):
    e(f"s_add_u32 m0, s{sT1}, {1024*i}")
    e(f"s_add_u32 s{sT2}, s{sT0}, {16*3456*i}")
    e(f"buffer_load_dwordx4 v9, s[{R_B}:{R_B+3}], s{sT2} offen nt lds")
srd(R_A, P_X, 2560)
e(f"s_lshr_b32 s{sB}, s{sWAVE}, 2")
e(f"s_and_b32 s{sS}, s{sWAVE}, 3")
e(f"v_min_u32 v12, 39, v{vL}")
e("v_lshlrev_b32 v13, 3, v12")
e(f"s_mul_i32 s{sT2}, s{sB}, 1280")
e(f"s_mul_i32 s{sT3}, s{sS}, 320")
e(f"s_add_u32 s{sT2}, s{sT2}, s{sT3}")
e(f"buffer_load_dwordx2 v[14:15], v13, s[{R_A}:{R_A+3}], s{sT2} offen")
e("v_lshlrev_b32 v16, 2, v0")
e("v_mov_b32 v17, 0x3f803f80")
e("v_cmp_gt_u32 vcc, 320, v0")
e(f"v_add_u32 v16, {LW_H + 2560}, v16")
exec_save_and()
e("ds_write_b32 v16, v17")
exec_restore()
e("v_lshlrev_b32 v9, 6, v202")
e("v_lshl_add_u32 v9, v201, 3, v9")
e(f"v_add_u32 v9, s{sT1}, v9")
e("v_lshlrev_b32 v210, 4, v12")
e(f"s_lshl_b32 s{sA0}, s{sT2}, 1")
e(f"s_add_u32 s{sA0}, s{sA0}, {WS_HP}")
for kq in range(1, 4):
    e(f"s_add_u32 s{sA0+kq}, s{sA0}, {5120*kq}")
e(f"s_add_u32 s{sT2}, s{sT2}, {LW_H}")
e(f"v_add_u32 v211, s{sT2}, v13")
e(f"s_lshl_b32 s{sT0}, s{sWAVE}, 3")
e(f"s_add_u32 s{sT0}, s{sT0}, {LW_STAT}")
e(f"v_mov_b32 v212, s{sT0}")
e("v_min_u32 v213, 2, v5")
e("v_mul_u32_u24 v213, 1280, v213")
e("v_lshl_add_u32 v213, v4, 4, v213")
e(f"s_mul_i32 s{sT0}, s{sKQ}, 320")
e(f"s_add_u32 s{sT0}, s{sT0}, {LW_H}")
e(f"v_add_u32 v213, s{sT0}, v213")
e("v_lshlrev_b32 v214, 2, v5")
e(f"s_mul_i32 s{sT0}, s{sWAVE}, 384")
e(f"s_add_u32 s{sT0}, s{sT0}, {LW_RED}")
e(f"v_add_u32 v214, s{sT0}, v214")
e(f"v_lshrrev_b32 v16, 5, v{vL}")
e(f"v_and_b32 v17, 31, v{vL}")
e("v_lshlrev_b32 v215, 7, v16")
e("v_lshl_add_u32 v215, v17, 2, v215")
e(f"v_add_u32 v215, {LW_RED}, v215")
e("v_lshlrev_b32 v216, 2, v17")
e(f"v_add_u32 v216, {LW_RED + 256}, v216")
e("v_lshlrev_b32 v217, 5, v16")
e(f"v_add_u32 v217, {LW_STAT}, v217")
e("v_mul_u32_u24 v218, 3456, v16")
e("v_lshl_add_u32 v218, v17, 1, v218")
e(f"s_lshl_b32 s{sCS}, s{sCS}, 6")
e(f"s_add_u32 s{sCS}, s{sCS}, {WS_ACT}")
e("s_waitcnt vmcnt(0)")
ts(6)
for ks in range(5):
    for ct in range(2):
        r = 100 + 8 * ks + 4 * ct
        e(f"ds_read_b64_tr_b16 v[{r}:{r+1}], v9 offset:{ks*2048 + ct*32}")
        e(f"ds_read_b64_tr_b16 v[{r+2}:{r+3}], v9 offset:{ks*2048 + ct*32 + 256}")
    e("s_waitcnt lgkmcnt(4)")
e("v_lshlrev_b32 v40, 16, v14")
e("v_and_b32 v41, 0xffff0000, v14")
e("v_lshlrev_b32 v42, 16, v15")
e("v_and_b32 v43, 0xffff0000, v15")
e("s_waitcnt lgkmcnt(0)")
spin_init()
lab("L_w_h5")
for kq in range(4):
    e(f"buffer_load_dwordx4 v[{20+4*kq}:{23+4*kq}], v210, s[{R_WS}:{R_WS+3}], s{sA0+kq} offen sc1")
e("s_waitcnt vmcnt(0)")
umax_chain(11, range(20, 36))
e("v_cmp_eq_u32 vcc, -1, v11")
spin_retry_if_vcc("L_w_h5", "L_w_h5d", 2)
lab("L_w_h5d")
ts(10)
for j in range(4):
    e(f"v_add_f32 v{20+j}, v{20+j}, v{24+j}")
    e(f"v_add_f32 v{28+j}, v{28+j}, v{32+j}")
for j in range(4):
    e(f"v_add_f32 v{40+j}, v{40+j}, v{20+j}")
for j in range(4):
    e(f"v_add_f32 v{40+j}, v{40+j}, v{28+j}")
e("v_cvt_pk_bf16_f32 v44, v40, v41")
e("v_cvt_pk_bf16_f32 v45, v42, v43")
e("ds_write_b64 v211, v[44:45]")
e("v_lshlrev_b32 v40, 16, v44")
e("v_and_b32 v41, 0xffff0000, v44")
e("v_lshlrev_b32 v42, 16, v45")
e("v_and_b32 v43, 0xffff0000, v45")
e(f"v_cmp_gt_u32 vcc, 40, v{vL}")
e("v_add_f32 v46, v40, v41")
e("v_add_f32 v47, v42, v43")
e("v_add_f32 v46, v46, v47")
e("v_cndmask_b32 v46, 0, v46, vcc")
e("s_waitcnt lgkmcnt(0)")
barrier()
for ks in range(5):
    e(f"ds_read_b128 v[{20+4*ks}:{23+4*ks}], v213 offset:{64*ks}")
allreduce("add", 46, 47)
e(f"v_mul_f32 v46, {fl(1.0/160.0)}, v46")
for ks in range(5):
    e(f"s_waitcnt lgkmcnt({4-ks})")
    for ct in range(2):
        d = 60 + 4 * ct
        cc = "0" if ks == 0 else f"v[{d}:{d+3}]"
        r = 100 + 8 * ks + 4 * ct
        e(f"v_mfma_f32_16x16x32_bf16 v[{d}:{d+3}], v[{20+4*ks}:{23+4*ks}], v[{r}:{r+3}], {cc}")
for j in range(4):
    e(f"v_sub_f32 v{40+j}, v{40+j}, v46")
e("v_mul_f32 v48, v40, v40")
for j in range(1, 4):
    e(f"v_fmac_f32 v48, v{40+j}, v{40+j}")
e("v_cndmask_b32 v48, 0, v48, vcc")
allreduce("add", 48, 47)
e("v_mov_b32 v47, v48")
e("ds_write_b64 v212, v[46:47]")
e(f"v_cmp_gt_u32 vcc, 16, v{vL}")
exec_save_and()
for ct in range(2):
    for r in range(3):
        e(f"ds_write_b32 v214, v{60+4*ct+r} offset:{128*r + 64*ct}")
exec_restore()
e("s_waitcnt lgkmcnt(0)")
barrier()
e(f"s_cmp_lg_u32 s{sWAVE}, 0")
e("s_cbranch_scc1 L_w_fin")
e("ds_read_b128 v[40:43], v217")
e("ds_read_b128 v[44:47], v217 offset:16")
for w in range(8):
    e(f"ds_read_b32 v{20+w}, v215 offset:{384*w}")
e("s_waitcnt lgkmcnt(8)")
for w in range(8):
    e(f"ds_read_b32 v{28+w}, v216 offset:{384*w}")
e("v_add_f32 v48, v40, v42")
e("v_add_f32 v49, v44, v46")
e("v_add_f32 v50, v41, v43")
e("v_add_f32 v51, v45, v47")
e("v_add_f32 v48, v48, v49")
e("v_add_f32 v49, v50, v51")
e("v_mul_f32 v48, 0.25, v48")
e("v_sub_f32 v40, v40, v48")
e("v_sub_f32 v42, v42, v48")
e("v_sub_f32 v44, v44, v48")
e("v_sub_f32 v46, v46, v48")
e("v_mul_f32 v50, v40, v40")
e("v_mul_f32 v51, v42, v42")
e("v_fmac_f32 v50, v44, v44")
e("v_fmac_f32 v51, v46, v46")
e("v_add_f32 v50, v50, v51")
e("v_fmac_f32 v49, 0x43200000, v50")
e(f"v_mov_b32 v51, {fl(1e-5)}")
e(f"v_fmac_f32 v51, {fl(1.0/640.0)}, v49")
e("v_rsq_f32 v51, v51")
e("s_waitcnt lgkmcnt(8)")
e("v_add_f32 v20, v20, v22")
e("v_add_f32 v24, v24, v26")
e("v_add_f32 v21, v21, v23")
e("v_add_f32 v25, v25, v27")
e("v_add_f32 v20, v20, v24")
e("v_add_f32 v21, v21, v25")
e("s_waitcnt lgkmcnt(0)")
e("v_add_f32 v28, v28, v30")
e("v_add_f32 v32, v32, v34")
e("v_add_f32 v29, v29, v31")
e("v_add_f32 v33, v33, v35")
e("v_add_f32 v28, v28, v32")
e("v_add_f32 v29, v29, v33")
e("v_fma_f32 v20, -v48, v28, v20")
e("v_fma_f32 v21, -v48, v29, v21")
e("v_mul_f32 v20, v20, v51")
e("v_mul_f32 v21, v21, v51")
e("v_mul_f32 v22, 0xbfb8aa3b, v20")
e("v_exp_f32 v22, v22")
e("v_mul_f32 v20, v20, v21")
e("v_add_f32 v22, 1.0, v22")
e("v_rcp_f32 v22, v22")
e("s_nop 0")
e("v_mul_f32 v20, v20, v22")
e("s_nop 1")
e("v_mov_b32_dpp v21, v20 quad_perm:[1,1,3,3] row_mask:0xf bank_mask:0xf")
e("s_nop 0")
e("v_cvt_pk_bf16_f32 v20, v20, v21")
e("v_min_u32 v20, -2, v20")
e(f"s_mov_b64 s[{sEX}:{sEX+1}], exec")
e("s_mov_b32 exec_lo, 0x55555555")
e("s_mov_b32 exec_hi, 0x55555555")
e(f"buffer_store_dword v20, v218, s[{R_WS}:{R_WS+3}], s{sCS} offen sc1")
exec_restore()
ts(11)
e("s_branch L_w_fin")
lab("L_t7")
c("---- T7 ----")
e(f"s_sub_u32 s{sCS}, s{sIDX}, 94")
srd(R_B, P_W2, 1728 * 1280)
e(f"v_lshrrev_b32 v9, 2, v{vL}")
e("v_mul_u32_u24 v9, 1280, v9")
e("v_lshl_add_u32 v9, v201, 4, v9")
e(f"s_mul_i32 s{sT0}, s{sWAVE}, {32*1280}")
e(f"s_lshl_b32 s{sT1}, s{sCS}, 6")
e(f"s_add_u32 s{sT0}, s{sT0}, s{sT1}")
e(f"s_lshl_b32 s{sT1}, s{sWAVE}, 11")
for i in range(7):
    for j in range(2):
        e(f"s_add_u32 m0, s{sT1}, {16384*i + 1024*j}")
        e(f"s_add_u32 s{sT2}, s{sT0}, {(8*32*i + 16*j)*1280}")
        e(f"buffer_load_dwordx4 v9, s[{R_B}:{R_B+3}], s{sT2} offen nt lds")
srd(R_A, P_X, 2560)
srd(R_C, P_OUT, 2560)
e(f"v_lshrrev_b32 v16, 5, v{vL}")
e(f"v_and_b32 v17, 31, v{vL}")
e("v_mul_u32_u24 v210, 2560, v16")
e("v_lshl_add_u32 v210, v17, 2, v210")
e("v_mul_u32_u24 v211, 1280, v16")
e("v_lshl_add_u32 v211, v17, 1, v211")
e(f"s_lshl_b32 s{sKQ}, s{sCS}, 6")
e(f"buffer_load_ushort v70, v211, s[{R_A}:{R_A+3}], s{sKQ} offen")
e(f"s_lshl_b32 s{sA0}, s{sCS}, 7")
e(f"s_add_u32 s{sA0}, s{sA0}, {WS_HP}")
for kq in range(1, 4):
    e(f"s_add_u32 s{sA0+kq}, s{sA0}, {5120*kq}")
e("v_lshlrev_b32 v9, 6, v202")
e("v_lshl_add_u32 v9, v201, 3, v9")
e(f"v_add_u32 v9, s{sT1}, v9")
e("v_add_u32 v10, 0x10000, v9")
e(f"v_and_b32 v212, 1, v{vL}")
e("v_mul_u32_u24 v212, 3456, v212")
e("v_lshl_add_u32 v212, v4, 4, v212")
e(f"s_lshl_b32 s{sB}, s{sWAVE}, 6")
e(f"s_add_u32 s{sB}, s{sB}, {WS_ACT}")
e("v_lshlrev_b32 v213, 2, v5")
e(f"s_lshl_b32 s{sT0}, s{sWAVE}, 8")
e(f"s_add_u32 s{sT0}, s{sT0}, {LW_RED}")
e(f"v_add_u32 v213, s{sT0}, v213")
e(f"v_lshlrev_b32 v214, 2, v{vL}")
e(f"v_add_u32 v214, {LW_RED}, v214")
for j in range(4):
    e(f"v_mov_b32 v{44+j}, 0")
e("s_waitcnt vmcnt(0)")
ts(6)
for i in range(7):
    a = "v9" if i < 4 else "v10"
    off = (i & 3) * 16384
    for ct in range(2):
        r = 100 + 8 * i + 4 * ct
        e(f"ds_read_b64_tr_b16 v[{r}:{r+1}], {a} offset:{off + ct*32}")
        e(f"ds_read_b64_tr_b16 v[{r+2}:{r+3}], {a} offset:{off + ct*32 + 256}")
    e("s_waitcnt lgkmcnt(4)")
e("s_waitcnt lgkmcnt(0)")
e(f"s_cmp_lg_u32 s{sWAVE}, 0")
e("s_cbranch_scc1 L_w_s7_noh")
spin_init()
lab("L_w_h5b")
for kq in range(4):
    e(f"buffer_load_dword v{72+kq}, v210, s[{R_WS}:{R_WS+3}], s{sA0+kq} offen sc1")
e("s_waitcnt vmcnt(0)")
umax_chain(11, range(72, 76))
e("v_cmp_eq_u32 vcc, -1, v11")
spin_retry_if_vcc("L_w_h5b", "L_w_h5bd", 2)
lab("L_w_h5bd")
e("v_lshlrev_b32 v70, 16, v70")
e("v_add_f32 v72, v72, v73")
e("v_add_f32 v74, v74, v75")
e("v_add_f32 v70, v70, v72")
e("v_add_f32 v70, v70, v74")
e("v_cvt_pk_bf16_f32 v70, v70, v70")
e("v_and_b32 v70, 0xffff0000, v70")
lab("L_w_s7_noh")
spin_init()
lab("L_w_h6")
for i in range(6):
    e(f"buffer_load_dwordx4 v[{20+4*i}:{23+4*i}], v212, s[{R_WS}:{R_WS+3}], s{sB} offen offset:{512*i} sc1")
e(f"s_cmp_ge_u32 s{sWAVE}, 6")
e("s_cbranch_scc1 L_w_h6_skip")
e(f"buffer_load_dwordx4 v[44:47], v212, s[{R_WS}:{R_WS+3}], s{sB} offen offset:{512*6} sc1")
lab("L_w_h6_skip")
e("s_waitcnt vmcnt(0)")
umax_chain(11, range(20, 48))
e("v_cmp_eq_u32 vcc, -1, v11")
spin_retry_if_vcc("L_w_h6", "L_w_h6d", 2)
lab("L_w_h6d")
ts(10)
for i in range(7):
    for ct in range(2):
        d = 60 + 4 * ct
        cc = "0" if i == 0 else f"v[{d}:{d+3}]"
        r = 100 + 8 * i + 4 * ct
        e(f"v_mfma_f32_16x16x32_bf16 v[{d}:{d+3}], v[{20+4*i}:{23+4*i}], v[{r}:{r+3}], {cc}")
e(f"v_cmp_gt_u32 vcc, 16, v{vL}")
e("s_nop 6")
exec_save_and()
e("ds_write_b32 v213, v60")
e("ds_write_b32 v213, v61 offset:128")
e("ds_write_b32 v213, v64 offset:64")
e("ds_write_b32 v213, v65 offset:192")
exec_restore()
e("s_waitcnt lgkmcnt(0)")
barrier()
e(f"s_cmp_lg_u32 s{sWAVE}, 0")
e("s_cbranch_scc1 L_w_fin")
for i in range(8):
    e(f"ds_read_b32 v{20+i}, v214 offset:{256*i}")
e("s_waitcnt lgkmcnt(0)")
e("v_add_f32 v20, v20, v21")
e("v_add_f32 v22, v22, v23")
e("v_add_f32 v24, v24, v25")
e("v_add_f32 v26, v26, v27")
e("v_add_f32 v20, v20, v22")
e("v_add_f32 v24, v24, v26")
e("v_add_f32 v20, v20, v70")
e("v_add_f32 v20, v20, v24")
e("v_cvt_pk_bf16_f32 v20, v20, v20")
e(f"buffer_store_short v20, v211, s[{R_C}:{R_C+3}], s{sKQ} offen")
ts(11)
lab("L_w_fin")
ts_flush(12)
e("s_endpgm")

LA_C = 0
LA_Q = 131072
LA_P = LA_Q
LA_MX = LA_Q + 8192
LA_LS = LA_Q + 8704
LA_O = 0
LA_WUV = 32768
LA_CX = 65536
LA_CF = 73728
LA_STG = 74752

lab("L_arole")
c("================= A role =================")
e(f"s_sub_u32 s{sIDX}, s2, 128")
e(f"s_lshr_b32 s{sB}, s{sIDX}, 6")
e(f"s_and_b32 s{sS}, s{sIDX}, 63")
e(f"s_and_b32 s{sH}, s{sIDX}, 31")
e(f"s_lshr_b32 s{sJQ}, s{sIDX}, 5")
srd(R_A, P_CKV, 2 * 8192 * 1024)
e(f"v_lshrrev_b32 v4, 4, v{vL}")
e(f"v_and_b32 v5, 15, v{vL}")
e(f"v_lshlrev_b32 v6, 4, v{vL}")
e(f"s_cmp_ge_u32 s{sIDX}, {NCLR}")
e("s_cbranch_scc1 L_a_noclr")
e(f"s_cmp_lg_u32 s{sWAVE}, 0")
e("s_cbranch_scc1 L_a_noclr")
for j in range(4):
    e(f"v_mov_b32 v{8+j}, -1")
e(f"s_lshl_b32 s{sT0}, s{sIDX}, 13")
e(f"s_add_u32 s{sT1}, s{sT0}, 4096")
for j in range(4):
    e(f"buffer_store_dwordx4 v[8:11], v6, s[{R_WS}:{R_WS+3}], s{sT0} offen offset:{1024*j} sc1")
for j in range(4):
    e(f"buffer_store_dwordx4 v[8:11], v6, s[{R_WS}:{R_WS+3}], s{sT1} offen offset:{1024*j} sc1")
e("s_waitcnt vmcnt(0)")
e(f"s_mov_b32 s{sT0}, 1")
e(f"s_atomic_add s{sT0}, s[{P_DBG}:{P_DBG+1}], 0")
lab("L_a_noclr")
e(f"s_lshl_b32 s{sT0}, s{sIDX}, 7")
e(f"s_lshl_b32 s{sT1}, s{sWAVE}, 4")
e(f"s_add_u32 s{sT0}, s{sT0}, s{sT1}")
e(f"s_lshl_b32 s{sT0}, s{sT0}, 10")
e(f"s_lshl_b32 s{sT1}, s{sWAVE}, 14")
def gsw(i):
    return ((i & 3) << 2) | ((i >> 2) & 3)
for i in range(16):
    e(f"v_xor_b32 v7, {gsw(i) << 4}, v6")
    e(f"s_add_u32 m0, s{sT1}, {1024*i + LA_C}")
    e(f"s_add_u32 s{sT2}, s{sT0}, {1024*i}")
    e(f"buffer_load_dwordx4 v7, s[{R_A}:{R_A+3}], s{sT2} offen nt lds")
ts(1)
e("v_lshlrev_b32 v240, 4, v0")
e(f"s_lshl_b32 s{sA0}, s{sB}, 15")
e(f"s_add_u32 s{sA0}, s{sA0}, {WS_QA}")
for i in range(1, 4):
    e(f"s_add_u32 s{sA0+i}, s{sA0}, {8192*i}")
def qa_gather():
    e(f"buffer_load_dword v7, v3, s[{R_DBG}:{R_DBG+3}], 0 offen sc1")
    for i in range(4):
        e(f"buffer_load_dwordx4 v[{20+4*i}:{23+4*i}], v240, s[{R_WS}:{R_WS+3}], s{sA0+i} offen sc1")
qa_gather()
e("v_and_b32 v8, 3, v5")
e("v_lshrrev_b32 v9, 2, v5")
e("v_lshl_or_b32 v8, v8, 2, v9")
e(f"v_lshrrev_b32 v9, 5, v{vL}")
e(f"v_and_b32 v17, 31, v{vL}")
e("v_lshlrev_b32 v10, 10, v17")
e(f"s_and_b32 s{sT0}, s{sWAVE}, 3")
e(f"s_lshl_b32 s{sT0}, s{sT0}, 15")
for kk in range(8):
    e(f"v_add_u32 v11, {2*kk}, v9")
    e("v_xor_b32 v11, v11, v8")
    e("v_lshl_add_u32 v11, v11, 4, v10")
    e(f"v_add_u32 v{200+kk}, s{sT0}, v11")
    e(f"v_add_u32 v{208+kk}, {LA_Q}, v11")
e(f"v_bfe_u32 v11, v{vL}, 2, 2")
e("v_lshrrev_b32 v12, 1, v4")
e("v_lshl_or_b32 v13, v11, 2, v12")
e("v_lshl_add_u32 v14, v12, 2, v11")
e("v_lshlrev_b32 v14, 10, v14")
e(f"s_lshr_b32 s{sT0}, s{sWAVE}, 1")
e(f"s_lshl_b32 s{sT0}, s{sT0}, 8")
e(f"v_add_u32 v14, s{sT0}, v14")
e(f"v_and_b32 v15, 1, v{vL}")
e("v_lshl_add_u32 v14, v15, 3, v14")
e("v_and_b32 v15, 1, v4")
e("v_lshlrev_b32 v15, 1, v15")
e(f"v_bfe_u32 v16, v{vL}, 1, 1")
e("v_or_b32 v15, v15, v16")
e(f"s_and_b32 s{sT0}, s{sWAVE}, 1")
e(f"s_lshl_b32 s{sT0}, s{sT0}, 3")
e(f"v_or_b32 v15, s{sT0}, v15")
e("v_xor_b32 v15, v15, v13")
for ct in range(2):
    for rd in range(2):
        x = (4 * ct) ^ (2 * rd)
        r = 216 + 4 * ct + 2 * rd
        e(f"v_xor_b32 v16, {x}, v15")
        e(f"v_lshl_add_u32 v{r}, v16, 4, v14")
        if rd:
            e(f"v_add_u32 v{r}, 8192, v{r}")
        e(f"v_add_u32 v{r+1}, 0x10000, v{r}")
e(f"s_and_b32 s{sT0}, s{sWAVE}, 3")
e(f"s_lshl_b32 s{sT0}, s{sT0}, 2")
e(f"s_lshr_b32 s{sT1}, s{sWAVE}, 2")
e(f"s_or_b32 s{sT0}, s{sT0}, s{sT1}")
e(f"v_xor_b32 v241, s{sT0}, v{vL}")
e("v_lshlrev_b32 v241, 4, v241")
e(f"s_lshl_b32 s{sT1}, s{sWAVE}, 10")
e(f"s_add_u32 s{sT1}, s{sT1}, {LA_Q}")
e(f"v_add_u32 v241, s{sT1}, v241")
e("v_xor_b32 v242, 32, v241")
e("v_lshlrev_b32 v243, 4, v17")
e(f"v_add_u32 v243, {LA_MX}, v243")
e(f"s_and_b32 s{sT0}, s{sWAVE}, 3")
e(f"s_lshl_b32 s{sT1}, s{sT0}, 2")
e(f"v_add_u32 v244, s{sT1}, v243")
e(f"v_add_u32 v246, {LA_P}, v6")
e(f"s_lshl_b32 s{sT1}, s{sT0}, 11")
e(f"v_add_u32 v245, s{sT1}, v246")
e("v_lshl_add_u32 v12, v9, 3, v10")
e(f"s_lshl_b32 s{sT0}, s{sWAVE}, 3")
e(f"v_xor_b32 v13, s{sT0}, v5")
for j in range(8):
    e(f"v_xor_b32 v14, {j}, v13")
    e(f"v_lshl_add_u32 v{160+j}, v14, 4, v12")
e(f"s_lshl_b32 s{sT0}, s{sWAVE}, 2")
for i in range(4):
    e(f"s_add_u32 s{sT2}, s{sT0}, {i}")
    e(f"s_and_b32 s{sT3}, s{sT2}, 15")
    e(f"v_xor_b32 v14, s{sT3}, v{vL}")
    e("v_lshlrev_b32 v14, 4, v14")
    e(f"s_lshl_b32 s{sT2}, s{sT2}, 10")
    e(f"v_add_u32 v{168+i}, s{sT2}, v14")
e("v_lshlrev_b32 v172, 14, v4")
e("v_lshl_add_u32 v172, v5, 4, v172")
e(f"s_lshl_b32 s{sCS}, s{sB}, 5")
e(f"s_add_u32 s{sCS}, s{sCS}, s{sT0}")
e(f"s_lshl_b32 s{sCS}, s{sCS}, 16")
e(f"s_lshl_b32 s{sT2}, s{sS}, 8")
e(f"s_add_u32 s{sCS}, s{sCS}, s{sT2}")
e(f"s_add_u32 s{sCS}, s{sCS}, {WS_OP}")
e("v_lshlrev_b32 v173, 3, v17")
e(f"s_lshl_b32 s{sKQ}, s{sIDX}, 8")
e(f"s_add_u32 s{sKQ}, s{sKQ}, {WS_ST}")
srd(R_B, P_WUV, 512 * 8192)
e("v_lshlrev_b32 v174, 4, v5")
e("v_lshlrev_b32 v14, 5, v4")
e("v_xor_b32 v174, v174, v14")
e("v_lshl_add_u32 v174, v4, 13, v174")
e("v_xor_b32 v175, 128, v174")
e(f"s_lshl_b32 s{sT0}, s{sWAVE}, 12")
e(f"s_add_u32 s{sT0}, s{sT0}, {LA_WUV}")
e(f"v_add_u32 v176, s{sT0}, v6")
e("v_and_b32 v14, 1, v4")
e("v_lshl_or_b32 v14, v14, 2, v11")
e(f"v_xor_b32 v14, s{sWAVE}, v14")
e("v_lshlrev_b32 v14, 5, v14")
e("v_lshl_add_u32 v177, v4, 3, v11")
e("v_lshl_add_u32 v177, v177, 8, v14")
e(f"v_and_b32 v14, 3, v{vL}")
e("v_lshl_add_u32 v177, v14, 3, v177")
e(f"v_add_u32 v177, {LA_WUV}, v177")
e(f"v_lshlrev_b32 v178, 8, v{vL}")
e("v_lshlrev_b32 v179, 8, v4")
e("v_lshl_add_u32 v179, v5, 4, v179")
e(f"v_and_b32 v14, 3, v{vL}")
e("v_lshl_add_u32 v14, v4, 2, v14")
e("v_lshl_add_u32 v14, v14, 2, v11")
e("v_lshlrev_b32 v180, 2, v14")
e(f"s_lshr_b32 s{sT0}, s{sWAVE}, 2")
e(f"s_lshl_b32 s{sT0}, s{sT0}, 8")
e(f"s_add_u32 s{sT0}, s{sT0}, {LA_CF}")
e(f"v_add_u32 v180, s{sT0}, v180")
e(f"s_and_b32 s{sT1}, s{sWAVE}, 3")
e(f"s_lshl_b32 s{sT1}, s{sT1}, 6")
e(f"s_add_u32 s{sT0}, s{sT0}, s{sT1}")
e("v_lshlrev_b32 v181, 4, v4")
e(f"v_add_u32 v181, s{sT0}, v181")
e(f"s_lshl_b32 s{sT0}, s{sWAVE}, 2")
e(f"v_add_u32 v14, s{sT0}, v4")
e("v_and_b32 v15, 15, v14")
e("v_xor_b32 v15, v15, v5")
e("v_lshlrev_b32 v15, 4, v15")
e("v_lshl_add_u32 v182, v14, 8, v15")
e(f"v_add_u32 v182, {LA_CX}, v182")
e("v_lshlrev_b32 v14, 8, v5")
e(f"v_add_u32 v14, {LA_CX}, v14")
for ks in range(4):
    e(f"v_add_u32 v15, {4*ks}, v4")
    e("v_xor_b32 v15, v15, v5")
    e(f"v_lshl_add_u32 v{184+ks}, v15, 4, v14")
e("v_lshlrev_b32 v188, 8, v9")
e("v_lshl_add_u32 v188, v5, 1, v188")
e(f"s_lshl_b32 s{sT0}, s{sWAVE}, 5")
e(f"s_add_u32 s{sT0}, s{sT0}, {LA_STG}")
e(f"v_add_u32 v188, s{sT0}, v188")
e("v_and_b32 v189, 511, v6")
e(f"v_add_u32 v189, {LA_STG}, v189")
e("v_lshlrev_b32 v190, 13, v4")
e("v_lshl_add_u32 v190, v5, 4, v190")
spin_init()
lab("L_a_h2")
e("s_waitcnt vmcnt(0)")
umax_chain(11, range(20, 36))
e("v_cmp_eq_u32 vcc, -1, v11")
e(f"v_cmp_gt_u32 s[{sEX}:{sEX+1}], {NCLR}, v7")
e("s_nop 1")
e(f"s_or_b64 s[{sEX}:{sEX+1}], vcc, s[{sEX}:{sEX+1}]")
e("s_cbranch_scc0 L_a_h2d")
e("s_sleep 6")
e(f"s_add_u32 s{sSPIN}, s{sSPIN}, 1")
e(f"s_cmp_ge_u32 s{sSPIN}, {SPIN_MAX}")
e("s_cbranch_scc1 L_a_h2d")
qa_gather()
e("s_branch L_a_h2")
lab("L_a_h2d")
ts(2)
for i in range(4):
    a = "v241" if (i & 1) == 0 else "v242"
    e(f"ds_write_b128 {a}, v[{20+4*i}:{23+4*i}] offset:{8192*i}")
e(f"s_lshl_b32 s{sT0}, s{sJQ}, 7")
e(f"s_lshl_b32 s{sT1}, s{sWAVE}, 4")
e(f"s_add_u32 s{sT0}, s{sT0}, s{sT1}")
e(f"s_lshl_b32 s{sT0}, s{sT0}, 13")
e(f"s_lshl_b32 s{sT1}, s{sH}, 8")
e(f"s_add_u32 s{sT0}, s{sT0}, s{sT1}")
for i in range(4):
    a = "v174" if (i >> 1) == 0 else "v175"
    if i:
        e(f"s_add_u32 s{sT0}, s{sT0}, {4*8192}")
    e(f"buffer_load_dwordx4 v[{224+4*i}:{227+4*i}], {a}, s[{R_B}:{R_B+3}], s{sT0} offen nt")
e("s_waitcnt lgkmcnt(0)")
barrier()
ts(3)
e(f"s_cmp_ge_u32 s{sWAVE}, 4")
e("s_cbranch_scc1 L_a_s_done")
DEPTH = 6
def s_read(ks):
    slot = ks % 8
    j, kk = ks >> 3, ks & 7
    e(f"ds_read_b128 v[{20+8*slot}:{23+8*slot}], v{200+kk} offset:{256*j}")
    e(f"ds_read_b128 v[{24+8*slot}:{27+8*slot}], v{208+kk} offset:{256*j}")
for ks in range(DEPTH):
    s_read(ks)
for ks in range(32):
    outstanding = min(DEPTH, 32 - ks)
    e(f"s_waitcnt lgkmcnt({2*(outstanding-1)})")
    slot = ks % 8
    cc = "0" if ks == 0 else "v[100:115]"
    e(f"v_mfma_f32_32x32x16_bf16 v[100:115], v[{20+8*slot}:{23+8*slot}], v[{24+8*slot}:{27+8*slot}], {cc}")
    if ks + DEPTH < 32:
        s_read(ks + DEPTH)
lab("L_a_s_done")
barrier()
ts(4)
e(f"s_cmp_ge_u32 s{sWAVE}, 4")
e("s_cbranch_scc1 L_a_mx_done")
e("s_nop 9")
e("v_max3_f32 v20, v100, v101, v102")
e("v_max3_f32 v21, v103, v104, v105")
e("v_max3_f32 v22, v106, v107, v108")
e("v_max3_f32 v23, v109, v110, v111")
e("v_max3_f32 v24, v112, v113, v114")
e("v_max3_f32 v20, v20, v21, v115")
e("v_max3_f32 v22, v22, v23, v24")
e("v_max_f32 v20, v20, v22")
e("v_mov_b32 v21, v20")
e("s_nop 1")
e("v_permlane32_swap_b32 v21, v20")
e("s_nop 0")
e("v_max_f32 v20, v20, v21")
e("ds_write_b32 v244, v20")
e("s_waitcnt lgkmcnt(0)")
lab("L_a_mx_done")
barrier()
e(f"s_cmp_ge_u32 s{sWAVE}, 4")
e("s_cbranch_scc1 L_a_p_done")
e("ds_read_b128 v[24:27], v243")
e("s_waitcnt lgkmcnt(0)")
e("v_max3_f32 v247, v24, v25, v26")
e("v_max_f32 v247, v247, v27")
for i in range(16):
    e(f"v_sub_f32 v{100+i}, v{100+i}, v247")
    if i >= 1:
        e(f"v_exp_f32 v{100+i-1}, v{100+i-1}")
e("v_exp_f32 v115, v115")
for i in range(4):
    e(f"v_cvt_pk_bf16_f32 v{28+i}, v{100+2*i}, v{101+2*i}")
e("ds_write_b128 v245, v[28:31]")
for i in range(4, 8):
    e(f"v_cvt_pk_bf16_f32 v{28+i}, v{100+2*i}, v{101+2*i}")
e("ds_write_b128 v245, v[32:35] offset:1024")
e("s_waitcnt lgkmcnt(0)")
lab("L_a_p_done")
barrier()
ts(5)
def pv_read(kk):
    base = 64 + 8 * (kk % 4)
    hi = kk >> 2
    off = (kk & 3) * 16384
    e(f"ds_read_b128 v[{32+4*kk}:{35+4*kk}], v246 offset:{1024*kk}")
    for ct in range(2):
        for rd in range(2):
            r = base + 4 * ct + 2 * rd
            e(f"ds_read_b64_tr_b16 v[{r}:{r+1}], v{216+4*ct+2*rd+hi} offset:{off}")
PD = 3
for kk in range(PD):
    pv_read(kk)
for i in range(8):
    e(f"v_add_f32 v{20+i}, v{100+2*i}, v{101+2*i}")
for i in range(4):
    e(f"v_add_f32 v{20+i}, v{20+2*i}, v{21+2*i}")
e("v_add_f32 v20, v20, v21")
e("v_add_f32 v22, v22, v23")
e("v_add_f32 v20, v20, v22")
e("v_mov_b32 v21, v20")
e("s_nop 1")
e("v_permlane32_swap_b32 v21, v20")
e("s_nop 0")
e("v_add_f32 v248, v20, v21")
for kk in range(8):
    outstanding = min(PD, 8 - kk)
    e(f"s_waitcnt lgkmcnt({5*(outstanding-1)})")
    base = 64 + 8 * (kk % 4)
    for ct in range(2):
        d = 100 + 16 * ct
        cc = "0" if kk == 0 else f"v[{d}:{d+15}]"
        e(f"v_mfma_f32_32x32x16_bf16 v[{d}:{d+15}], v[{base+4*ct}:{base+4*ct+3}], v[{32+4*kk}:{35+4*kk}], {cc}")
    if kk + PD < 8:
        pv_read(kk + PD)
e(f"s_cmp_ge_u32 s{sWAVE}, 4")
e("s_cbranch_scc1 L_a_ls_done")
e(f"ds_write_b32 v244, v248 offset:{LA_LS - LA_MX}")
lab("L_a_ls_done")
barrier()
ts(6)
e("s_nop 7")
for ct in range(2):
    for i4 in range(4):
        d = 100 + 16 * ct + 4 * i4
        t = 20 + 2 * (4 * ct + i4)
        e(f"v_cvt_pk_bf16_f32 v{t}, v{d}, v{d+1}")
        e(f"v_cvt_pk_bf16_f32 v{t+1}, v{d+2}, v{d+3}")
        e(f"ds_write_b64 v{160+4*ct+i4}, v[{t}:{t+1}] offset:{LA_O}")
e("s_waitcnt lgkmcnt(0)")
barrier()
for i in range(4):
    e(f"ds_read_b128 v[{40+4*i}:{43+4*i}], v{168+i} offset:{LA_O}")
e(f"ds_read_b128 v[24:27], v243 offset:{LA_LS - LA_MX}")
for i in range(4):
    e(f"s_waitcnt lgkmcnt({4-i})")
    if i:
        e(f"s_add_u32 s{sCS}, s{sCS}, 65536")
    e(f"buffer_store_dwordx4 v[{40+4*i}:{43+4*i}], v172, s[{R_WS}:{R_WS+3}], s{sCS} offen sc1")
ts(7)
e("s_waitcnt vmcnt(4)")
for i in range(4):
    e(f"ds_write_b128 v176, v[{224+4*i}:{227+4*i}] offset:{1024*i}")
e("v_add_f32 v24, v24, v25")
e("v_add_f32 v26, v26, v27")
e("v_add_f32 v25, v24, v26")
e("v_min_u32 v24, -2, v247")
e("v_min_u32 v25, -2, v25")
e(f"v_cmp_gt_u32 vcc, 32, v{vL}")
e("s_waitcnt vmcnt(0) lgkmcnt(0)")
barrier()
ts(8)
e(f"s_cmp_lg_u32 s{sWAVE}, 0")
e("s_cbranch_scc1 L_a_st_done")
exec_save_and()
e(f"buffer_store_dwordx2 v[24:25], v173, s[{R_WS}:{R_WS+3}], s{sKQ} offen sc1")
exec_restore()
lab("L_a_st_done")
for ks in range(4):
    e(f"ds_read_b64_tr_b16 v[{100+4*ks}:{101+4*ks}], v177 offset:{ks*8192}")
    e(f"ds_read_b64_tr_b16 v[{102+4*ks}:{103+4*ks}], v177 offset:{ks*8192 + 1024}")
e(f"s_lshr_b32 s{sT0}, s{sWAVE}, 2")
e(f"s_lshl_b32 s{sA0}, s{sT0}, 14")
e(f"s_lshl_b32 s{sT1}, s{sH}, 3")
e(f"s_add_u32 s{sA0}, s{sA0}, s{sT1}")
e(f"s_add_u32 s{sA0}, s{sA0}, {WS_ST}")
e(f"s_lshl_b32 s{sA1}, s{sT0}, 5")
e(f"s_add_u32 s{sA1}, s{sA1}, s{sH}")
e(f"s_lshl_b32 s{sA1}, s{sA1}, 2")
e(f"s_add_u32 s{sA1}, s{sA1}, s{sJQ}")
e(f"s_lshl_b32 s{sA1}, s{sA1}, 6")
e(f"s_and_b32 s{sT3}, s{sWAVE}, 3")
e(f"s_lshl_b32 s{sT1}, s{sT3}, 4")
e(f"s_add_u32 s{sA1}, s{sA1}, s{sT1}")
e(f"s_lshl_b32 s{sA1}, s{sA1}, 8")
e(f"s_add_u32 s{sA1}, s{sA1}, {WS_OP}")
e(f"s_lshl_b32 s{sA2}, s{sJQ}, 14")
e(f"s_lshl_b32 s{sT1}, s{sH}, 8")
e(f"s_add_u32 s{sA2}, s{sA2}, s{sT1}")
e(f"s_add_u32 s{sA2}, s{sA2}, {WS_CP}")
e(f"s_cmp_lg_u32 s{sT3}, 1")
e("s_cbranch_scc1 L_a_h3d")
spin_init()
lab("L_a_h3")
e(f"buffer_load_dwordx2 v[14:15], v178, s[{R_WS}:{R_WS+3}], s{sA0} offen sc1")
e("s_waitcnt vmcnt(0)")
e("v_max_u32 v11, v14, v15")
e("v_cmp_eq_u32 vcc, -1, v11")
spin_retry_if_vcc("L_a_h3", "L_a_h3d", 1)
lab("L_a_h3d")
barrier()
ts(9)
for i in range(4):
    e(f"buffer_load_dwordx4 v[{20+4*i}:{23+4*i}], v179, s[{R_WS}:{R_WS+3}], s{sA1} offen offset:{1024*i} sc1")
e(f"s_cmp_lg_u32 s{sT3}, 1")
e("s_cbranch_scc1 L_a_cf_done")
e("v_mov_b32 v16, v14")
allreduce("max", 16, 17)
e("v_sub_f32 v16, v14, v16")
e("v_exp_f32 v16, v16")
e("s_nop 0")
e("v_mul_f32 v18, v16, v15")
allreduce("add", 18, 17)
e("v_rcp_f32 v18, v18")
e("s_nop 0")
e("v_mul_f32 v16, v16, v18")
e("ds_write_b32 v180, v16")
e("s_waitcnt lgkmcnt(0)")
lab("L_a_cf_done")
barrier()
e("ds_read_b128 v[40:43], v181")
e("s_waitcnt lgkmcnt(0)")
for i in range(4):
    e(f"s_waitcnt vmcnt({3-i})")
    for j in range(4):
        src = 20 + 4 * i + j
        e(f"v_lshlrev_b32 v{44+2*j}, 16, v{src}")
        e(f"v_and_b32 v{45+2*j}, 0xffff0000, v{src}")
    for j in range(8):
        if i == 0:
            e(f"v_mul_f32 v{52+j}, v{40+i}, v{44+j}")
        else:
            e(f"v_fmac_f32 v{52+j}, v{40+i}, v{44+j}")
for j in range(4):
    e(f"v_cvt_pk_bf16_f32 v{60+j}, v{52+2*j}, v{53+2*j}")
e("ds_write_b128 v182, v[60:63]")
e("s_waitcnt lgkmcnt(0)")
barrier()
ts(10)
for ks in range(4):
    e(f"ds_read_b128 v[{20+8*ks}:{23+8*ks}], v{184+ks}")
    e(f"ds_read_b128 v[{24+8*ks}:{27+8*ks}], v{184+ks} offset:4096")
for ks in range(4):
    e(f"s_waitcnt lgkmcnt({2*(3-ks)})")
    c0 = "0" if ks == 0 else "v[60:63]"
    c1 = "0" if ks == 0 else "v[64:67]"
    e(f"v_mfma_f32_16x16x32_bf16 v[60:63], v[{20+8*ks}:{23+8*ks}], v[{100+4*ks}:{103+4*ks}], {c0}")
    e(f"v_mfma_f32_16x16x32_bf16 v[64:67], v[{24+8*ks}:{27+8*ks}], v[{100+4*ks}:{103+4*ks}], {c1}")
e(f"v_cmp_gt_u32 vcc, 32, v{vL}")
e("s_nop 6")
e("v_add_f32 v60, v60, v61")
e("v_add_f32 v62, v62, v63")
e("v_add_f32 v64, v64, v65")
e("v_add_f32 v66, v66, v67")
e("v_add_f32 v60, v60, v62")
e("v_add_f32 v64, v64, v66")
e("s_nop 1")
e("v_permlane32_swap_b32 v60, v64")
e("s_nop 0")
e("v_add_f32 v60, v60, v64")
e("v_mov_b32 v61, v60")
e("s_nop 1")
e("v_permlane16_swap_b32 v61, v60")
e("s_nop 0")
e("v_add_f32 v60, v60, v61")
e("v_cvt_pk_bf16_f32 v60, v60, v60")
e("ds_write_b16 v188, v60")
e("s_waitcnt lgkmcnt(0)")
barrier()
e(f"s_cmp_lg_u32 s{sWAVE}, 0")
e("s_cbranch_scc1 L_a_fin")
e("ds_read_b128 v[60:63], v189")
e("s_waitcnt lgkmcnt(0)")
for i in range(4):
    e(f"v_min_u32 v{60+i}, -2, v{60+i}")
exec_save_and()
e(f"buffer_store_dwordx4 v[60:63], v190, s[{R_WS}:{R_WS+3}], s{sA2} offen sc1")
exec_restore()
ts(11)
lab("L_a_fin")
ts_flush(12)
lab("L_end")
e("s_endpgm")

tail = [
    '.section .rodata,"a"',
    ".p2align 6",
    f".amdhsa_kernel {NAME}_kernel",
    "  .amdhsa_next_free_vgpr 256",
    "  .amdhsa_next_free_sgpr 102",
    "  .amdhsa_accum_offset 256",
    "  .amdhsa_group_segment_fixed_size 0",
    "  .amdhsa_kernarg_size 104",
    "  .amdhsa_user_sgpr_count 2",
    "  .amdhsa_user_sgpr_kernarg_segment_ptr 1",
    "  .amdhsa_system_sgpr_workgroup_id_x 1",
    ".end_amdhsa_kernel",
]
open(OUT, "w").write("\n".join(head + L + tail) + "\n")
print("wrote", OUT, len(L), "lines")
```

```python
import sys

NAME = "sequential_preLN__compressed_kv_cla__glu_gated_swiglu__decode"
TS = int(sys.argv[2]) if len(sys.argv) > 2 else 0
OUT = sys.argv[1] if len(sys.argv) > 1 else f"cdna_kernels/{NAME}.s"

WS_QP = 0x00000
WS_QA = 0x10000
WS_ST = 0x20000
WS_CP = 0x28000
WS_HP = 0x38000
WS_ACT = 0x3D000
T5MAP = int(sys.argv[5]) if len(sys.argv) > 5 else 1
WS_LD = 0x3F000
NF = int(sys.argv[3]) if len(sys.argv) > 3 else 4
USE_LD = int(sys.argv[4]) if len(sys.argv) > 4 else 1
NCLR = 32
WS_OP = 0x100000
WS_TS = 0x800000
WS_SIZE = 0x10000000
SPIN_MAX = 40000

import struct
def fl(x):
    return '0x%08x' % struct.unpack('<I', struct.pack('<f', x))[0]
L = []
def e(s):
    L.append("    " + s)
def lab(s):
    L.append(s + ":")
def c(s):
    L.append("    ; " + s)

_uid = [0]
def uid(p):
    _uid[0] += 1
    return f"{p}_{_uid[0]}"

sWAVE = 3
sIDX = 4
sH = 5
sJQ = 6
sT0 = 7
P_X, P_CKV, P_WQ, P_WUK, P_WUV, P_WO, P_BX, P_W1, P_W3, P_W2, P_OUT, P_DBG, P_WS = [8 + 2 * i for i in range(13)]
sSPIN = 34
sT1 = 35
R_WS = 36
R_A = 40
R_B = 44
R_C = 48
R_DBG = 52
sT2, sT3, sT4, sT5 = 56, 57, 58, 59
sEX = 60
sB = 62
sS = 63
sCS = 64
sKQ = 65
sTSB = 70

def srd(r, p, nbytes):
    e(f"s_mov_b32 s{r}, s{p}")
    e(f"s_and_b32 s{r+1}, s{p+1}, 0xffff")
    e(f"s_mov_b32 s{r+2}, {nbytes:#x}")
    e(f"s_mov_b32 s{r+3}, 0x00020000")

_tsn = [0]
def ts(i):
    if TS:
        e(f"s_memrealtime s[{sTSB+2*i}:{sTSB+2*i+1}]")

def ts_flush(nslots):
    if not TS:
        return
    if TS == 3:
        l1 = uid("L_tsf")
        e("s_waitcnt lgkmcnt(0)")
        e(f"s_cmp_lg_u32 s{sWAVE}, 0")
        e(f"s_cbranch_scc1 {l1}")
        l2 = uid("L_tsg")
        e("s_cmp_eq_u32 s2, 94")
        e(f"s_cbranch_scc1 {l2}")
        e("s_cmp_lg_u32 s2, 200")
        e(f"s_cbranch_scc1 {l1}")
        lab(l2)
        e("v_mov_b32 v250, 0")
        e("s_cmp_eq_u32 s2, 94")
        e(f"s_cselect_b32 s{sT1}, 4, 32")
        for k, (a, b) in enumerate(zip([1, 2, 4, 5, 6, 10, 11, 11], [1, 2, 3, 6, 8, 9, 10, 11])):
            e("s_cmp_eq_u32 s2, 94")
            e(f"s_cselect_b32 s{sT0}, s{sTSB+2*a}, s{sTSB+2*b}")
            e(f"s_sub_u32 s{sT0}, s{sT0}, s{sTSB}")
            e(f"v_mov_b32 v251, s{sT0}")
            e(f"s_mov_b64 s[{sEX}:{sEX+1}], exec")
            e("s_mov_b64 exec, 1")
            if k == 7:
                e("s_cmp_eq_u32 s2, 94")
                e(f"s_cselect_b32 s{sT1}, 28, s{sT1}")
            e(f"buffer_store_dword v251, v250, s[{R_DBG}:{R_DBG+3}], s{sT1} offen")
            e(f"s_mov_b64 exec, s[{sEX}:{sEX+1}]")
            e(f"s_add_u32 s{sT1}, s{sT1}, 4")
        lab(l1)
        return
    l1 = uid("L_tsf")
    e("s_waitcnt lgkmcnt(0)")
    e(f"s_cmp_lg_u32 s{sWAVE}, 0")
    e(f"s_cbranch_scc1 {l1}")
    e("v_mov_b32 v250, 0")
    for i in range(nslots):
        e(f"v_mov_b32 v251, s{sTSB+2*i}")
        e(f"s_lshl_b32 s{sT0}, s2, 6")
        e(f"s_add_u32 s{sT0}, s{sT0}, {WS_TS + 4*i:#x}")
        e(f"s_mov_b64 s[{sEX}:{sEX+1}], exec")
        e("s_mov_b64 exec, 1")
        e(f"buffer_store_dword v251, v250, s[{R_WS}:{R_WS+3}], s{sT0} offen")
        e(f"s_mov_b64 exec, s[{sEX}:{sEX+1}]")
        e("s_nop 1")
    lab(l1)

def allreduce(op, v, t):
    for pat in ("quad_perm:[1,0,3,2]", "quad_perm:[2,3,0,1]", "row_half_mirror", "row_mirror"):
        e("s_nop 1")
        e(f"v_{op}_f32_dpp v{v}, v{v}, v{v} {pat} row_mask:0xf bank_mask:0xf")
    e(f"v_mov_b32 v{t}, v{v}")
    e("s_nop 1")
    e(f"v_permlane16_swap_b32 v{t}, v{v}")
    e("s_nop 0")
    e(f"v_{op}_f32 v{v}, v{v}, v{t}")
    e(f"v_mov_b32 v{t}, v{v}")
    e("s_nop 1")
    e(f"v_permlane32_swap_b32 v{t}, v{v}")
    e("s_nop 0")
    e(f"v_{op}_f32 v{v}, v{v}, v{t}")

def umax_chain(dst, regs):
    regs = list(regs)
    e(f"v_max3_u32 v{dst}, v{regs[0]}, v{regs[1]}, v{regs[2]}")
    i = 3
    while i < len(regs):
        if i + 1 < len(regs):
            e(f"v_max3_u32 v{dst}, v{dst}, v{regs[i]}, v{regs[i+1]}")
            i += 2
        else:
            e(f"v_max_u32 v{dst}, v{dst}, v{regs[i]}")
            i += 1

def spin_init():
    e(f"s_mov_b32 s{sSPIN}, 0")

def spin_retry_if_vcc(top, done, sleep=0):
    e(f"s_cbranch_vccz {done}")
    if sleep:
        e(f"s_sleep {sleep}")
    e(f"s_add_u32 s{sSPIN}, s{sSPIN}, 1")
    e(f"s_cmp_lt_u32 s{sSPIN}, {SPIN_MAX}")
    e(f"s_cbranch_scc1 {top}")

def barrier():
    e("s_barrier")

vL = 2

hdr = open(f"cdna_kernels/{NAME}.s.ref").read().split("\n")
head = []
for line in hdr:
    if line.startswith("; @launch"):
        head.append("; @launch grid=(256,1,1) block=(512,1,1) lds=163840")
        break
    head.append(line)
head += [
    '.amdgcn_target "amdgcn-amd-amdhsa--gfx950"',
    ".text",
    f".globl {NAME}_kernel",
    ".p2align 8",
    f".type {NAME}_kernel,@function",
    f"{NAME}_kernel:",
]

e("s_cmp_ge_u32 s2, 256")
e("s_cbranch_scc1 L_end")
ts(0)
e("s_load_dwordx16 s[8:23], s[0:1], 0")
e("s_load_dwordx8 s[24:31], s[0:1], 64")
e("s_load_dwordx2 s[32:33], s[0:1], 96")
e("v_lshrrev_b32 v1, 6, v0")
e(f"v_and_b32 v{vL}, 63, v0")
e(f"v_readfirstlane_b32 s{sWAVE}, v1")
e("v_mov_b32 v3, 0")
e("s_waitcnt lgkmcnt(0)")
e(f"s_load_dword s101, s[{P_DBG}:{P_DBG+1}], 64")
srd(R_WS, P_WS, WS_SIZE)
srd(R_DBG, P_DBG, 256)
e("s_cmp_ge_u32 s2, 128")
e("s_cbranch_scc1 L_arole")


LW_WQ = 0
LW_XN = 40960
LW_STG = 43520
LW_RED = 131072
LW_H = 135168
LW_STAT = 139264
sA0, sA1, sA2, sA3 = 66, 67, 68, 69

def exec_save_and(mask="vcc"):
    e(f"s_and_saveexec_b64 s[{sEX}:{sEX+1}], {mask}")
def exec_restore():
    e(f"s_mov_b64 exec, s[{sEX}:{sEX+1}]")

c("================= W role =================")
LW_WUK = 49152
LW_QPL = 81920
e(f"s_mov_b32 s{sIDX}, s2")
e(f"s_and_b32 s{sH}, s2, 31")
e(f"s_lshr_b32 s{sJQ}, s2, 5")
e(f"v_lshrrev_b32 v4, 4, v{vL}")
e(f"v_and_b32 v5, 15, v{vL}")
e(f"s_cmp_ge_u32 s{sIDX}, {NCLR}")
e("s_cbranch_scc1 L_w_noclr")
e("v_lshlrev_b32 v6, 4, v0")
for j in range(4):
    e(f"v_mov_b32 v{8+j}, -1")
e(f"s_lshl_b32 s{sT0}, s{sIDX}, 13")
e(f"s_cmp_ge_u32 s{sIDX}, 8")
e("s_cbranch_scc1 L_w_clr_lin")
e("v_and_b32 v6, 0x7ff, v6")
e(f"s_lshr_b32 s{sT1}, s{sWAVE}, 1")
e(f"s_lshl_b32 s{sT1}, s{sT1}, 14")
e(f"s_lshl_b32 s{sT0}, s{sIDX}, 11")
e(f"s_add_u32 s{sT0}, s{sT0}, s{sT1}")
lab("L_w_clr_lin")
e(f"buffer_store_dwordx4 v[8:11], v6, s[{R_WS}:{R_WS+3}], s{sT0} offen sc1")
barrier()
lab("L_w_noclr")
srd(R_C, P_WUK, 512 * 8192)
e("v_xor_b32 v228, v5, v4")
e("v_lshlrev_b32 v228, 4, v228")
e("v_lshl_add_u32 v228, v4, 13, v228")
e(f"s_lshl_b32 s{sA1}, s{sJQ}, 7")
e(f"s_lshl_b32 s{sT1}, s{sWAVE}, 4")
e(f"s_add_u32 s{sA1}, s{sA1}, s{sT1}")
e(f"s_lshl_b32 s{sA1}, s{sA1}, 13")
e(f"s_lshl_b32 s{sT1}, s{sH}, 8")
e(f"s_add_u32 s{sA1}, s{sA1}, s{sT1}")
e(f"s_lshl_b32 s{sT1}, s{sWAVE}, 12")
for i in range(4):
    e(f"v_xor_b32 v18, {64*i}, v228")
    e(f"s_add_u32 m0, s{sT1}, {LW_WUK + 1024*i}")
    e(f"s_add_u32 s{sT4}, s{sA1}, {4*8192*i}")
    e(f"buffer_load_dwordx4 v18, s[{R_C}:{R_C+3}], s{sT4} offen nt lds")
ts(1)
e(f"s_cmp_ge_u32 s{sIDX}, {NCLR}")
e("s_cbranch_scc1 L_w_noclr2")
e("s_waitcnt vmcnt(4)")
ts(3)
barrier()
ts(8)
e(f"s_cmp_lg_u32 s{sWAVE}, 0")
e("s_cbranch_scc1 L_w_noclr2")
e(f"s_mov_b32 s{sT0}, 1")
e(f"s_cmp_ge_u32 s{sIDX}, 8")
e("s_cbranch_scc1 L_w_clr_b")
e(f"s_lshl_b32 s{sT1}, s{sIDX}, 2")
e(f"s_add_u32 s{sT1}, s{sT1}, 132")
e(f"s_atomic_add s{sT0}, s[{P_DBG}:{P_DBG+1}], s{sT1}")
e("s_branch L_w_noclr2")
lab("L_w_clr_b")
e(f"s_atomic_add s{sT0}, s[{P_DBG}:{P_DBG+1}], 4 glc")
e("s_waitcnt lgkmcnt(0)")
ts(9)
e(f"s_cmp_lg_u32 s{sT0}, {NCLR-9}")
e("s_cbranch_scc1 L_w_noclr2")
e(f"s_movk_i32 s{sT0}, 0x100")
e(f"s_atomic_add s{sT0}, s[{P_DBG}:{P_DBG+1}], 128")
lab("L_w_noclr2")
e(f"v_bfe_u32 v200, v{vL}, 2, 2")
e(f"v_and_b32 v201, 3, v{vL}")
e("v_lshl_add_u32 v202, v4, 3, v200")
e(f"v_lshlrev_b32 v204, 4, v{vL}")
e("v_and_b32 v208, 511, v204")
e(f"s_lshl_b32 s{sA2}, s{sH}, 11")
e("v_lshlrev_b32 v10, 1, v4")
e("v_xor_b32 v10, v10, v5")
e("v_lshlrev_b32 v10, 4, v10")
e("v_lshl_add_u32 v205, v4, 8, v10")
e(f"v_add_u32 v205, {LW_QPL}, v205")
e("v_xor_b32 v219, 128, v205")
e(f"v_bfe_u32 v11, v{vL}, 2, 1")
e("v_lshl_add_u32 v206, v201, 1, v11")
e("v_lshlrev_b32 v10, 1, v206")
e("v_lshlrev_b32 v11, 8, v206")
e(f"v_add_u32 v11, {LW_QPL}, v11")
for ks in range(4):
    e(f"v_add_u32 v12, {4*ks}, v4")
    e("v_xor_b32 v12, v12, v10")
    e(f"v_lshl_add_u32 v{220+ks}, v12, 4, v11")
e("v_lshlrev_b32 v11, 8, v5")
e(f"s_lshl_b32 s{sT1}, s{sWAVE}, 12")
e(f"s_add_u32 s{sT1}, s{sT1}, {LW_WUK}")
e(f"v_add_u32 v11, s{sT1}, v11")
for ks in range(4):
    e(f"v_add_u32 v12, {4*ks}, v4")
    e("v_xor_b32 v12, v12, v5")
    e(f"v_lshl_add_u32 v{224+ks}, v12, 4, v11")
e("v_lshlrev_b32 v207, 8, v4")
e("v_lshl_add_u32 v207, v5, 1, v207")
e(f"s_lshl_b32 s{sT0}, s{sWAVE}, 5")
e(f"v_add_u32 v207, s{sT0}, v207")
e("v_lshlrev_b32 v209, 15, v4")
e("v_lshl_add_u32 v209, v5, 4, v209")
e(f"s_lshl_b32 s{sA3}, s{sH}, 10")
e(f"s_lshl_b32 s{sT1}, s{sJQ}, 8")
e(f"s_add_u32 s{sA3}, s{sA3}, s{sT1}")
e(f"s_add_u32 s{sA3}, s{sA3}, {WS_QA}")
e("s_waitcnt vmcnt(0)")
ts(2)
for ks in range(4):
    e(f"ds_read_b128 v[{20+4*ks}:{23+4*ks}], v{224+ks}")
e(f"s_cmp_lg_u32 s{sWAVE}, 7")
e("s_cbranch_scc1 L_w_notcomm")
e(f"s_and_b32 s{sT0}, s{sH}, 7")
e(f"s_lshl_b32 s{sT0}, s{sT0}, 2")
spin_init()
lab("L_w_poll")
e(f"buffer_load_dword v10, v3, s[{R_DBG}:{R_DBG+3}], s{sT0} offen offset:132 sc1")
e("s_waitcnt vmcnt(0)")
e("v_cmp_eq_u32 vcc, 0, v10")
spin_retry_if_vcc("L_w_poll", "L_w_polld", 2)
lab("L_w_polld")
spin_init()
lab("L_w_h1")
e(f"buffer_load_dwordx4 v[40:43], v204, s[{R_WS}:{R_WS+3}], s{sA2} offen sc1")
e(f"buffer_load_dwordx4 v[44:47], v204, s[{R_WS}:{R_WS+3}], s{sA2} offen offset:1024 sc1")
e(f"buffer_load_dword v10, v3, s[{R_DBG}:{R_DBG+3}], 0 offen offset:128 sc1")
e("s_waitcnt vmcnt(0)")
umax_chain(11, range(40, 48))
e("v_add_u32 v10, -1, v10")
e("v_max_u32 v11, v11, v10")
e("v_cmp_eq_u32 vcc, -1, v11")
spin_retry_if_vcc("L_w_h1", "L_w_h1d", 0)
lab("L_w_h1d")
e("ds_write_b128 v205, v[40:43]")
e("ds_write_b128 v219, v[44:47] offset:1024")
lab("L_w_notcomm")
e(f"v_cmp_gt_u32 vcc, 32, v{vL}")
e("s_waitcnt lgkmcnt(0)")
barrier()
ts(4)
for ks in range(4):
    e(f"ds_read_b128 v[{40+4*ks}:{43+4*ks}], v{220+ks}")
SCALE = (128 ** -0.5) * 1.4426950408889634
e(f"s_mov_b32 s{sT1}, {fl(SCALE)}")
for ks in range(4):
    e(f"s_waitcnt lgkmcnt({3-ks})")
    cc = "0" if ks == 0 else "v[60:63]"
    e(f"v_mfma_f32_16x16x32_bf16 v[60:63], v[{40+4*ks}:{43+4*ks}], v[{20+4*ks}:{23+4*ks}], {cc}")
e("s_nop 7")
e("v_add_f32 v60, v60, v61")
e("v_add_f32 v62, v62, v63")
e("v_add_f32 v60, v60, v62")
e(f"v_mul_f32 v60, s{sT1}, v60")
e("v_cvt_pk_bf16_f32 v60, v60, v60")
exec_save_and()
e(f"ds_write_b16 v207, v60 offset:{LW_STG}")
exec_restore()
e("s_waitcnt lgkmcnt(0)")
barrier()
e(f"s_cmp_lg_u32 s{sWAVE}, 0")
e("s_cbranch_scc1 L_w_qa_done")
e(f"ds_read_b128 v[60:63], v208 offset:{LW_STG}")
e("s_waitcnt lgkmcnt(0)")
for i in range(4):
    e(f"v_min_u32 v{60+i}, -2, v{60+i}")
exec_save_and()
e(f"buffer_store_dwordx4 v[60:63], v209, s[{R_WS}:{R_WS+3}], s{sA3} offen sc1")
exec_restore()
lab("L_w_qa_done")
ts(5)
e(f"s_cmp_ge_u32 s{sIDX}, 114")
e("s_cbranch_scc1 L_w_fin")
if USE_LD:
    e(f"s_cmp_lg_u32 s{sWAVE}, 0")
    e("s_cbranch_scc1 L_w_ldd")
    e(f"s_lshl_b32 s{sT0}, s{sIDX}, 5")
    e(f"s_add_u32 s{sT0}, s{sT0}, {WS_LD}")
    spin_init()
    lab("L_w_ld")
    e(f"buffer_load_dword v10, v3, s[{R_WS}:{R_WS+3}], s{sT0} offen sc1")
    e("s_waitcnt vmcnt(0)")
    e("v_cmp_eq_u32 vcc, -1, v10")
    spin_retry_if_vcc("L_w_ld", "L_w_ldd", 2)
    lab("L_w_ldd")
barrier()
ts(7)
e(f"s_cmp_ge_u32 s{sIDX}, 94")
e("s_cbranch_scc1 L_t7")
e(f"s_cmp_ge_u32 s{sIDX}, 40")
e("s_cbranch_scc1 L_t6")
c("---- T5 ----")
if T5MAP:
    e(f"s_bfe_u32 s{sKQ}, s{sIDX}, 0x20001")
    e(f"s_and_b32 s{sT0}, s{sIDX}, 1")
    e(f"s_mul_i32 s{sT0}, s{sT0}, 5")
    e(f"s_lshr_b32 s{sCS}, s{sIDX}, 3")
    e(f"s_add_u32 s{sCS}, s{sCS}, s{sT0}")
else:
    e(f"s_mul_i32 s{sKQ}, s{sIDX}, 26")
    e(f"s_lshr_b32 s{sKQ}, s{sKQ}, 8")
    e(f"s_mul_i32 s{sT0}, s{sKQ}, 10")
    e(f"s_sub_u32 s{sCS}, s{sIDX}, s{sT0}")
srd(R_B, P_WO, 4096 * 1280)
e(f"v_lshrrev_b32 v9, 3, v{vL}")
e("v_mul_u32_u24 v9, 1280, v9")
e(f"v_and_b32 v10, 7, v{vL}")
e("v_lshl_add_u32 v9, v10, 4, v9")
e(f"s_lshl_b32 s{sT0}, s{sKQ}, 10")
e(f"s_lshl_b32 s{sT1}, s{sWAVE}, 7")
e(f"s_add_u32 s{sT0}, s{sT0}, s{sT1}")
e(f"s_mul_i32 s{sT0}, s{sT0}, 1280")
e(f"s_lshl_b32 s{sT1}, s{sCS}, 7")
e(f"s_add_u32 s{sT0}, s{sT0}, s{sT1}")
e(f"s_lshl_b32 s{sT1}, s{sWAVE}, 14")
for i in range(16):
    e(f"s_add_u32 m0, s{sT1}, {1024*i}")
    e(f"s_add_u32 s{sT2}, s{sT0}, {8*1280*i}")
    e(f"buffer_load_dwordx4 v9, s[{R_B}:{R_B+3}], s{sT2} offen nt lds")
e("v_lshlrev_b32 v9, 7, v202")
e("v_lshl_add_u32 v9, v201, 3, v9")
e(f"v_add_u32 v9, s{sT1}, v9")
e("v_lshlrev_b32 v10, 13, v206")
e("v_lshl_add_u32 v10, v4, 4, v10")
e(f"v_bfe_u32 v11, v{vL}, 3, 1")
e("v_lshl_add_u32 v10, v11, 6, v10")
e(f"s_lshl_b32 s{sA0}, s{sKQ}, 11")
e(f"s_lshl_b32 s{sT1}, s{sWAVE}, 8")
e(f"s_add_u32 s{sA0}, s{sA0}, s{sT1}")
e(f"s_add_u32 s{sA0}, s{sA0}, {WS_CP}")
e("v_and_b32 v12, 1, v4")
e("v_lshlrev_b32 v12, 8, v12")
e("v_lshl_add_u32 v12, v5, 2, v12")
e(f"v_lshrrev_b32 v11, 5, v{vL}")
e("v_lshl_add_u32 v12, v11, 6, v12")
e(f"s_lshl_b32 s{sT0}, s{sWAVE}, 9")
e(f"s_add_u32 s{sT0}, s{sT0}, {LW_RED}")
e(f"v_add_u32 v12, s{sT0}, v12")
e(f"v_lshlrev_b32 v14, 2, v{vL}")
e(f"s_and_b32 s{sT0}, s{sWAVE}, 1")
e(f"s_lshl_b32 s{sT1}, s{sT0}, 8")
e(f"s_add_u32 s{sT1}, s{sT1}, {LW_RED}")
e(f"v_add_u32 v13, s{sT1}, v14")
e(f"s_lshl_b32 s{sA1}, s{sKQ}, 1")
e(f"s_add_u32 s{sA1}, s{sA1}, s{sT0}")
e(f"s_mul_i32 s{sA1}, s{sA1}, 2560")
e(f"s_lshl_b32 s{sT1}, s{sCS}, 8")
e(f"s_add_u32 s{sA1}, s{sA1}, s{sT1}")
e(f"s_add_u32 s{sA1}, s{sA1}, {WS_HP}")
e("s_waitcnt vmcnt(0)")
ts(6)
for ks in range(4):
    for ct in range(4):
        r = 100 + 16 * ks + 4 * ct
        e(f"ds_read_b64_tr_b16 v[{r}:{r+1}], v9 offset:{ks*4096 + ct*32}")
        e(f"ds_read_b64_tr_b16 v[{r+2}:{r+3}], v9 offset:{ks*4096 + ct*32 + 512}")
    e("s_waitcnt lgkmcnt(0)")
e(f"v_cmp_gt_u32 s[{sA2}:{sA3}], 32, v{vL}")
spin_init()
lab("L_w_h4")
for j in range(2):
    e(f"buffer_load_dwordx4 v[{20+4*j}:{23+4*j}], v10, s[{R_WS}:{R_WS+3}], s{sA0} offen offset:{128*j} sc1")
e("s_waitcnt vmcnt(0)")
umax_chain(11, range(20, 28))
e("v_cmp_eq_u32 vcc, -1, v11")
spin_retry_if_vcc("L_w_h4", "L_w_h4d", 0)
lab("L_w_h4d")
ts(10)
for j in range(2):
    for par in range(2):
        for ct in range(4):
            d = 60 + 16 * par + 4 * ct
            cc = "0" if j == 0 else f"v[{d}:{d+3}]"
            r = 100 + 16 * (2 * j + par) + 4 * ct
            e(f"v_mfma_f32_16x16x32_bf16 v[{d}:{d+3}], v[{20+4*j}:{23+4*j}], v[{r}:{r+3}], {cc}")
e("s_nop 0")
for q in range(8):
    d = 60 + 4 * q
    e(f"v_add_f32 v{d}, v{d}, v{d+1}")
    e(f"v_add_f32 v{d+2}, v{d+2}, v{d+3}")
for q in range(8):
    d = 60 + 4 * q
    e(f"v_add_f32 v{d}, v{d}, v{d+2}")
e("s_nop 1")
e("v_permlane32_swap_b32 v76, v64")
e("v_permlane32_swap_b32 v84, v72")
e("s_nop 0")
e("v_add_f32 v60, v60, v64")
e("v_add_f32 v80, v80, v76")
e("v_add_f32 v68, v68, v72")
e("v_add_f32 v88, v88, v84")
e(f"v_cndmask_b32 v60, v80, v60, s[{sA2}:{sA3}]")
e(f"v_cndmask_b32 v68, v88, v68, s[{sA2}:{sA3}]")
e("ds_write_b32 v12, v60")
e("ds_write_b32 v12, v68 offset:128")
e("s_waitcnt lgkmcnt(0)")
barrier()
e(f"s_cmp_ge_u32 s{sWAVE}, 2")
e("s_cbranch_scc1 L_w_fin")
for i in range(8):
    e(f"ds_read_b32 v{20+i}, v13 offset:{512*i}")
e("s_waitcnt lgkmcnt(0)")
e("v_add_f32 v20, v20, v21")
e("v_add_f32 v22, v22, v23")
e("v_add_f32 v24, v24, v25")
e("v_add_f32 v26, v26, v27")
e("v_add_f32 v20, v20, v22")
e("v_add_f32 v24, v24, v26")
e("v_add_f32 v20, v20, v24")
e("v_min_u32 v20, -2, v20")
e(f"buffer_store_dword v20, v14, s[{R_WS}:{R_WS+3}], s{sA1} offen sc1")
ts(11)
e("s_branch L_w_fin")
lab("L_t6")
c("---- T6 ----")
e(f"s_sub_u32 s{sCS}, s{sIDX}, 40")
e(f"s_and_b32 s{sT0}, s{sWAVE}, 1")
e(f"s_cmp_eq_u32 s{sT0}, 0")
e(f"s_cselect_b32 s{R_B}, s{P_W1}, s{P_W3}")
e(f"s_cselect_b32 s{R_B+1}, s{P_W1+1}, s{P_W3+1}")
e(f"s_and_b32 s{R_B+1}, s{R_B+1}, 0xffff")
e(f"s_mov_b32 s{R_B+2}, {640*3456}")
e(f"s_mov_b32 s{R_B+3}, 0x00020000")
e(f"v_lshrrev_b32 v9, 2, v{vL}")
e("v_mul_u32_u24 v9, 3456, v9")
e("v_lshl_add_u32 v9, v201, 4, v9")
e(f"s_lshr_b32 s{sKQ}, s{sWAVE}, 1")
e(f"s_mul_i32 s{sT0}, s{sKQ}, {160*3456}")
e(f"s_lshl_b32 s{sT1}, s{sCS}, 6")
e(f"s_add_u32 s{sT0}, s{sT0}, s{sT1}")
e(f"s_mul_i32 s{sT1}, s{sWAVE}, 10240")
for i in range(10):
    e(f"s_add_u32 m0, s{sT1}, {1024*i}")
    e(f"s_add_u32 s{sT2}, s{sT0}, {16*3456*i}")
    e(f"buffer_load_dwordx4 v9, s[{R_B}:{R_B+3}], s{sT2} offen nt lds")
srd(R_A, P_X, 2560)
e(f"s_lshr_b32 s{sB}, s{sWAVE}, 2")
e(f"s_and_b32 s{sS}, s{sWAVE}, 3")
e(f"v_min_u32 v12, 39, v{vL}")
e("v_lshlrev_b32 v13, 3, v12")
e(f"s_mul_i32 s{sT2}, s{sB}, 1280")
e(f"s_mul_i32 s{sT3}, s{sS}, 320")
e(f"s_add_u32 s{sT2}, s{sT2}, s{sT3}")
e(f"buffer_load_dwordx2 v[14:15], v13, s[{R_A}:{R_A+3}], s{sT2} offen")
e("v_lshlrev_b32 v16, 2, v0")
e("v_mov_b32 v17, 0x3f803f80")
e("v_cmp_gt_u32 vcc, 320, v0")
e(f"v_add_u32 v16, {LW_H + 2560}, v16")
exec_save_and()
e("ds_write_b32 v16, v17")
exec_restore()
e("v_lshlrev_b32 v9, 6, v202")
e("v_lshl_add_u32 v9, v201, 3, v9")
e(f"v_add_u32 v9, s{sT1}, v9")
e("v_lshlrev_b32 v210, 4, v12")
e(f"s_lshl_b32 s{sA0}, s{sT2}, 1")
e(f"s_add_u32 s{sA0}, s{sA0}, {WS_HP}")
for kq in range(1, 4):
    e(f"s_add_u32 s{sA0+kq}, s{sA0}, {5120*kq}")
e(f"s_add_u32 s{sT2}, s{sT2}, {LW_H}")
e(f"v_add_u32 v211, s{sT2}, v13")
e(f"s_lshl_b32 s{sT0}, s{sWAVE}, 3")
e(f"s_add_u32 s{sT0}, s{sT0}, {LW_STAT}")
e(f"v_mov_b32 v212, s{sT0}")
e("v_min_u32 v213, 2, v5")
e("v_mul_u32_u24 v213, 1280, v213")
e("v_lshl_add_u32 v213, v4, 4, v213")
e(f"s_mul_i32 s{sT0}, s{sKQ}, 320")
e(f"s_add_u32 s{sT0}, s{sT0}, {LW_H}")
e(f"v_add_u32 v213, s{sT0}, v213")
e("v_lshlrev_b32 v214, 2, v5")
e(f"s_mul_i32 s{sT0}, s{sWAVE}, 384")
e(f"s_add_u32 s{sT0}, s{sT0}, {LW_RED}")
e(f"v_add_u32 v214, s{sT0}, v214")
e(f"v_lshrrev_b32 v16, 5, v{vL}")
e(f"v_and_b32 v17, 31, v{vL}")
e("v_lshlrev_b32 v215, 7, v16")
e("v_lshl_add_u32 v215, v17, 2, v215")
e(f"v_add_u32 v215, {LW_RED}, v215")
e("v_lshlrev_b32 v216, 2, v17")
e(f"v_add_u32 v216, {LW_RED + 256}, v216")
e("v_lshlrev_b32 v217, 5, v16")
e(f"v_add_u32 v217, {LW_STAT}, v217")
e("v_mul_u32_u24 v218, 3456, v16")
e("v_lshl_add_u32 v218, v17, 1, v218")
e(f"s_lshl_b32 s{sCS}, s{sCS}, 6")
e(f"s_add_u32 s{sCS}, s{sCS}, {WS_ACT}")
e("s_waitcnt vmcnt(0)")
ts(6)
for ks in range(5):
    for ct in range(2):
        r = 100 + 8 * ks + 4 * ct
        e(f"ds_read_b64_tr_b16 v[{r}:{r+1}], v9 offset:{ks*2048 + ct*32}")
        e(f"ds_read_b64_tr_b16 v[{r+2}:{r+3}], v9 offset:{ks*2048 + ct*32 + 256}")
    e("s_waitcnt lgkmcnt(4)")
e("v_lshlrev_b32 v40, 16, v14")
e("v_and_b32 v41, 0xffff0000, v14")
e("v_lshlrev_b32 v42, 16, v15")
e("v_and_b32 v43, 0xffff0000, v15")
e("s_waitcnt lgkmcnt(0)")
spin_init()
lab("L_w_h5")
for kq in range(4):
    e(f"buffer_load_dwordx4 v[{20+4*kq}:{23+4*kq}], v210, s[{R_WS}:{R_WS+3}], s{sA0+kq} offen sc1")
e("s_waitcnt vmcnt(0)")
umax_chain(11, range(20, 36))
e("v_cmp_eq_u32 vcc, -1, v11")
spin_retry_if_vcc("L_w_h5", "L_w_h5d", 0)
lab("L_w_h5d")
ts(10)
for j in range(4):
    e(f"v_add_f32 v{20+j}, v{20+j}, v{24+j}")
    e(f"v_add_f32 v{28+j}, v{28+j}, v{32+j}")
for j in range(4):
    e(f"v_add_f32 v{40+j}, v{40+j}, v{20+j}")
for j in range(4):
    e(f"v_add_f32 v{40+j}, v{40+j}, v{28+j}")
e("v_cvt_pk_bf16_f32 v44, v40, v41")
e("v_cvt_pk_bf16_f32 v45, v42, v43")
e("ds_write_b64 v211, v[44:45]")
e("v_lshlrev_b32 v40, 16, v44")
e("v_and_b32 v41, 0xffff0000, v44")
e("v_lshlrev_b32 v42, 16, v45")
e("v_and_b32 v43, 0xffff0000, v45")
e(f"v_cmp_gt_u32 vcc, 40, v{vL}")
e("v_add_f32 v46, v40, v41")
e("v_add_f32 v47, v42, v43")
e("v_add_f32 v46, v46, v47")
e("v_cndmask_b32 v46, 0, v46, vcc")
e("s_waitcnt lgkmcnt(0)")
barrier()
for ks in range(5):
    e(f"ds_read_b128 v[{20+4*ks}:{23+4*ks}], v213 offset:{64*ks}")
allreduce("add", 46, 47)
e(f"v_mul_f32 v46, {fl(1.0/160.0)}, v46")
for ks in range(5):
    e(f"s_waitcnt lgkmcnt({4-ks})")
    for ct in range(2):
        d = 60 + 4 * ct
        cc = "0" if ks == 0 else f"v[{d}:{d+3}]"
        r = 100 + 8 * ks + 4 * ct
        e(f"v_mfma_f32_16x16x32_bf16 v[{d}:{d+3}], v[{20+4*ks}:{23+4*ks}], v[{r}:{r+3}], {cc}")
for j in range(4):
    e(f"v_sub_f32 v{40+j}, v{40+j}, v46")
e("v_mul_f32 v48, v40, v40")
for j in range(1, 4):
    e(f"v_fmac_f32 v48, v{40+j}, v{40+j}")
e("v_cndmask_b32 v48, 0, v48, vcc")
allreduce("add", 48, 47)
e("v_mov_b32 v47, v48")
e("ds_write_b64 v212, v[46:47]")
e(f"v_cmp_gt_u32 vcc, 16, v{vL}")
exec_save_and()
for ct in range(2):
    for r in range(3):
        e(f"ds_write_b32 v214, v{60+4*ct+r} offset:{128*r + 64*ct}")
exec_restore()
e("s_waitcnt lgkmcnt(0)")
barrier()
e(f"s_cmp_lg_u32 s{sWAVE}, 0")
e("s_cbranch_scc1 L_w_fin")
e("ds_read_b128 v[40:43], v217")
e("ds_read_b128 v[44:47], v217 offset:16")
for w in range(8):
    e(f"ds_read_b32 v{20+w}, v215 offset:{384*w}")
e("s_waitcnt lgkmcnt(8)")
for w in range(8):
    e(f"ds_read_b32 v{28+w}, v216 offset:{384*w}")
e("v_add_f32 v48, v40, v42")
e("v_add_f32 v49, v44, v46")
e("v_add_f32 v50, v41, v43")
e("v_add_f32 v51, v45, v47")
e("v_add_f32 v48, v48, v49")
e("v_add_f32 v49, v50, v51")
e("v_mul_f32 v48, 0.25, v48")
e("v_sub_f32 v40, v40, v48")
e("v_sub_f32 v42, v42, v48")
e("v_sub_f32 v44, v44, v48")
e("v_sub_f32 v46, v46, v48")
e("v_mul_f32 v50, v40, v40")
e("v_mul_f32 v51, v42, v42")
e("v_fmac_f32 v50, v44, v44")
e("v_fmac_f32 v51, v46, v46")
e("v_add_f32 v50, v50, v51")
e("v_fmac_f32 v49, 0x43200000, v50")
e(f"v_mov_b32 v51, {fl(1e-5)}")
e(f"v_fmac_f32 v51, {fl(1.0/640.0)}, v49")
e("v_rsq_f32 v51, v51")
e("s_waitcnt lgkmcnt(8)")
e("v_add_f32 v20, v20, v22")
e("v_add_f32 v24, v24, v26")
e("v_add_f32 v21, v21, v23")
e("v_add_f32 v25, v25, v27")
e("v_add_f32 v20, v20, v24")
e("v_add_f32 v21, v21, v25")
e("s_waitcnt lgkmcnt(0)")
e("v_add_f32 v28, v28, v30")
e("v_add_f32 v32, v32, v34")
e("v_add_f32 v29, v29, v31")
e("v_add_f32 v33, v33, v35")
e("v_add_f32 v28, v28, v32")
e("v_add_f32 v29, v29, v33")
e("v_fma_f32 v20, -v48, v28, v20")
e("v_fma_f32 v21, -v48, v29, v21")
e("v_mul_f32 v20, v20, v51")
e("v_mul_f32 v21, v21, v51")
e("v_mul_f32 v22, 0xbfb8aa3b, v20")
e("v_exp_f32 v22, v22")
e("v_mul_f32 v20, v20, v21")
e("v_add_f32 v22, 1.0, v22")
e("v_rcp_f32 v22, v22")
e("s_nop 0")
e("v_mul_f32 v20, v20, v22")
e("s_nop 1")
e("v_mov_b32_dpp v21, v20 quad_perm:[1,1,3,3] row_mask:0xf bank_mask:0xf")
e("s_nop 0")
e("v_cvt_pk_bf16_f32 v20, v20, v21")
e("v_min_u32 v20, -2, v20")
e(f"s_mov_b64 s[{sEX}:{sEX+1}], exec")
e("s_mov_b32 exec_lo, 0x55555555")
e("s_mov_b32 exec_hi, 0x55555555")
e(f"buffer_store_dword v20, v218, s[{R_WS}:{R_WS+3}], s{sCS} offen sc1")
exec_restore()
ts(11)
e("s_branch L_w_fin")
lab("L_t7")
c("---- T7 ----")
e(f"s_sub_u32 s{sCS}, s{sIDX}, 94")
srd(R_B, P_W2, 1728 * 1280)
e(f"v_lshrrev_b32 v9, 2, v{vL}")
e("v_mul_u32_u24 v9, 1280, v9")
e("v_lshl_add_u32 v9, v201, 4, v9")
e(f"s_mul_i32 s{sT0}, s{sWAVE}, {64*1280}")
e(f"s_lshl_b32 s{sT1}, s{sCS}, 6")
e(f"s_add_u32 s{sT0}, s{sT0}, s{sT1}")
e(f"s_lshl_b32 s{sT1}, s{sWAVE}, 12")
for i in range(4):
    if i == 3:
        e(f"s_cmp_ge_u32 s{sWAVE}, 3")
        e("s_cbranch_scc1 L_t7_dma_done")
    for j in range(4):
        e(f"s_add_u32 m0, s{sT1}, {32768*i + 1024*j}")
        e(f"s_add_u32 s{sT2}, s{sT0}, {(8*64*i + 16*j)*1280}")
        e(f"buffer_load_dwordx4 v9, s[{R_B}:{R_B+3}], s{sT2} offen nt lds")
lab("L_t7_dma_done")
srd(R_A, P_X, 2560)
srd(R_C, P_OUT, 2560)
e(f"v_lshrrev_b32 v16, 5, v{vL}")
e(f"v_and_b32 v17, 31, v{vL}")
e("v_mul_u32_u24 v210, 2560, v16")
e("v_lshl_add_u32 v210, v17, 2, v210")
e("v_mul_u32_u24 v211, 1280, v16")
e("v_lshl_add_u32 v211, v17, 1, v211")
e(f"s_lshl_b32 s{sKQ}, s{sCS}, 6")
e(f"buffer_load_ushort v70, v211, s[{R_A}:{R_A+3}], s{sKQ} offen")
e(f"s_lshl_b32 s{sA0}, s{sCS}, 7")
e(f"s_add_u32 s{sA0}, s{sA0}, {WS_HP}")
for kq in range(1, 4):
    e(f"s_add_u32 s{sA0+kq}, s{sA0}, {5120*kq}")
e("v_lshlrev_b32 v9, 6, v202")
e("v_lshl_add_u32 v9, v201, 3, v9")
e(f"v_add_u32 v9, s{sT1}, v9")
e("v_add_u32 v10, 0x10000, v9")
e(f"v_and_b32 v212, 1, v{vL}")
e("v_mul_u32_u24 v212, 3456, v212")
e("v_lshl_add_u32 v212, v4, 4, v212")
e(f"v_bfe_u32 v11, v{vL}, 1, 1")
e("v_lshl_add_u32 v212, v11, 6, v212")
e(f"s_lshl_b32 s{sB}, s{sWAVE}, 7")
e(f"s_add_u32 s{sB}, s{sB}, {WS_ACT}")
e("v_lshlrev_b32 v213, 2, v5")
e(f"s_lshl_b32 s{sT0}, s{sWAVE}, 8")
e(f"s_add_u32 s{sT0}, s{sT0}, {LW_RED}")
e(f"v_add_u32 v213, s{sT0}, v213")
e(f"v_lshlrev_b32 v214, 2, v{vL}")
e(f"v_add_u32 v214, {LW_RED}, v214")
for j in range(4):
    e(f"v_mov_b32 v{32+j}, 0")
for j in range(16):
    e(f"v_mov_b32 v{148+j}, 0")
e("s_waitcnt vmcnt(0)")
ts(6)
for i in range(4):
    if i == 3:
        e(f"s_cmp_ge_u32 s{sWAVE}, 3")
        e("s_cbranch_scc1 L_t7_frag_done")
    a_ = "v9" if i < 2 else "v10"
    off = (i & 1) * 32768
    for par in range(2):
        for ct in range(2):
            r = 100 + 16 * i + 8 * par + 4 * ct
            e(f"ds_read_b64_tr_b16 v[{r}:{r+1}], {a_} offset:{off + par*2048 + ct*32}")
            e(f"ds_read_b64_tr_b16 v[{r+2}:{r+3}], {a_} offset:{off + par*2048 + ct*32 + 256}")
    e("s_waitcnt lgkmcnt(0)")
lab("L_t7_frag_done")
e(f"s_cmp_lg_u32 s{sWAVE}, 0")
e("s_cbranch_scc1 L_w_s7_noh")
spin_init()
lab("L_w_h5b")
for kq in range(4):
    e(f"buffer_load_dword v{72+kq}, v210, s[{R_WS}:{R_WS+3}], s{sA0+kq} offen sc1")
e("s_waitcnt vmcnt(0)")
umax_chain(11, range(72, 76))
e("v_cmp_eq_u32 vcc, -1, v11")
spin_retry_if_vcc("L_w_h5b", "L_w_h5bd", 1)
lab("L_w_h5bd")
e("v_lshlrev_b32 v70, 16, v70")
e("v_add_f32 v72, v72, v73")
e("v_add_f32 v74, v74, v75")
e("v_add_f32 v70, v70, v72")
e("v_add_f32 v70, v70, v74")
e("v_cvt_pk_bf16_f32 v70, v70, v70")
e("v_and_b32 v70, 0xffff0000, v70")
lab("L_w_s7_noh")
spin_init()
lab("L_w_h6")
for i in range(3):
    e(f"buffer_load_dwordx4 v[{20+4*i}:{23+4*i}], v212, s[{R_WS}:{R_WS+3}], s{sB} offen offset:{1024*i} sc1")
e(f"s_cmp_ge_u32 s{sWAVE}, 3")
e("s_cbranch_scc1 L_w_h6_skip")
e(f"buffer_load_dwordx4 v[32:35], v212, s[{R_WS}:{R_WS+3}], s{sB} offen offset:{1024*3} sc1")
lab("L_w_h6_skip")
e("s_waitcnt vmcnt(0)")
umax_chain(11, range(20, 36))
e("v_cmp_eq_u32 vcc, -1, v11")
spin_retry_if_vcc("L_w_h6", "L_w_h6d", 0)
lab("L_w_h6d")
ts(10)
for i in range(4):
    for par in range(2):
        for ct in range(2):
            d = 40 + 8 * par + 4 * ct
            cc = "0" if i == 0 else f"v[{d}:{d+3}]"
            r = 100 + 16 * i + 8 * par + 4 * ct
            e(f"v_mfma_f32_16x16x32_bf16 v[{d}:{d+3}], v[{20+4*i}:{23+4*i}], v[{r}:{r+3}], {cc}")
e(f"v_cmp_gt_u32 vcc, 16, v{vL}")
e("s_nop 6")
e("v_add_f32 v40, v40, v50")
e("v_add_f32 v41, v41, v51")
e("v_add_f32 v44, v44, v54")
e("v_add_f32 v45, v45, v55")
exec_save_and()
e("ds_write_b32 v213, v40")
e("ds_write_b32 v213, v41 offset:128")
e("ds_write_b32 v213, v44 offset:64")
e("ds_write_b32 v213, v45 offset:192")
exec_restore()
e("s_waitcnt lgkmcnt(0)")
barrier()
e(f"s_cmp_lg_u32 s{sWAVE}, 0")
e("s_cbranch_scc1 L_w_fin")
for i in range(8):
    e(f"ds_read_b32 v{20+i}, v214 offset:{256*i}")
e("s_waitcnt lgkmcnt(0)")
e("v_add_f32 v20, v20, v21")
e("v_add_f32 v22, v22, v23")
e("v_add_f32 v24, v24, v25")
e("v_add_f32 v26, v26, v27")
e("v_add_f32 v20, v20, v22")
e("v_add_f32 v24, v24, v26")
e("v_add_f32 v20, v20, v70")
e("v_add_f32 v20, v20, v24")
e("v_cvt_pk_bf16_f32 v20, v20, v20")
e(f"buffer_store_short v20, v211, s[{R_C}:{R_C+3}], s{sKQ} offen")
ts(11)
lab("L_w_fin")
ts_flush(12)
e("s_endpgm")

LA_C = 0
LA_Q = 131072
LA_P = LA_Q
LA_MX = LA_Q + 8192
LA_LS = LA_Q + 8704
LA_O = 0
LA_WUV = 32768
LA_CX = 65536
LA_CF = 73728
LA_STG = 74752

lab("L_arole")
c("================= A role =================")
LA_WQ = 90112
LA_XN = LA_Q
LA_SQ = LA_Q + 4096
e(f"s_sub_u32 s{sIDX}, s2, 128")
e(f"s_lshr_b32 s{sB}, s{sIDX}, 6")
e(f"s_and_b32 s{sS}, s{sIDX}, 63")
e(f"s_and_b32 s{sH}, s{sIDX}, 31")
e(f"s_lshr_b32 s{sJQ}, s{sIDX}, 5")
srd(R_C, P_X, 2560)
srd(R_B, P_WQ, 640 * 8192)
srd(R_A, P_CKV, 2 * 8192 * 1024)
e(f"v_lshrrev_b32 v4, 4, v{vL}")
e(f"v_and_b32 v5, 15, v{vL}")
e(f"v_lshlrev_b32 v6, 4, v{vL}")
e(f"v_lshlrev_b32 v19, 2, v{vL}")
e(f"s_cmp_ge_u32 s{sWAVE}, 2")
e("s_cbranch_scc1 L_a_nox")
e(f"s_mul_i32 s{sT0}, s{sWAVE}, 1280")
for i in range(5):
    e(f"buffer_load_dword v{12+i}, v19, s[{R_C}:{R_C+3}], s{sT0} offen offset:{256*i}")
lab("L_a_nox")
e("v_lshlrev_b32 v7, 4, v5")
e("v_lshlrev_b32 v18, 5, v4")
e("v_xor_b32 v7, v7, v18")
e("v_lshl_add_u32 v7, v4, 13, v7")
e(f"s_mul_i32 s{sT2}, s{sJQ}, {160*8192}")
e(f"s_lshl_b32 s{sT0}, s{sH}, 8")
e(f"s_add_u32 s{sT2}, s{sT2}, s{sT0}")
e(f"s_mul_i32 s{sT3}, s{sWAVE}, 20")
for i in range(5):
    e(f"s_add_u32 s{sT4}, s{sT3}, {4*i}")
    e(f"s_lshl_b32 s{sT5}, s{sT4}, 4")
    e(f"s_and_b32 s{sT5}, s{sT5}, 128")
    e(f"v_xor_b32 v18, s{sT5}, v7")
    e(f"s_lshl_b32 s{sT5}, s{sT4}, 8")
    e(f"s_add_u32 m0, s{sT5}, {LA_WQ}")
    e(f"s_lshl_b32 s{sT4}, s{sT4}, 13")
    e(f"s_add_u32 s{sT4}, s{sT4}, s{sT2}")
    e(f"buffer_load_dwordx4 v18, s[{R_B}:{R_B+3}], s{sT4} offen nt lds")
e(f"s_and_b32 s{sT0}, s{sWAVE}, 3")
e(f"s_lshl_b32 s{sT0}, s{sT0}, 2")
e(f"s_lshr_b32 s{sT1}, s{sWAVE}, 2")
e(f"s_or_b32 s{sT0}, s{sT0}, s{sT1}")
e(f"v_xor_b32 v145, s{sT0}, v{vL}")
e("v_lshlrev_b32 v145, 4, v145")
e("v_xor_b32 v146, 32, v145")
e(f"s_lshl_b32 s{sCS}, s{sIDX}, 7")
e(f"s_add_u32 s{sCS}, s{sCS}, s{sWAVE}")
e(f"s_lshl_b32 s{sCS}, s{sCS}, 10")
e(f"s_lshl_b32 s{sKQ}, s{sWAVE}, 10")
def c_dma(i):
    e(f"s_add_u32 m0, s{sKQ}, {8192*i + LA_C}")
    e(f"s_add_u32 s{sT2}, s{sCS}, {8192*i}")
    e(f"buffer_load_dwordx4 v{145 + (i & 1)}, s[{R_A}:{R_A+3}], s{sT2} offen nt lds")
e(f"s_cmp_lg_u32 s{sWAVE}, 7")
e("s_cbranch_scc1 L_a_np1")
e(f"s_and_b32 s{sA1}, s{sH}, 7")
e(f"s_lshl_b32 s{sA1}, s{sA1}, 2")
e(f"buffer_load_dword v147, v3, s[{R_DBG}:{R_DBG+3}], s{sA1} offen offset:132 sc1")
lab("L_a_np1")
for i in range(NF):
    c_dma(i)
ts(1)
e(f"s_cmp_ge_u32 s{sWAVE}, 2")
e("s_cbranch_scc1 L_a_noln")
e(f"s_waitcnt vmcnt({5+NF})")
for i in range(5):
    e(f"v_lshlrev_b32 v{20+2*i}, 16, v{12+i}")
    e(f"v_and_b32 v{21+2*i}, 0xffff0000, v{12+i}")
e("v_add_f32 v30, v20, v21")
for i in range(2, 10):
    e(f"v_add_f32 v30, v30, v{20+i}")
allreduce("add", 30, 31)
e(f"v_mul_f32 v30, {fl(1.0/640.0)}, v30")
for i in range(10):
    e(f"v_sub_f32 v{20+i}, v{20+i}, v30")
e("v_mul_f32 v32, v20, v20")
for i in range(1, 10):
    e(f"v_fmac_f32 v32, v{20+i}, v{20+i}")
allreduce("add", 32, 31)
e(f"v_mov_b32 v33, {fl(1e-5)}")
e(f"v_fmac_f32 v33, {fl(1.0/640.0)}, v32")
e("v_rsq_f32 v33, v33")
e("s_nop 0")
for i in range(10):
    e(f"v_mul_f32 v{20+i}, v{20+i}, v33")
for i in range(5):
    e(f"v_cvt_pk_bf16_f32 v{12+i}, v{20+2*i}, v{21+2*i}")
e(f"s_mul_i32 s{sT0}, s{sWAVE}, 1280")
e(f"s_add_u32 s{sT0}, s{sT0}, {LA_XN}")
e(f"v_add_u32 v19, s{sT0}, v19")
for i in range(5):
    e(f"ds_write_b32 v19, v{12+i} offset:{256*i}")
lab("L_a_noln")
e(f"v_bfe_u32 v11, v{vL}, 2, 2")
e("v_and_b32 v10, 1, v4")
e("v_lshl_or_b32 v10, v10, 2, v11")
e(f"v_xor_b32 v10, s{sWAVE}, v10")
e("v_lshlrev_b32 v10, 5, v10")
e("v_lshl_add_u32 v140, v4, 3, v11")
e("v_lshl_add_u32 v140, v140, 8, v10")
e(f"v_and_b32 v10, 3, v{vL}")
e("v_lshl_add_u32 v140, v10, 3, v140")
e(f"v_add_u32 v140, {LA_WQ}, v140")
e(f"v_and_b32 v10, 1, v{vL}")
e("v_mul_u32_u24 v141, 1280, v10")
e("v_lshl_add_u32 v141, v4, 4, v141")
e(f"s_mul_i32 s{sT0}, s{sJQ}, 320")
e(f"s_add_u32 s{sT0}, s{sT0}, {LA_XN}")
e(f"v_add_u32 v141, s{sT0}, v141")
e("v_lshlrev_b32 v142, 8, v10")
e("v_lshl_add_u32 v142, v4, 3, v142")
e(f"s_lshl_b32 s{sT1}, s{sWAVE}, 5")
e(f"s_add_u32 s{sT1}, s{sT1}, {LA_SQ}")
e(f"v_add_u32 v142, s{sT1}, v142")
e("v_and_b32 v144, 511, v6")
e(f"v_add_u32 v143, {LA_SQ}, v144")
e(f"s_lshl_b32 s{sA0}, s{sH}, 2")
e(f"s_add_u32 s{sA0}, s{sA0}, s{sJQ}")
e(f"s_lshl_b32 s{sA0}, s{sA0}, 9")
e("v_cmp_gt_u32 vcc, 2, v5")
e(f"s_waitcnt vmcnt({NF}) lgkmcnt(0)")
barrier()
for ks in range(5):
    e(f"ds_read_b64_tr_b16 v[{20+4*ks}:{21+4*ks}], v140 offset:{ks*8192}")
    e(f"ds_read_b64_tr_b16 v[{22+4*ks}:{23+4*ks}], v140 offset:{ks*8192 + 1024}")
    e(f"ds_read_b128 v[{40+4*ks}:{43+4*ks}], v141 offset:{ks*64}")
for ks in range(5):
    e(f"s_waitcnt lgkmcnt({3*(4-ks)})")
    cc = "0" if ks == 0 else "v[60:63]"
    e(f"v_mfma_f32_16x16x32_bf16 v[60:63], v[{20+4*ks}:{23+4*ks}], v[{40+4*ks}:{43+4*ks}], {cc}")
e("s_nop 7")
e("v_cvt_pk_bf16_f32 v64, v60, v61")
e("v_cvt_pk_bf16_f32 v65, v62, v63")
exec_save_and()
e("ds_write_b64 v142, v[64:65]")
exec_restore()
e("s_waitcnt lgkmcnt(0)")
barrier()
e(f"s_cmp_lg_u32 s{sWAVE}, 7")
e("s_cbranch_scc1 L_a_notcomm")
e("ds_read_b128 v[60:63], v143")
spin_init()
lab("L_a_poll")
e("v_cmp_eq_u32 vcc, 0, v147")
e("s_cbranch_vccz L_a_polld")
e(f"s_add_u32 s{sSPIN}, s{sSPIN}, 1")
e(f"s_cmp_ge_u32 s{sSPIN}, {SPIN_MAX}")
e("s_cbranch_scc1 L_a_polld")
e(f"buffer_load_dword v147, v3, s[{R_DBG}:{R_DBG+3}], s{sA1} offen offset:132 sc1")
e("s_waitcnt vmcnt(0)")
e("s_branch L_a_poll")
lab("L_a_polld")
e(f"v_cmp_gt_u32 vcc, 32, v{vL}")
e("s_waitcnt lgkmcnt(0)")
for i in range(4):
    e(f"v_min_u32 v{60+i}, -2, v{60+i}")
exec_save_and()
e(f"buffer_store_dwordx4 v[60:63], v144, s[{R_WS}:{R_WS+3}], s{sA0} offen sc1")
exec_restore()
lab("L_a_notcomm")
barrier()
if TS:
    ts(11)
for i in range(NF, 16):
    c_dma(i)
barrier()
e("v_lshlrev_b32 v240, 4, v0")
e(f"s_lshl_b32 s{sA0}, s{sB}, 15")
e(f"s_add_u32 s{sA0}, s{sA0}, {WS_QA}")
for i in range(1, 4):
    e(f"s_add_u32 s{sA0+i}, s{sA0}, {8192*i}")
def qa_gather():
    e(f"buffer_load_dword v7, v3, s[{R_DBG}:{R_DBG+3}], 0 offen offset:128 sc1")
    for i in range(4):
        e(f"buffer_load_dwordx4 v[{20+4*i}:{23+4*i}], v240, s[{R_WS}:{R_WS+3}], s{sA0+i} offen sc1")
qa_gather()
if TS == 4:
    ts(12)
e("v_and_b32 v8, 3, v5")
e("v_lshrrev_b32 v9, 2, v5")
e("v_lshl_or_b32 v8, v8, 2, v9")
e(f"v_lshrrev_b32 v9, 5, v{vL}")
e(f"v_and_b32 v17, 31, v{vL}")
e("v_lshlrev_b32 v10, 10, v17")
e(f"s_and_b32 s{sT0}, s{sWAVE}, 3")
e(f"s_lshl_b32 s{sT0}, s{sT0}, 15")
for kk in range(8):
    e(f"v_add_u32 v11, {2*kk}, v9")
    e("v_xor_b32 v11, v11, v8")
    e("v_lshl_add_u32 v11, v11, 4, v10")
    e(f"v_add_u32 v{200+kk}, s{sT0}, v11")
    e(f"v_add_u32 v{208+kk}, {LA_Q}, v11")
e(f"v_bfe_u32 v11, v{vL}, 2, 2")
e("v_lshrrev_b32 v12, 1, v4")
e("v_lshl_or_b32 v13, v11, 2, v12")
e("v_lshl_add_u32 v14, v12, 2, v11")
e("v_lshlrev_b32 v14, 10, v14")
e(f"s_lshr_b32 s{sT0}, s{sWAVE}, 1")
e(f"s_lshl_b32 s{sT0}, s{sT0}, 8")
e(f"v_add_u32 v14, s{sT0}, v14")
e(f"v_and_b32 v15, 1, v{vL}")
e("v_lshl_add_u32 v14, v15, 3, v14")
e("v_and_b32 v15, 1, v4")
e("v_lshlrev_b32 v15, 1, v15")
e(f"v_bfe_u32 v16, v{vL}, 1, 1")
e("v_or_b32 v15, v15, v16")
e(f"s_and_b32 s{sT0}, s{sWAVE}, 1")
e(f"s_lshl_b32 s{sT0}, s{sT0}, 3")
e(f"v_or_b32 v15, s{sT0}, v15")
e("v_xor_b32 v15, v15, v13")
for ct in range(2):
    for rd in range(2):
        x = (4 * ct) ^ (2 * rd)
        r = 216 + 4 * ct + 2 * rd
        e(f"v_xor_b32 v16, {x}, v15")
        e(f"v_lshl_add_u32 v{r}, v16, 4, v14")
        if rd:
            e(f"v_add_u32 v{r}, 8192, v{r}")
        e(f"v_add_u32 v{r+1}, 0x10000, v{r}")
e(f"s_and_b32 s{sT0}, s{sWAVE}, 3")
e(f"s_lshl_b32 s{sT0}, s{sT0}, 2")
e(f"s_lshr_b32 s{sT1}, s{sWAVE}, 2")
e(f"s_or_b32 s{sT0}, s{sT0}, s{sT1}")
e(f"v_xor_b32 v241, s{sT0}, v{vL}")
e("v_lshlrev_b32 v241, 4, v241")
e(f"s_lshl_b32 s{sT1}, s{sWAVE}, 10")
e(f"s_add_u32 s{sT1}, s{sT1}, {LA_Q}")
e(f"v_add_u32 v241, s{sT1}, v241")
e("v_xor_b32 v242, 32, v241")
e("v_lshlrev_b32 v243, 4, v17")
e(f"v_add_u32 v243, {LA_MX}, v243")
e(f"s_and_b32 s{sT0}, s{sWAVE}, 3")
e(f"s_lshl_b32 s{sT1}, s{sT0}, 2")
e(f"v_add_u32 v244, s{sT1}, v243")
e(f"v_add_u32 v246, {LA_P}, v6")
e(f"s_lshl_b32 s{sT1}, s{sT0}, 11")
e(f"v_add_u32 v245, s{sT1}, v246")
e("v_lshl_add_u32 v12, v9, 3, v10")
e(f"s_lshl_b32 s{sT0}, s{sWAVE}, 3")
e(f"v_xor_b32 v13, s{sT0}, v5")
for j in range(8):
    e(f"v_xor_b32 v14, {j}, v13")
    e(f"v_lshl_add_u32 v{160+j}, v14, 4, v12")
e(f"s_lshl_b32 s{sT0}, s{sWAVE}, 2")
for i in range(4):
    e(f"s_add_u32 s{sT2}, s{sT0}, {i}")
    e(f"s_and_b32 s{sT3}, s{sT2}, 15")
    e(f"v_xor_b32 v14, s{sT3}, v{vL}")
    e("v_lshlrev_b32 v14, 4, v14")
    e(f"s_lshl_b32 s{sT2}, s{sT2}, 10")
    e(f"v_add_u32 v{168+i}, s{sT2}, v14")
e("v_lshlrev_b32 v172, 14, v4")
e("v_lshl_add_u32 v172, v5, 4, v172")
e(f"s_lshl_b32 s{sCS}, s{sB}, 5")
e(f"s_add_u32 s{sCS}, s{sCS}, s{sT0}")
e(f"s_lshl_b32 s{sCS}, s{sCS}, 16")
e(f"s_lshl_b32 s{sT2}, s{sS}, 8")
e(f"s_add_u32 s{sCS}, s{sCS}, s{sT2}")
e(f"s_add_u32 s{sCS}, s{sCS}, {WS_OP}")
e("v_lshlrev_b32 v173, 3, v17")
e(f"s_lshl_b32 s{sKQ}, s{sIDX}, 8")
e(f"s_add_u32 s{sKQ}, s{sKQ}, {WS_ST}")
srd(R_B, P_WUV, 512 * 8192)
e("v_lshlrev_b32 v174, 4, v5")
e("v_lshlrev_b32 v14, 5, v4")
e("v_xor_b32 v174, v174, v14")
e("v_lshl_add_u32 v174, v4, 13, v174")
e("v_xor_b32 v175, 128, v174")
e(f"s_lshl_b32 s{sT0}, s{sWAVE}, 12")
e(f"s_add_u32 s{sT0}, s{sT0}, {LA_WUV}")
e(f"v_add_u32 v176, s{sT0}, v6")
e("v_and_b32 v14, 1, v4")
e("v_lshl_or_b32 v14, v14, 2, v11")
e(f"v_xor_b32 v14, s{sWAVE}, v14")
e("v_lshlrev_b32 v14, 5, v14")
e("v_lshl_add_u32 v177, v4, 3, v11")
e("v_lshl_add_u32 v177, v177, 8, v14")
e(f"v_and_b32 v14, 3, v{vL}")
e("v_lshl_add_u32 v177, v14, 3, v177")
e(f"v_add_u32 v177, {LA_WUV}, v177")
e(f"v_lshlrev_b32 v178, 8, v{vL}")
e("v_lshlrev_b32 v179, 8, v4")
e("v_lshl_add_u32 v179, v5, 4, v179")
e(f"v_and_b32 v14, 3, v{vL}")
e("v_lshl_add_u32 v14, v4, 2, v14")
e("v_lshl_add_u32 v14, v14, 2, v11")
e("v_lshlrev_b32 v180, 2, v14")
e(f"s_lshr_b32 s{sT0}, s{sWAVE}, 2")
e(f"s_lshl_b32 s{sT0}, s{sT0}, 8")
e(f"s_add_u32 s{sT0}, s{sT0}, {LA_CF}")
e(f"v_add_u32 v180, s{sT0}, v180")
e(f"s_and_b32 s{sT1}, s{sWAVE}, 3")
e(f"s_lshl_b32 s{sT1}, s{sT1}, 6")
e(f"s_add_u32 s{sT0}, s{sT0}, s{sT1}")
e("v_lshlrev_b32 v181, 4, v4")
e(f"v_add_u32 v181, s{sT0}, v181")
e(f"s_lshl_b32 s{sT0}, s{sWAVE}, 2")
e(f"v_add_u32 v14, s{sT0}, v4")
e("v_and_b32 v15, 15, v14")
e("v_xor_b32 v15, v15, v5")
e("v_lshlrev_b32 v15, 4, v15")
e("v_lshl_add_u32 v182, v14, 8, v15")
e(f"v_add_u32 v182, {LA_CX}, v182")
e("v_lshlrev_b32 v14, 8, v5")
e(f"v_add_u32 v14, {LA_CX}, v14")
for ks in range(4):
    e(f"v_add_u32 v15, {4*ks}, v4")
    e("v_xor_b32 v15, v15, v5")
    e(f"v_lshl_add_u32 v{184+ks}, v15, 4, v14")
e("v_lshlrev_b32 v188, 8, v9")
e("v_lshl_add_u32 v188, v5, 1, v188")
e(f"s_lshl_b32 s{sT0}, s{sWAVE}, 5")
e(f"s_add_u32 s{sT0}, s{sT0}, {LA_STG}")
e(f"v_add_u32 v188, s{sT0}, v188")
e("v_and_b32 v189, 511, v6")
e(f"v_add_u32 v189, {LA_STG}, v189")
e("v_lshlrev_b32 v190, 13, v4")
e("v_lshl_add_u32 v190, v5, 4, v190")
spin_init()
lab("L_a_h2")
e("s_waitcnt vmcnt(0)")
if TS == 4:
    e(f"s_cmp_lg_u32 s{sSPIN}, 0")
    e("s_cbranch_scc1 L_a_h2x")
    ts(13)
    lab("L_a_h2x")
umax_chain(11, range(20, 36))
e("v_cmp_eq_u32 vcc, -1, v11")
e(f"v_cmp_eq_u32 s[{sEX}:{sEX+1}], 0, v7")
e("s_nop 1")
e(f"s_or_b64 s[{sEX}:{sEX+1}], vcc, s[{sEX}:{sEX+1}]")
e("s_cbranch_scc0 L_a_h2d")
e("s_sleep 2")
e(f"s_add_u32 s{sSPIN}, s{sSPIN}, 1")
e(f"s_cmp_ge_u32 s{sSPIN}, {SPIN_MAX}")
e("s_cbranch_scc1 L_a_h2d")
qa_gather()
e("s_branch L_a_h2")
lab("L_a_h2d")
ts(2)
if TS == 4:
    e("s_waitcnt lgkmcnt(0)")
    e(f"v_mov_b32 v8, s{sTSB+24}")
    e(f"v_mov_b32 v9, s{sTSB+26}")
    e(f"v_mov_b32 v10, s{sSPIN}")
    e(f"v_mov_b32 v11, s{sTSB+4}")
    e(f"s_lshl_b32 s{sT0}, s{sIDX}, 3")
    e(f"s_add_u32 s{sT0}, s{sT0}, s{sWAVE}")
    e(f"s_lshl_b32 s{sT0}, s{sT0}, 4")
    e(f"s_add_u32 s{sT0}, s{sT0}, {WS_TS + 0x10000}")
    e(f"s_mov_b64 s[{sEX}:{sEX+1}], exec")
    e("s_mov_b64 exec, 1")
    e(f"buffer_store_dwordx4 v[8:11], v3, s[{R_WS}:{R_WS+3}], s{sT0} offen")
    exec_restore()
    e("s_waitcnt vmcnt(0)")
for i in range(4):
    a = "v241" if (i & 1) == 0 else "v242"
    e(f"ds_write_b128 {a}, v[{20+4*i}:{23+4*i}] offset:{8192*i}")
e(f"s_lshl_b32 s{sT0}, s{sJQ}, 7")
e(f"s_lshl_b32 s{sT1}, s{sWAVE}, 4")
e(f"s_add_u32 s{sT0}, s{sT0}, s{sT1}")
e(f"s_lshl_b32 s{sT0}, s{sT0}, 13")
e(f"s_lshl_b32 s{sT1}, s{sH}, 8")
e(f"s_add_u32 s{sT0}, s{sT0}, s{sT1}")
for i in range(4):
    a = "v174" if (i >> 1) == 0 else "v175"
    if i:
        e(f"s_add_u32 s{sT0}, s{sT0}, {4*8192}")
    e(f"buffer_load_dwordx4 v[{224+4*i}:{227+4*i}], {a}, s[{R_B}:{R_B+3}], s{sT0} offen nt")
e("s_waitcnt lgkmcnt(0)")
barrier()
ts(3)
def ld_marker():
    e(f"s_cmp_lg_u32 s{sWAVE}, 7")
    e("s_cbranch_scc1 L_a_nold")
    e(f"s_lshl_b32 s{sT0}, s{sIDX}, 5")
    e(f"s_add_u32 s{sT0}, s{sT0}, {WS_LD}")
    e(f"s_mov_b64 s[{sEX}:{sEX+1}], exec")
    e("s_mov_b64 exec, 1")
    e(f"buffer_store_dword v3, v3, s[{R_WS}:{R_WS+3}], s{sT0} offen sc1")
    exec_restore()
    lab("L_a_nold")
if USE_LD == 1:
    ld_marker()
e(f"s_cmp_ge_u32 s{sWAVE}, 4")
e("s_cbranch_scc1 L_a_s_done")
DEPTH = 6
def s_read(ks):
    slot = ks % 8
    j, kk = ks >> 3, ks & 7
    e(f"ds_read_b128 v[{20+8*slot}:{23+8*slot}], v{200+kk} offset:{256*j}")
    e(f"ds_read_b128 v[{24+8*slot}:{27+8*slot}], v{208+kk} offset:{256*j}")
for ks in range(DEPTH):
    s_read(ks)
for ks in range(32):
    outstanding = min(DEPTH, 32 - ks)
    e(f"s_waitcnt lgkmcnt({2*(outstanding-1)})")
    slot = ks % 8
    cc = "0" if ks == 0 else "v[100:115]"
    e(f"v_mfma_f32_32x32x16_bf16 v[100:115], v[{20+8*slot}:{23+8*slot}], v[{24+8*slot}:{27+8*slot}], {cc}")
    if ks + DEPTH < 32:
        s_read(ks + DEPTH)
lab("L_a_s_done")
barrier()
ts(4)
e(f"s_cmp_ge_u32 s{sWAVE}, 4")
e("s_cbranch_scc1 L_a_mx_done")
e("s_nop 9")
e("v_max3_f32 v20, v100, v101, v102")
e("v_max3_f32 v21, v103, v104, v105")
e("v_max3_f32 v22, v106, v107, v108")
e("v_max3_f32 v23, v109, v110, v111")
e("v_max3_f32 v24, v112, v113, v114")
e("v_max3_f32 v20, v20, v21, v115")
e("v_max3_f32 v22, v22, v23, v24")
e("v_max_f32 v20, v20, v22")
e("v_mov_b32 v21, v20")
e("s_nop 1")
e("v_permlane32_swap_b32 v21, v20")
e("s_nop 0")
e("v_max_f32 v20, v20, v21")
e("ds_write_b32 v244, v20")
e("s_waitcnt lgkmcnt(0)")
lab("L_a_mx_done")
if USE_LD == 2:
    ld_marker()
barrier()
e(f"s_cmp_ge_u32 s{sWAVE}, 4")
e("s_cbranch_scc1 L_a_p_done")
e("ds_read_b128 v[24:27], v243")
e("s_waitcnt lgkmcnt(0)")
e("v_max3_f32 v247, v24, v25, v26")
e("v_max_f32 v247, v247, v27")
for i in range(16):
    e(f"v_sub_f32 v{100+i}, v{100+i}, v247")
    if i >= 1:
        e(f"v_exp_f32 v{100+i-1}, v{100+i-1}")
e("v_exp_f32 v115, v115")
for i in range(4):
    e(f"v_cvt_pk_bf16_f32 v{28+i}, v{100+2*i}, v{101+2*i}")
e("ds_write_b128 v245, v[28:31]")
for i in range(4, 8):
    e(f"v_cvt_pk_bf16_f32 v{28+i}, v{100+2*i}, v{101+2*i}")
e("ds_write_b128 v245, v[32:35] offset:1024")
e("s_waitcnt lgkmcnt(0)")
lab("L_a_p_done")
barrier()
ts(5)
def pv_read(kk):
    base = 64 + 8 * (kk % 4)
    hi = kk >> 2
    off = (kk & 3) * 16384
    e(f"ds_read_b128 v[{32+4*kk}:{35+4*kk}], v246 offset:{1024*kk}")
    for ct in range(2):
        for rd in range(2):
            r = base + 4 * ct + 2 * rd
            e(f"ds_read_b64_tr_b16 v[{r}:{r+1}], v{216+4*ct+2*rd+hi} offset:{off}")
PD = 3
for kk in range(PD):
    pv_read(kk)
for i in range(8):
    e(f"v_add_f32 v{20+i}, v{100+2*i}, v{101+2*i}")
for i in range(4):
    e(f"v_add_f32 v{20+i}, v{20+2*i}, v{21+2*i}")
e("v_add_f32 v20, v20, v21")
e("v_add_f32 v22, v22, v23")
e("v_add_f32 v20, v20, v22")
e("v_mov_b32 v21, v20")
e("s_nop 1")
e("v_permlane32_swap_b32 v21, v20")
e("s_nop 0")
e("v_add_f32 v248, v20, v21")
for kk in range(8):
    outstanding = min(PD, 8 - kk)
    e(f"s_waitcnt lgkmcnt({5*(outstanding-1)})")
    base = 64 + 8 * (kk % 4)
    for ct in range(2):
        d = 100 + 16 * ct
        cc = "0" if kk == 0 else f"v[{d}:{d+15}]"
        e(f"v_mfma_f32_32x32x16_bf16 v[{d}:{d+15}], v[{base+4*ct}:{base+4*ct+3}], v[{32+4*kk}:{35+4*kk}], {cc}")
    if kk + PD < 8:
        pv_read(kk + PD)
e(f"s_cmp_ge_u32 s{sWAVE}, 4")
e("s_cbranch_scc1 L_a_ls_done")
e(f"ds_write_b32 v244, v248 offset:{LA_LS - LA_MX}")
lab("L_a_ls_done")
barrier()
ts(6)
e("s_nop 7")
for ct in range(2):
    for i4 in range(4):
        d = 100 + 16 * ct + 4 * i4
        t = 20 + 2 * (4 * ct + i4)
        e(f"v_cvt_pk_bf16_f32 v{t}, v{d}, v{d+1}")
        e(f"v_cvt_pk_bf16_f32 v{t+1}, v{d+2}, v{d+3}")
        e(f"ds_write_b64 v{160+4*ct+i4}, v[{t}:{t+1}] offset:{LA_O}")
e("s_waitcnt lgkmcnt(0)")
barrier()
for i in range(4):
    e(f"ds_read_b128 v[{40+4*i}:{43+4*i}], v{168+i} offset:{LA_O}")
e(f"ds_read_b128 v[24:27], v243 offset:{LA_LS - LA_MX}")
for i in range(4):
    e(f"s_waitcnt lgkmcnt({4-i})")
    if i:
        e(f"s_add_u32 s{sCS}, s{sCS}, 65536")
    e(f"buffer_store_dwordx4 v[{40+4*i}:{43+4*i}], v172, s[{R_WS}:{R_WS+3}], s{sCS} offen sc1")
ts(7)
e("s_waitcnt vmcnt(4)")
for i in range(4):
    e(f"ds_write_b128 v176, v[{224+4*i}:{227+4*i}] offset:{1024*i}")
e("v_add_f32 v24, v24, v25")
e("v_add_f32 v26, v26, v27")
e("v_add_f32 v25, v24, v26")
e("v_min_u32 v24, -2, v247")
e("v_min_u32 v25, -2, v25")
e(f"v_cmp_gt_u32 vcc, 32, v{vL}")
e("s_waitcnt vmcnt(0) lgkmcnt(0)")
barrier()
ts(8)
e(f"s_cmp_lg_u32 s{sWAVE}, 0")
e("s_cbranch_scc1 L_a_st_done")
exec_save_and()
e(f"buffer_store_dwordx2 v[24:25], v173, s[{R_WS}:{R_WS+3}], s{sKQ} offen sc1")
exec_restore()
lab("L_a_st_done")
for ks in range(4):
    e(f"ds_read_b64_tr_b16 v[{100+4*ks}:{101+4*ks}], v177 offset:{ks*8192}")
    e(f"ds_read_b64_tr_b16 v[{102+4*ks}:{103+4*ks}], v177 offset:{ks*8192 + 1024}")
e(f"s_lshr_b32 s{sT0}, s{sWAVE}, 2")
e(f"s_lshl_b32 s{sA0}, s{sT0}, 14")
e(f"s_lshl_b32 s{sT1}, s{sH}, 3")
e(f"s_add_u32 s{sA0}, s{sA0}, s{sT1}")
e(f"s_add_u32 s{sA0}, s{sA0}, {WS_ST}")
e(f"s_lshl_b32 s{sA1}, s{sT0}, 5")
e(f"s_add_u32 s{sA1}, s{sA1}, s{sH}")
e(f"s_lshl_b32 s{sA1}, s{sA1}, 2")
e(f"s_add_u32 s{sA1}, s{sA1}, s{sJQ}")
e(f"s_lshl_b32 s{sA1}, s{sA1}, 6")
e(f"s_and_b32 s{sT3}, s{sWAVE}, 3")
e(f"s_lshl_b32 s{sT1}, s{sT3}, 4")
e(f"s_add_u32 s{sA1}, s{sA1}, s{sT1}")
e(f"s_lshl_b32 s{sA1}, s{sA1}, 8")
e(f"s_add_u32 s{sA1}, s{sA1}, {WS_OP}")
e(f"s_lshl_b32 s{sA2}, s{sJQ}, 14")
e(f"s_lshl_b32 s{sT1}, s{sH}, 8")
e(f"s_add_u32 s{sA2}, s{sA2}, s{sT1}")
e(f"s_add_u32 s{sA2}, s{sA2}, {WS_CP}")
e(f"s_cmp_lg_u32 s{sT3}, 1")
e("s_cbranch_scc1 L_a_h3d")
spin_init()
lab("L_a_h3")
e(f"buffer_load_dwordx2 v[14:15], v178, s[{R_WS}:{R_WS+3}], s{sA0} offen sc1")
e("s_waitcnt vmcnt(0)")
e("v_max_u32 v11, v14, v15")
e("v_cmp_eq_u32 vcc, -1, v11")
spin_retry_if_vcc("L_a_h3", "L_a_h3d", 1)
lab("L_a_h3d")
barrier()
ts(9)
for i in range(4):
    e(f"buffer_load_dwordx4 v[{20+4*i}:{23+4*i}], v179, s[{R_WS}:{R_WS+3}], s{sA1} offen offset:{1024*i} sc1")
e(f"s_cmp_lg_u32 s{sT3}, 1")
e("s_cbranch_scc1 L_a_cf_done")
e("v_mov_b32 v16, v14")
allreduce("max", 16, 17)
e("v_sub_f32 v16, v14, v16")
e("v_exp_f32 v16, v16")
e("s_nop 0")
e("v_mul_f32 v18, v16, v15")
allreduce("add", 18, 17)
e("v_rcp_f32 v18, v18")
e("s_nop 0")
e("v_mul_f32 v16, v16, v18")
e("ds_write_b32 v180, v16")
e("s_waitcnt lgkmcnt(0)")
lab("L_a_cf_done")
barrier()
e("ds_read_b128 v[40:43], v181")
e("s_waitcnt lgkmcnt(0)")
for i in range(4):
    e(f"s_waitcnt vmcnt({3-i})")
    for j in range(4):
        src = 20 + 4 * i + j
        e(f"v_lshlrev_b32 v{44+2*j}, 16, v{src}")
        e(f"v_and_b32 v{45+2*j}, 0xffff0000, v{src}")
    for j in range(8):
        if i == 0:
            e(f"v_mul_f32 v{52+j}, v{40+i}, v{44+j}")
        else:
            e(f"v_fmac_f32 v{52+j}, v{40+i}, v{44+j}")
for j in range(4):
    e(f"v_cvt_pk_bf16_f32 v{60+j}, v{52+2*j}, v{53+2*j}")
e("ds_write_b128 v182, v[60:63]")
e("s_waitcnt lgkmcnt(0)")
barrier()
ts(10)
for ks in range(4):
    e(f"ds_read_b128 v[{20+8*ks}:{23+8*ks}], v{184+ks}")
    e(f"ds_read_b128 v[{24+8*ks}:{27+8*ks}], v{184+ks} offset:4096")
for ks in range(4):
    e(f"s_waitcnt lgkmcnt({2*(3-ks)})")
    c0 = "0" if ks == 0 else "v[60:63]"
    c1 = "0" if ks == 0 else "v[64:67]"
    e(f"v_mfma_f32_16x16x32_bf16 v[60:63], v[{20+8*ks}:{23+8*ks}], v[{100+4*ks}:{103+4*ks}], {c0}")
    e(f"v_mfma_f32_16x16x32_bf16 v[64:67], v[{24+8*ks}:{27+8*ks}], v[{100+4*ks}:{103+4*ks}], {c1}")
e(f"v_cmp_gt_u32 vcc, 32, v{vL}")
e("s_nop 6")
e("v_add_f32 v60, v60, v61")
e("v_add_f32 v62, v62, v63")
e("v_add_f32 v64, v64, v65")
e("v_add_f32 v66, v66, v67")
e("v_add_f32 v60, v60, v62")
e("v_add_f32 v64, v64, v66")
e("s_nop 1")
e("v_permlane32_swap_b32 v60, v64")
e("s_nop 0")
e("v_add_f32 v60, v60, v64")
e("v_mov_b32 v61, v60")
e("s_nop 1")
e("v_permlane16_swap_b32 v61, v60")
e("s_nop 0")
e("v_add_f32 v60, v60, v61")
e("v_cvt_pk_bf16_f32 v60, v60, v60")
e("ds_write_b16 v188, v60")
e("s_waitcnt lgkmcnt(0)")
barrier()
e(f"s_cmp_lg_u32 s{sWAVE}, 0")
e("s_cbranch_scc1 L_a_fin")
e("ds_read_b128 v[60:63], v189")
e("s_waitcnt lgkmcnt(0)")
for i in range(4):
    e(f"v_min_u32 v{60+i}, -2, v{60+i}")
exec_save_and()
e(f"buffer_store_dwordx4 v[60:63], v190, s[{R_WS}:{R_WS+3}], s{sA2} offen sc1")
exec_restore()
lab("L_a_fin")
ts_flush(12)
lab("L_end")
e("s_endpgm")

tail = [
    '.section .rodata,"a"',
    ".p2align 6",
    f".amdhsa_kernel {NAME}_kernel",
    "  .amdhsa_next_free_vgpr 256",
    "  .amdhsa_next_free_sgpr 102",
    "  .amdhsa_accum_offset 256",
    "  .amdhsa_group_segment_fixed_size 0",
    "  .amdhsa_kernarg_size 104",
    "  .amdhsa_user_sgpr_count 2",
    "  .amdhsa_user_sgpr_kernarg_segment_ptr 1",
    "  .amdhsa_system_sgpr_workgroup_id_x 1",
    ".end_amdhsa_kernel",
]
open(OUT, "w").write("\n".join(head + L + tail) + "\n")
print("wrote", OUT, len(L), "lines")
```

```python
import sys

NAME = "sequential_preLN__compressed_kv_cla__glu_gated_swiglu__decode"
TS = int(sys.argv[2]) if len(sys.argv) > 2 else 0
OUT = sys.argv[1] if len(sys.argv) > 1 else f"cdna_kernels/{NAME}.s"

WS_QP = 0x00000
WS_QA = 0x10000
WS_ST = 0x20000
WS_CP = 0x28000
WS_HP = 0x38000
WS_ACT = 0x3D000
CODEPF = int(sys.argv[6]) if len(sys.argv) > 6 else 1
T5MAP = int(sys.argv[5]) if len(sys.argv) > 5 else 1
WS_LD = 0x3F000
NF = int(sys.argv[3]) if len(sys.argv) > 3 else 4
USE_LD = int(sys.argv[4]) if len(sys.argv) > 4 else 1
NCLR = 32
WS_OP = 0x100000
WS_TS = 0x800000
WS_SIZE = 0x10000000
SPIN_MAX = 40000

import struct
def fl(x):
    return '0x%08x' % struct.unpack('<I', struct.pack('<f', x))[0]
L = []
def e(s):
    L.append("    " + s)
def lab(s):
    L.append(s + ":")
def c(s):
    L.append("    ; " + s)

_uid = [0]
def uid(p):
    _uid[0] += 1
    return f"{p}_{_uid[0]}"

sWAVE = 3
sIDX = 4
sH = 5
sJQ = 6
sT0 = 7
P_X, P_CKV, P_WQ, P_WUK, P_WUV, P_WO, P_BX, P_W1, P_W3, P_W2, P_OUT, P_DBG, P_WS = [8 + 2 * i for i in range(13)]
sSPIN = 34
sT1 = 35
R_WS = 36
R_A = 40
R_B = 44
R_C = 48
R_DBG = 52
sT2, sT3, sT4, sT5 = 56, 57, 58, 59
sEX = 60
sB = 62
sS = 63
sCS = 64
sKQ = 65
sTSB = 70

def srd(r, p, nbytes):
    e(f"s_mov_b32 s{r}, s{p}")
    e(f"s_and_b32 s{r+1}, s{p+1}, 0xffff")
    e(f"s_mov_b32 s{r+2}, {nbytes:#x}")
    e(f"s_mov_b32 s{r+3}, 0x00020000")

_tsn = [0]
def ts(i):
    if TS:
        e(f"s_memrealtime s[{sTSB+2*i}:{sTSB+2*i+1}]")

def ts_flush(nslots):
    if not TS:
        return
    if TS == 3:
        l1 = uid("L_tsf")
        e("s_waitcnt lgkmcnt(0)")
        e(f"s_cmp_lg_u32 s{sWAVE}, 0")
        e(f"s_cbranch_scc1 {l1}")
        l2 = uid("L_tsg")
        e("s_cmp_eq_u32 s2, 94")
        e(f"s_cbranch_scc1 {l2}")
        e("s_cmp_lg_u32 s2, 200")
        e(f"s_cbranch_scc1 {l1}")
        lab(l2)
        e("v_mov_b32 v250, 0")
        e("s_cmp_eq_u32 s2, 94")
        e(f"s_cselect_b32 s{sT1}, 4, 32")
        for k, (a, b) in enumerate(zip([1, 2, 4, 5, 6, 10, 11, 11], [1, 2, 3, 6, 8, 9, 10, 11])):
            e("s_cmp_eq_u32 s2, 94")
            e(f"s_cselect_b32 s{sT0}, s{sTSB+2*a}, s{sTSB+2*b}")
            e(f"s_sub_u32 s{sT0}, s{sT0}, s{sTSB}")
            e(f"v_mov_b32 v251, s{sT0}")
            e(f"s_mov_b64 s[{sEX}:{sEX+1}], exec")
            e("s_mov_b64 exec, 1")
            if k == 7:
                e("s_cmp_eq_u32 s2, 94")
                e(f"s_cselect_b32 s{sT1}, 28, s{sT1}")
            e(f"buffer_store_dword v251, v250, s[{R_DBG}:{R_DBG+3}], s{sT1} offen")
            e(f"s_mov_b64 exec, s[{sEX}:{sEX+1}]")
            e(f"s_add_u32 s{sT1}, s{sT1}, 4")
        lab(l1)
        return
    l1 = uid("L_tsf")
    e("s_waitcnt lgkmcnt(0)")
    e(f"s_cmp_lg_u32 s{sWAVE}, 0")
    e(f"s_cbranch_scc1 {l1}")
    e("v_mov_b32 v250, 0")
    for i in range(nslots):
        e(f"v_mov_b32 v251, s{sTSB+2*i}")
        e(f"s_lshl_b32 s{sT0}, s2, 6")
        e(f"s_add_u32 s{sT0}, s{sT0}, {WS_TS + 4*i:#x}")
        e(f"s_mov_b64 s[{sEX}:{sEX+1}], exec")
        e("s_mov_b64 exec, 1")
        e(f"buffer_store_dword v251, v250, s[{R_WS}:{R_WS+3}], s{sT0} offen")
        e(f"s_mov_b64 exec, s[{sEX}:{sEX+1}]")
        e("s_nop 1")
    lab(l1)

def allreduce(op, v, t):
    for pat in ("quad_perm:[1,0,3,2]", "quad_perm:[2,3,0,1]", "row_half_mirror", "row_mirror"):
        e("s_nop 1")
        e(f"v_{op}_f32_dpp v{v}, v{v}, v{v} {pat} row_mask:0xf bank_mask:0xf")
    e(f"v_mov_b32 v{t}, v{v}")
    e("s_nop 1")
    e(f"v_permlane16_swap_b32 v{t}, v{v}")
    e("s_nop 0")
    e(f"v_{op}_f32 v{v}, v{v}, v{t}")
    e(f"v_mov_b32 v{t}, v{v}")
    e("s_nop 1")
    e(f"v_permlane32_swap_b32 v{t}, v{v}")
    e("s_nop 0")
    e(f"v_{op}_f32 v{v}, v{v}, v{t}")

def umax_chain(dst, regs):
    regs = list(regs)
    e(f"v_max3_u32 v{dst}, v{regs[0]}, v{regs[1]}, v{regs[2]}")
    i = 3
    while i < len(regs):
        if i + 1 < len(regs):
            e(f"v_max3_u32 v{dst}, v{dst}, v{regs[i]}, v{regs[i+1]}")
            i += 2
        else:
            e(f"v_max_u32 v{dst}, v{dst}, v{regs[i]}")
            i += 1

def spin_init():
    e(f"s_mov_b32 s{sSPIN}, 0")

def spin_retry_if_vcc(top, done, sleep=0):
    e(f"s_cbranch_vccz {done}")
    if sleep:
        e(f"s_sleep {sleep}")
    e(f"s_add_u32 s{sSPIN}, s{sSPIN}, 1")
    e(f"s_cmp_lt_u32 s{sSPIN}, {SPIN_MAX}")
    e(f"s_cbranch_scc1 {top}")

def barrier():
    e("s_barrier")

vL = 2

hdr = open(f"cdna_kernels/{NAME}.s.ref").read().split("\n")
head = []
for line in hdr:
    if line.startswith("; @launch"):
        head.append("; @launch grid=(256,1,1) block=(512,1,1) lds=163840")
        break
    head.append(line)
head += [
    '.amdgcn_target "amdgcn-amd-amdhsa--gfx950"',
    ".text",
    f".globl {NAME}_kernel",
    ".p2align 8",
    f".type {NAME}_kernel,@function",
    f"{NAME}_kernel:",
]

e("s_cmp_ge_u32 s2, 256")
e("s_cbranch_scc1 L_end")
ts(0)
e("s_load_dwordx16 s[8:23], s[0:1], 0")
e("s_load_dwordx8 s[24:31], s[0:1], 64")
e("s_load_dwordx2 s[32:33], s[0:1], 96")
e("v_lshrrev_b32 v1, 6, v0")
e(f"v_and_b32 v{vL}, 63, v0")
e(f"v_readfirstlane_b32 s{sWAVE}, v1")
e("v_mov_b32 v3, 0")
e("s_waitcnt lgkmcnt(0)")
e(f"s_load_dword s101, s[{P_DBG}:{P_DBG+1}], 64")
srd(R_WS, P_WS, WS_SIZE)
srd(R_DBG, P_DBG, 256)
e("s_cmp_ge_u32 s2, 128")
e("s_cbranch_scc1 L_arole")


LW_WQ = 0
LW_XN = 40960
LW_STG = 43520
LW_RED = 131072
LW_H = 135168
LW_STAT = 139264
sA0, sA1, sA2, sA3 = 66, 67, 68, 69

def exec_save_and(mask="vcc"):
    e(f"s_and_saveexec_b64 s[{sEX}:{sEX+1}], {mask}")
def exec_restore():
    e(f"s_mov_b64 exec, s[{sEX}:{sEX+1}]")

c("================= W role =================")
LW_WUK = 49152
LW_QPL = 81920
e(f"s_mov_b32 s{sIDX}, s2")
e(f"s_and_b32 s{sH}, s2, 31")
e(f"s_lshr_b32 s{sJQ}, s2, 5")
e(f"v_lshrrev_b32 v4, 4, v{vL}")
e(f"v_and_b32 v5, 15, v{vL}")
if CODEPF:
    e(f"s_sub_u32 s{sT0}, s{sIDX}, 32")
    e(f"s_cmp_ge_u32 s{sT0}, 16")
    e("s_cbranch_scc1 L_w_nopf")
    e(f"s_getpc_b64 s[{sT2}:{sT3}]")
    lab("L_pc_ref")
    e(f"s_sub_u32 s{sT2}, s{sT2}, L_pc_ref-{NAME}_kernel")
    e(f"s_subb_u32 s{sT3}, s{sT3}, 0")
    e("v_lshlrev_b32 v6, 4, v0")
    for j in range(3):
        if j:
            e("v_add_u32 v6, 0x2000, v6")
        e(f"v_min_u32 v7, L_code_end-{NAME}_kernel-16, v6")
        e(f"global_load_dwordx4 v[{232+4*j}:{235+4*j}], v7, s[{sT2}:{sT3}]")
    lab("L_w_nopf")
e(f"s_cmp_ge_u32 s{sIDX}, {NCLR}")
e("s_cbranch_scc1 L_w_noclr")
e("v_lshlrev_b32 v6, 4, v0")
for j in range(4):
    e(f"v_mov_b32 v{8+j}, -1")
e(f"s_lshl_b32 s{sT0}, s{sIDX}, 13")
e(f"s_cmp_ge_u32 s{sIDX}, 8")
e("s_cbranch_scc1 L_w_clr_lin")
e("v_and_b32 v6, 0x7ff, v6")
e(f"s_lshr_b32 s{sT1}, s{sWAVE}, 1")
e(f"s_lshl_b32 s{sT1}, s{sT1}, 14")
e(f"s_lshl_b32 s{sT0}, s{sIDX}, 11")
e(f"s_add_u32 s{sT0}, s{sT0}, s{sT1}")
lab("L_w_clr_lin")
e(f"buffer_store_dwordx4 v[8:11], v6, s[{R_WS}:{R_WS+3}], s{sT0} offen sc1")
barrier()
lab("L_w_noclr")
srd(R_C, P_WUK, 512 * 8192)
e("v_xor_b32 v228, v5, v4")
e("v_lshlrev_b32 v228, 4, v228")
e("v_lshl_add_u32 v228, v4, 13, v228")
e(f"s_lshl_b32 s{sA1}, s{sJQ}, 7")
e(f"s_lshl_b32 s{sT1}, s{sWAVE}, 4")
e(f"s_add_u32 s{sA1}, s{sA1}, s{sT1}")
e(f"s_lshl_b32 s{sA1}, s{sA1}, 13")
e(f"s_lshl_b32 s{sT1}, s{sH}, 8")
e(f"s_add_u32 s{sA1}, s{sA1}, s{sT1}")
e(f"s_lshl_b32 s{sT1}, s{sWAVE}, 12")
for i in range(4):
    e(f"v_xor_b32 v18, {64*i}, v228")
    e(f"s_add_u32 m0, s{sT1}, {LW_WUK + 1024*i}")
    e(f"s_add_u32 s{sT4}, s{sA1}, {4*8192*i}")
    e(f"buffer_load_dwordx4 v18, s[{R_C}:{R_C+3}], s{sT4} offen nt lds")
ts(1)
e(f"s_cmp_ge_u32 s{sIDX}, {NCLR}")
e("s_cbranch_scc1 L_w_noclr2")
e("s_waitcnt vmcnt(4)")
ts(3)
barrier()
ts(8)
e(f"s_cmp_lg_u32 s{sWAVE}, 0")
e("s_cbranch_scc1 L_w_noclr2")
e(f"s_mov_b32 s{sT0}, 1")
e(f"s_cmp_ge_u32 s{sIDX}, 8")
e("s_cbranch_scc1 L_w_clr_b")
e(f"s_lshl_b32 s{sT1}, s{sIDX}, 2")
e(f"s_add_u32 s{sT1}, s{sT1}, 132")
e(f"s_atomic_add s{sT0}, s[{P_DBG}:{P_DBG+1}], s{sT1}")
e("s_branch L_w_noclr2")
lab("L_w_clr_b")
e(f"s_atomic_add s{sT0}, s[{P_DBG}:{P_DBG+1}], 4 glc")
e("s_waitcnt lgkmcnt(0)")
ts(9)
e(f"s_cmp_lg_u32 s{sT0}, {NCLR-9}")
e("s_cbranch_scc1 L_w_noclr2")
e(f"s_movk_i32 s{sT0}, 0x100")
e(f"s_atomic_add s{sT0}, s[{P_DBG}:{P_DBG+1}], 128")
lab("L_w_noclr2")
e(f"v_bfe_u32 v200, v{vL}, 2, 2")
e(f"v_and_b32 v201, 3, v{vL}")
e("v_lshl_add_u32 v202, v4, 3, v200")
e(f"v_lshlrev_b32 v204, 4, v{vL}")
e("v_and_b32 v208, 511, v204")
e(f"s_lshl_b32 s{sA2}, s{sH}, 11")
e("v_lshlrev_b32 v10, 1, v4")
e("v_xor_b32 v10, v10, v5")
e("v_lshlrev_b32 v10, 4, v10")
e("v_lshl_add_u32 v205, v4, 8, v10")
e(f"v_add_u32 v205, {LW_QPL}, v205")
e("v_xor_b32 v219, 128, v205")
e(f"v_bfe_u32 v11, v{vL}, 2, 1")
e("v_lshl_add_u32 v206, v201, 1, v11")
e("v_lshlrev_b32 v10, 1, v206")
e("v_lshlrev_b32 v11, 8, v206")
e(f"v_add_u32 v11, {LW_QPL}, v11")
for ks in range(4):
    e(f"v_add_u32 v12, {4*ks}, v4")
    e("v_xor_b32 v12, v12, v10")
    e(f"v_lshl_add_u32 v{220+ks}, v12, 4, v11")
e("v_lshlrev_b32 v11, 8, v5")
e(f"s_lshl_b32 s{sT1}, s{sWAVE}, 12")
e(f"s_add_u32 s{sT1}, s{sT1}, {LW_WUK}")
e(f"v_add_u32 v11, s{sT1}, v11")
for ks in range(4):
    e(f"v_add_u32 v12, {4*ks}, v4")
    e("v_xor_b32 v12, v12, v5")
    e(f"v_lshl_add_u32 v{224+ks}, v12, 4, v11")
e("v_lshlrev_b32 v207, 8, v4")
e("v_lshl_add_u32 v207, v5, 1, v207")
e(f"s_lshl_b32 s{sT0}, s{sWAVE}, 5")
e(f"v_add_u32 v207, s{sT0}, v207")
e("v_lshlrev_b32 v209, 15, v4")
e("v_lshl_add_u32 v209, v5, 4, v209")
e(f"s_lshl_b32 s{sA3}, s{sH}, 10")
e(f"s_lshl_b32 s{sT1}, s{sJQ}, 8")
e(f"s_add_u32 s{sA3}, s{sA3}, s{sT1}")
e(f"s_add_u32 s{sA3}, s{sA3}, {WS_QA}")
e("s_waitcnt vmcnt(0)")
ts(2)
for ks in range(4):
    e(f"ds_read_b128 v[{20+4*ks}:{23+4*ks}], v{224+ks}")
e(f"s_cmp_lg_u32 s{sWAVE}, 7")
e("s_cbranch_scc1 L_w_notcomm")
e(f"s_and_b32 s{sT0}, s{sH}, 7")
e(f"s_lshl_b32 s{sT0}, s{sT0}, 2")
spin_init()
lab("L_w_poll")
e(f"buffer_load_dword v10, v3, s[{R_DBG}:{R_DBG+3}], s{sT0} offen offset:132 sc1")
e("s_waitcnt vmcnt(0)")
e("v_cmp_eq_u32 vcc, 0, v10")
spin_retry_if_vcc("L_w_poll", "L_w_polld", 2)
lab("L_w_polld")
spin_init()
lab("L_w_h1")
e(f"buffer_load_dwordx4 v[40:43], v204, s[{R_WS}:{R_WS+3}], s{sA2} offen sc1")
e(f"buffer_load_dwordx4 v[44:47], v204, s[{R_WS}:{R_WS+3}], s{sA2} offen offset:1024 sc1")
e(f"buffer_load_dword v10, v3, s[{R_DBG}:{R_DBG+3}], 0 offen offset:128 sc1")
e("s_waitcnt vmcnt(0)")
umax_chain(11, range(40, 48))
e("v_add_u32 v10, -1, v10")
e("v_max_u32 v11, v11, v10")
e("v_cmp_eq_u32 vcc, -1, v11")
spin_retry_if_vcc("L_w_h1", "L_w_h1d", 0)
lab("L_w_h1d")
e("ds_write_b128 v205, v[40:43]")
e("ds_write_b128 v219, v[44:47] offset:1024")
lab("L_w_notcomm")
e(f"v_cmp_gt_u32 vcc, 32, v{vL}")
e("s_waitcnt lgkmcnt(0)")
barrier()
ts(4)
for ks in range(4):
    e(f"ds_read_b128 v[{40+4*ks}:{43+4*ks}], v{220+ks}")
SCALE = (128 ** -0.5) * 1.4426950408889634
e(f"s_mov_b32 s{sT1}, {fl(SCALE)}")
for ks in range(4):
    e(f"s_waitcnt lgkmcnt({3-ks})")
    cc = "0" if ks == 0 else "v[60:63]"
    e(f"v_mfma_f32_16x16x32_bf16 v[60:63], v[{40+4*ks}:{43+4*ks}], v[{20+4*ks}:{23+4*ks}], {cc}")
e("s_nop 7")
e("v_add_f32 v60, v60, v61")
e("v_add_f32 v62, v62, v63")
e("v_add_f32 v60, v60, v62")
e(f"v_mul_f32 v60, s{sT1}, v60")
e("v_cvt_pk_bf16_f32 v60, v60, v60")
exec_save_and()
e(f"ds_write_b16 v207, v60 offset:{LW_STG}")
exec_restore()
e("s_waitcnt lgkmcnt(0)")
barrier()
e(f"s_cmp_lg_u32 s{sWAVE}, 0")
e("s_cbranch_scc1 L_w_qa_done")
e(f"ds_read_b128 v[60:63], v208 offset:{LW_STG}")
e("s_waitcnt lgkmcnt(0)")
for i in range(4):
    e(f"v_min_u32 v{60+i}, -2, v{60+i}")
exec_save_and()
e(f"buffer_store_dwordx4 v[60:63], v209, s[{R_WS}:{R_WS+3}], s{sA3} offen sc1")
exec_restore()
lab("L_w_qa_done")
ts(5)
e(f"s_cmp_ge_u32 s{sIDX}, 114")
e("s_cbranch_scc1 L_w_fin")
if USE_LD:
    e(f"s_cmp_lg_u32 s{sWAVE}, 0")
    e("s_cbranch_scc1 L_w_ldd")
    e(f"s_lshl_b32 s{sT0}, s{sIDX}, 5")
    e(f"s_add_u32 s{sT0}, s{sT0}, {WS_LD}")
    spin_init()
    lab("L_w_ld")
    e(f"buffer_load_dword v10, v3, s[{R_WS}:{R_WS+3}], s{sT0} offen sc1")
    e("s_waitcnt vmcnt(0)")
    e("v_cmp_eq_u32 vcc, -1, v10")
    spin_retry_if_vcc("L_w_ld", "L_w_ldd", 2)
    lab("L_w_ldd")
barrier()
ts(7)
e(f"s_cmp_ge_u32 s{sIDX}, 94")
e("s_cbranch_scc1 L_t7")
e(f"s_cmp_ge_u32 s{sIDX}, 40")
e("s_cbranch_scc1 L_t6")
c("---- T5 ----")
if T5MAP:
    e(f"s_bfe_u32 s{sKQ}, s{sIDX}, 0x20001")
    e(f"s_and_b32 s{sT0}, s{sIDX}, 1")
    e(f"s_mul_i32 s{sT0}, s{sT0}, 5")
    e(f"s_lshr_b32 s{sCS}, s{sIDX}, 3")
    e(f"s_add_u32 s{sCS}, s{sCS}, s{sT0}")
else:
    e(f"s_mul_i32 s{sKQ}, s{sIDX}, 26")
    e(f"s_lshr_b32 s{sKQ}, s{sKQ}, 8")
    e(f"s_mul_i32 s{sT0}, s{sKQ}, 10")
    e(f"s_sub_u32 s{sCS}, s{sIDX}, s{sT0}")
srd(R_B, P_WO, 4096 * 1280)
e(f"v_lshrrev_b32 v9, 3, v{vL}")
e("v_mul_u32_u24 v9, 1280, v9")
e(f"v_and_b32 v10, 7, v{vL}")
e("v_lshl_add_u32 v9, v10, 4, v9")
e(f"s_lshl_b32 s{sT0}, s{sKQ}, 10")
e(f"s_lshl_b32 s{sT1}, s{sWAVE}, 7")
e(f"s_add_u32 s{sT0}, s{sT0}, s{sT1}")
e(f"s_mul_i32 s{sT0}, s{sT0}, 1280")
e(f"s_lshl_b32 s{sT1}, s{sCS}, 7")
e(f"s_add_u32 s{sT0}, s{sT0}, s{sT1}")
e(f"s_lshl_b32 s{sT1}, s{sWAVE}, 14")
for i in range(16):
    e(f"s_add_u32 m0, s{sT1}, {1024*i}")
    e(f"s_add_u32 s{sT2}, s{sT0}, {8*1280*i}")
    e(f"buffer_load_dwordx4 v9, s[{R_B}:{R_B+3}], s{sT2} offen nt lds")
e("v_lshlrev_b32 v9, 7, v202")
e("v_lshl_add_u32 v9, v201, 3, v9")
e(f"v_add_u32 v9, s{sT1}, v9")
e("v_lshlrev_b32 v10, 13, v206")
e("v_lshl_add_u32 v10, v4, 4, v10")
e(f"v_bfe_u32 v11, v{vL}, 3, 1")
e("v_lshl_add_u32 v10, v11, 6, v10")
e(f"s_lshl_b32 s{sA0}, s{sKQ}, 11")
e(f"s_lshl_b32 s{sT1}, s{sWAVE}, 8")
e(f"s_add_u32 s{sA0}, s{sA0}, s{sT1}")
e(f"s_add_u32 s{sA0}, s{sA0}, {WS_CP}")
e("v_and_b32 v12, 1, v4")
e("v_lshlrev_b32 v12, 8, v12")
e("v_lshl_add_u32 v12, v5, 2, v12")
e(f"v_lshrrev_b32 v11, 5, v{vL}")
e("v_lshl_add_u32 v12, v11, 6, v12")
e(f"s_lshl_b32 s{sT0}, s{sWAVE}, 9")
e(f"s_add_u32 s{sT0}, s{sT0}, {LW_RED}")
e(f"v_add_u32 v12, s{sT0}, v12")
e(f"v_lshlrev_b32 v14, 2, v{vL}")
e(f"s_and_b32 s{sT0}, s{sWAVE}, 1")
e(f"s_lshl_b32 s{sT1}, s{sT0}, 8")
e(f"s_add_u32 s{sT1}, s{sT1}, {LW_RED}")
e(f"v_add_u32 v13, s{sT1}, v14")
e(f"s_lshl_b32 s{sA1}, s{sKQ}, 1")
e(f"s_add_u32 s{sA1}, s{sA1}, s{sT0}")
e(f"s_mul_i32 s{sA1}, s{sA1}, 2560")
e(f"s_lshl_b32 s{sT1}, s{sCS}, 8")
e(f"s_add_u32 s{sA1}, s{sA1}, s{sT1}")
e(f"s_add_u32 s{sA1}, s{sA1}, {WS_HP}")
e("s_waitcnt vmcnt(0)")
ts(6)
for ks in range(4):
    for ct in range(4):
        r = 100 + 16 * ks + 4 * ct
        e(f"ds_read_b64_tr_b16 v[{r}:{r+1}], v9 offset:{ks*4096 + ct*32}")
        e(f"ds_read_b64_tr_b16 v[{r+2}:{r+3}], v9 offset:{ks*4096 + ct*32 + 512}")
    e("s_waitcnt lgkmcnt(0)")
e(f"v_cmp_gt_u32 s[{sA2}:{sA3}], 32, v{vL}")
spin_init()
lab("L_w_h4")
for j in range(2):
    e(f"buffer_load_dwordx4 v[{20+4*j}:{23+4*j}], v10, s[{R_WS}:{R_WS+3}], s{sA0} offen offset:{128*j} sc1")
e("s_waitcnt vmcnt(0)")
umax_chain(11, range(20, 28))
e("v_cmp_eq_u32 vcc, -1, v11")
spin_retry_if_vcc("L_w_h4", "L_w_h4d", 0)
lab("L_w_h4d")
ts(10)
for j in range(2):
    for par in range(2):
        for ct in range(4):
            d = 60 + 16 * par + 4 * ct
            cc = "0" if j == 0 else f"v[{d}:{d+3}]"
            r = 100 + 16 * (2 * j + par) + 4 * ct
            e(f"v_mfma_f32_16x16x32_bf16 v[{d}:{d+3}], v[{20+4*j}:{23+4*j}], v[{r}:{r+3}], {cc}")
e("s_nop 0")
for q in range(8):
    d = 60 + 4 * q
    e(f"v_add_f32 v{d}, v{d}, v{d+1}")
    e(f"v_add_f32 v{d+2}, v{d+2}, v{d+3}")
for q in range(8):
    d = 60 + 4 * q
    e(f"v_add_f32 v{d}, v{d}, v{d+2}")
e("s_nop 1")
e("v_permlane32_swap_b32 v76, v64")
e("v_permlane32_swap_b32 v84, v72")
e("s_nop 0")
e("v_add_f32 v60, v60, v64")
e("v_add_f32 v80, v80, v76")
e("v_add_f32 v68, v68, v72")
e("v_add_f32 v88, v88, v84")
e(f"v_cndmask_b32 v60, v80, v60, s[{sA2}:{sA3}]")
e(f"v_cndmask_b32 v68, v88, v68, s[{sA2}:{sA3}]")
e("ds_write_b32 v12, v60")
e("ds_write_b32 v12, v68 offset:128")
e("s_waitcnt lgkmcnt(0)")
barrier()
e(f"s_cmp_ge_u32 s{sWAVE}, 2")
e("s_cbranch_scc1 L_w_fin")
for i in range(8):
    e(f"ds_read_b32 v{20+i}, v13 offset:{512*i}")
e("s_waitcnt lgkmcnt(0)")
e("v_add_f32 v20, v20, v21")
e("v_add_f32 v22, v22, v23")
e("v_add_f32 v24, v24, v25")
e("v_add_f32 v26, v26, v27")
e("v_add_f32 v20, v20, v22")
e("v_add_f32 v24, v24, v26")
e("v_add_f32 v20, v20, v24")
e("v_min_u32 v20, -2, v20")
e(f"buffer_store_dword v20, v14, s[{R_WS}:{R_WS+3}], s{sA1} offen sc1")
ts(11)
e("s_branch L_w_fin")
lab("L_t6")
c("---- T6 ----")
e(f"s_sub_u32 s{sCS}, s{sIDX}, 40")
e(f"s_and_b32 s{sT0}, s{sWAVE}, 1")
e(f"s_cmp_eq_u32 s{sT0}, 0")
e(f"s_cselect_b32 s{R_B}, s{P_W1}, s{P_W3}")
e(f"s_cselect_b32 s{R_B+1}, s{P_W1+1}, s{P_W3+1}")
e(f"s_and_b32 s{R_B+1}, s{R_B+1}, 0xffff")
e(f"s_mov_b32 s{R_B+2}, {640*3456}")
e(f"s_mov_b32 s{R_B+3}, 0x00020000")
e(f"v_lshrrev_b32 v9, 2, v{vL}")
e("v_mul_u32_u24 v9, 3456, v9")
e("v_lshl_add_u32 v9, v201, 4, v9")
e(f"s_lshr_b32 s{sKQ}, s{sWAVE}, 1")
e(f"s_mul_i32 s{sT0}, s{sKQ}, {160*3456}")
e(f"s_lshl_b32 s{sT1}, s{sCS}, 6")
e(f"s_add_u32 s{sT0}, s{sT0}, s{sT1}")
e(f"s_mul_i32 s{sT1}, s{sWAVE}, 10240")
for i in range(10):
    e(f"s_add_u32 m0, s{sT1}, {1024*i}")
    e(f"s_add_u32 s{sT2}, s{sT0}, {16*3456*i}")
    e(f"buffer_load_dwordx4 v9, s[{R_B}:{R_B+3}], s{sT2} offen nt lds")
srd(R_A, P_X, 2560)
e(f"s_lshr_b32 s{sB}, s{sWAVE}, 2")
e(f"s_and_b32 s{sS}, s{sWAVE}, 3")
e(f"v_min_u32 v12, 39, v{vL}")
e("v_lshlrev_b32 v13, 3, v12")
e(f"s_mul_i32 s{sT2}, s{sB}, 1280")
e(f"s_mul_i32 s{sT3}, s{sS}, 320")
e(f"s_add_u32 s{sT2}, s{sT2}, s{sT3}")
e(f"buffer_load_dwordx2 v[14:15], v13, s[{R_A}:{R_A+3}], s{sT2} offen")
e("v_lshlrev_b32 v16, 2, v0")
e("v_mov_b32 v17, 0x3f803f80")
e("v_cmp_gt_u32 vcc, 320, v0")
e(f"v_add_u32 v16, {LW_H + 2560}, v16")
exec_save_and()
e("ds_write_b32 v16, v17")
exec_restore()
e("v_lshlrev_b32 v9, 6, v202")
e("v_lshl_add_u32 v9, v201, 3, v9")
e(f"v_add_u32 v9, s{sT1}, v9")
e("v_lshlrev_b32 v210, 4, v12")
e(f"s_lshl_b32 s{sA0}, s{sT2}, 1")
e(f"s_add_u32 s{sA0}, s{sA0}, {WS_HP}")
for kq in range(1, 4):
    e(f"s_add_u32 s{sA0+kq}, s{sA0}, {5120*kq}")
e(f"s_add_u32 s{sT2}, s{sT2}, {LW_H}")
e(f"v_add_u32 v211, s{sT2}, v13")
e(f"s_lshl_b32 s{sT0}, s{sWAVE}, 3")
e(f"s_add_u32 s{sT0}, s{sT0}, {LW_STAT}")
e(f"v_mov_b32 v212, s{sT0}")
e("v_min_u32 v213, 2, v5")
e("v_mul_u32_u24 v213, 1280, v213")
e("v_lshl_add_u32 v213, v4, 4, v213")
e(f"s_mul_i32 s{sT0}, s{sKQ}, 320")
e(f"s_add_u32 s{sT0}, s{sT0}, {LW_H}")
e(f"v_add_u32 v213, s{sT0}, v213")
e("v_lshlrev_b32 v214, 2, v5")
e(f"s_mul_i32 s{sT0}, s{sWAVE}, 384")
e(f"s_add_u32 s{sT0}, s{sT0}, {LW_RED}")
e(f"v_add_u32 v214, s{sT0}, v214")
e(f"v_lshrrev_b32 v16, 5, v{vL}")
e(f"v_and_b32 v17, 31, v{vL}")
e("v_lshlrev_b32 v215, 7, v16")
e("v_lshl_add_u32 v215, v17, 2, v215")
e(f"v_add_u32 v215, {LW_RED}, v215")
e("v_lshlrev_b32 v216, 2, v17")
e(f"v_add_u32 v216, {LW_RED + 256}, v216")
e("v_lshlrev_b32 v217, 5, v16")
e(f"v_add_u32 v217, {LW_STAT}, v217")
e("v_mul_u32_u24 v218, 3456, v16")
e("v_lshl_add_u32 v218, v17, 1, v218")
e(f"s_lshl_b32 s{sCS}, s{sCS}, 6")
e(f"s_add_u32 s{sCS}, s{sCS}, {WS_ACT}")
e("s_waitcnt vmcnt(0)")
ts(6)
for ks in range(5):
    for ct in range(2):
        r = 100 + 8 * ks + 4 * ct
        e(f"ds_read_b64_tr_b16 v[{r}:{r+1}], v9 offset:{ks*2048 + ct*32}")
        e(f"ds_read_b64_tr_b16 v[{r+2}:{r+3}], v9 offset:{ks*2048 + ct*32 + 256}")
    e("s_waitcnt lgkmcnt(4)")
e("v_lshlrev_b32 v40, 16, v14")
e("v_and_b32 v41, 0xffff0000, v14")
e("v_lshlrev_b32 v42, 16, v15")
e("v_and_b32 v43, 0xffff0000, v15")
e("s_waitcnt lgkmcnt(0)")
spin_init()
lab("L_w_h5")
for kq in range(4):
    e(f"buffer_load_dwordx4 v[{20+4*kq}:{23+4*kq}], v210, s[{R_WS}:{R_WS+3}], s{sA0+kq} offen sc1")
e("s_waitcnt vmcnt(0)")
umax_chain(11, range(20, 36))
e("v_cmp_eq_u32 vcc, -1, v11")
spin_retry_if_vcc("L_w_h5", "L_w_h5d", 0)
lab("L_w_h5d")
ts(10)
for j in range(4):
    e(f"v_add_f32 v{20+j}, v{20+j}, v{24+j}")
    e(f"v_add_f32 v{28+j}, v{28+j}, v{32+j}")
for j in range(4):
    e(f"v_add_f32 v{40+j}, v{40+j}, v{20+j}")
for j in range(4):
    e(f"v_add_f32 v{40+j}, v{40+j}, v{28+j}")
e("v_cvt_pk_bf16_f32 v44, v40, v41")
e("v_cvt_pk_bf16_f32 v45, v42, v43")
e("ds_write_b64 v211, v[44:45]")
e("v_lshlrev_b32 v40, 16, v44")
e("v_and_b32 v41, 0xffff0000, v44")
e("v_lshlrev_b32 v42, 16, v45")
e("v_and_b32 v43, 0xffff0000, v45")
e(f"v_cmp_gt_u32 vcc, 40, v{vL}")
e("v_add_f32 v46, v40, v41")
e("v_add_f32 v47, v42, v43")
e("v_add_f32 v46, v46, v47")
e("v_cndmask_b32 v46, 0, v46, vcc")
e("s_waitcnt lgkmcnt(0)")
barrier()
for ks in range(5):
    e(f"ds_read_b128 v[{20+4*ks}:{23+4*ks}], v213 offset:{64*ks}")
allreduce("add", 46, 47)
e(f"v_mul_f32 v46, {fl(1.0/160.0)}, v46")
for ks in range(5):
    e(f"s_waitcnt lgkmcnt({4-ks})")
    for ct in range(2):
        d = 60 + 4 * ct
        cc = "0" if ks == 0 else f"v[{d}:{d+3}]"
        r = 100 + 8 * ks + 4 * ct
        e(f"v_mfma_f32_16x16x32_bf16 v[{d}:{d+3}], v[{20+4*ks}:{23+4*ks}], v[{r}:{r+3}], {cc}")
for j in range(4):
    e(f"v_sub_f32 v{40+j}, v{40+j}, v46")
e("v_mul_f32 v48, v40, v40")
for j in range(1, 4):
    e(f"v_fmac_f32 v48, v{40+j}, v{40+j}")
e("v_cndmask_b32 v48, 0, v48, vcc")
allreduce("add", 48, 47)
e("v_mov_b32 v47, v48")
e("ds_write_b64 v212, v[46:47]")
e(f"v_cmp_gt_u32 vcc, 16, v{vL}")
exec_save_and()
for ct in range(2):
    for r in range(3):
        e(f"ds_write_b32 v214, v{60+4*ct+r} offset:{128*r + 64*ct}")
exec_restore()
e("s_waitcnt lgkmcnt(0)")
barrier()
e(f"s_cmp_lg_u32 s{sWAVE}, 0")
e("s_cbranch_scc1 L_w_fin")
e("ds_read_b128 v[40:43], v217")
e("ds_read_b128 v[44:47], v217 offset:16")
for w in range(8):
    e(f"ds_read_b32 v{20+w}, v215 offset:{384*w}")
e("s_waitcnt lgkmcnt(8)")
for w in range(8):
    e(f"ds_read_b32 v{28+w}, v216 offset:{384*w}")
e("v_add_f32 v48, v40, v42")
e("v_add_f32 v49, v44, v46")
e("v_add_f32 v50, v41, v43")
e("v_add_f32 v51, v45, v47")
e("v_add_f32 v48, v48, v49")
e("v_add_f32 v49, v50, v51")
e("v_mul_f32 v48, 0.25, v48")
e("v_sub_f32 v40, v40, v48")
e("v_sub_f32 v42, v42, v48")
e("v_sub_f32 v44, v44, v48")
e("v_sub_f32 v46, v46, v48")
e("v_mul_f32 v50, v40, v40")
e("v_mul_f32 v51, v42, v42")
e("v_fmac_f32 v50, v44, v44")
e("v_fmac_f32 v51, v46, v46")
e("v_add_f32 v50, v50, v51")
e("v_fmac_f32 v49, 0x43200000, v50")
e(f"v_mov_b32 v51, {fl(1e-5)}")
e(f"v_fmac_f32 v51, {fl(1.0/640.0)}, v49")
e("v_rsq_f32 v51, v51")
e("s_waitcnt lgkmcnt(8)")
e("v_add_f32 v20, v20, v22")
e("v_add_f32 v24, v24, v26")
e("v_add_f32 v21, v21, v23")
e("v_add_f32 v25, v25, v27")
e("v_add_f32 v20, v20, v24")
e("v_add_f32 v21, v21, v25")
e("s_waitcnt lgkmcnt(0)")
e("v_add_f32 v28, v28, v30")
e("v_add_f32 v32, v32, v34")
e("v_add_f32 v29, v29, v31")
e("v_add_f32 v33, v33, v35")
e("v_add_f32 v28, v28, v32")
e("v_add_f32 v29, v29, v33")
e("v_fma_f32 v20, -v48, v28, v20")
e("v_fma_f32 v21, -v48, v29, v21")
e("v_mul_f32 v20, v20, v51")
e("v_mul_f32 v21, v21, v51")
e("v_mul_f32 v22, 0xbfb8aa3b, v20")
e("v_exp_f32 v22, v22")
e("v_mul_f32 v20, v20, v21")
e("v_add_f32 v22, 1.0, v22")
e("v_rcp_f32 v22, v22")
e("s_nop 0")
e("v_mul_f32 v20, v20, v22")
e("s_nop 1")
e("v_mov_b32_dpp v21, v20 quad_perm:[1,1,3,3] row_mask:0xf bank_mask:0xf")
e("s_nop 0")
e("v_cvt_pk_bf16_f32 v20, v20, v21")
e("v_min_u32 v20, -2, v20")
e(f"s_mov_b64 s[{sEX}:{sEX+1}], exec")
e("s_mov_b32 exec_lo, 0x55555555")
e("s_mov_b32 exec_hi, 0x55555555")
e(f"buffer_store_dword v20, v218, s[{R_WS}:{R_WS+3}], s{sCS} offen sc1")
exec_restore()
ts(11)
e("s_branch L_w_fin")
lab("L_t7")
c("---- T7 ----")
e(f"s_sub_u32 s{sCS}, s{sIDX}, 94")
srd(R_B, P_W2, 1728 * 1280)
e(f"v_lshrrev_b32 v9, 2, v{vL}")
e("v_mul_u32_u24 v9, 1280, v9")
e("v_lshl_add_u32 v9, v201, 4, v9")
e(f"s_mul_i32 s{sT0}, s{sWAVE}, {64*1280}")
e(f"s_lshl_b32 s{sT1}, s{sCS}, 6")
e(f"s_add_u32 s{sT0}, s{sT0}, s{sT1}")
e(f"s_lshl_b32 s{sT1}, s{sWAVE}, 12")
for i in range(4):
    if i == 3:
        e(f"s_cmp_ge_u32 s{sWAVE}, 3")
        e("s_cbranch_scc1 L_t7_dma_done")
    for j in range(4):
        e(f"s_add_u32 m0, s{sT1}, {32768*i + 1024*j}")
        e(f"s_add_u32 s{sT2}, s{sT0}, {(8*64*i + 16*j)*1280}")
        e(f"buffer_load_dwordx4 v9, s[{R_B}:{R_B+3}], s{sT2} offen nt lds")
lab("L_t7_dma_done")
srd(R_A, P_X, 2560)
srd(R_C, P_OUT, 2560)
e(f"v_lshrrev_b32 v16, 5, v{vL}")
e(f"v_and_b32 v17, 31, v{vL}")
e("v_mul_u32_u24 v210, 2560, v16")
e("v_lshl_add_u32 v210, v17, 2, v210")
e("v_mul_u32_u24 v211, 1280, v16")
e("v_lshl_add_u32 v211, v17, 1, v211")
e(f"s_lshl_b32 s{sKQ}, s{sCS}, 6")
e(f"buffer_load_ushort v70, v211, s[{R_A}:{R_A+3}], s{sKQ} offen")
e(f"s_lshl_b32 s{sA0}, s{sCS}, 7")
e(f"s_add_u32 s{sA0}, s{sA0}, {WS_HP}")
for kq in range(1, 4):
    e(f"s_add_u32 s{sA0+kq}, s{sA0}, {5120*kq}")
e("v_lshlrev_b32 v9, 6, v202")
e("v_lshl_add_u32 v9, v201, 3, v9")
e(f"v_add_u32 v9, s{sT1}, v9")
e("v_add_u32 v10, 0x10000, v9")
e(f"v_and_b32 v212, 1, v{vL}")
e("v_mul_u32_u24 v212, 3456, v212")
e("v_lshl_add_u32 v212, v4, 4, v212")
e(f"v_bfe_u32 v11, v{vL}, 1, 1")
e("v_lshl_add_u32 v212, v11, 6, v212")
e(f"s_lshl_b32 s{sB}, s{sWAVE}, 7")
e(f"s_add_u32 s{sB}, s{sB}, {WS_ACT}")
e("v_lshlrev_b32 v213, 2, v5")
e(f"s_lshl_b32 s{sT0}, s{sWAVE}, 8")
e(f"s_add_u32 s{sT0}, s{sT0}, {LW_RED}")
e(f"v_add_u32 v213, s{sT0}, v213")
e(f"v_lshlrev_b32 v214, 2, v{vL}")
e(f"v_add_u32 v214, {LW_RED}, v214")
for j in range(4):
    e(f"v_mov_b32 v{32+j}, 0")
for j in range(16):
    e(f"v_mov_b32 v{148+j}, 0")
e("s_waitcnt vmcnt(0)")
ts(6)
for i in range(4):
    if i == 3:
        e(f"s_cmp_ge_u32 s{sWAVE}, 3")
        e("s_cbranch_scc1 L_t7_frag_done")
    a_ = "v9" if i < 2 else "v10"
    off = (i & 1) * 32768
    for par in range(2):
        for ct in range(2):
            r = 100 + 16 * i + 8 * par + 4 * ct
            e(f"ds_read_b64_tr_b16 v[{r}:{r+1}], {a_} offset:{off + par*2048 + ct*32}")
            e(f"ds_read_b64_tr_b16 v[{r+2}:{r+3}], {a_} offset:{off + par*2048 + ct*32 + 256}")
    e("s_waitcnt lgkmcnt(0)")
lab("L_t7_frag_done")
e(f"s_cmp_lg_u32 s{sWAVE}, 0")
e("s_cbranch_scc1 L_w_s7_noh")
spin_init()
lab("L_w_h5b")
for kq in range(4):
    e(f"buffer_load_dword v{72+kq}, v210, s[{R_WS}:{R_WS+3}], s{sA0+kq} offen sc1")
e("s_waitcnt vmcnt(0)")
umax_chain(11, range(72, 76))
e("v_cmp_eq_u32 vcc, -1, v11")
spin_retry_if_vcc("L_w_h5b", "L_w_h5bd", 1)
lab("L_w_h5bd")
e("v_lshlrev_b32 v70, 16, v70")
e("v_add_f32 v72, v72, v73")
e("v_add_f32 v74, v74, v75")
e("v_add_f32 v70, v70, v72")
e("v_add_f32 v70, v70, v74")
e("v_cvt_pk_bf16_f32 v70, v70, v70")
e("v_and_b32 v70, 0xffff0000, v70")
lab("L_w_s7_noh")
spin_init()
lab("L_w_h6")
for i in range(3):
    e(f"buffer_load_dwordx4 v[{20+4*i}:{23+4*i}], v212, s[{R_WS}:{R_WS+3}], s{sB} offen offset:{1024*i} sc1")
e(f"s_cmp_ge_u32 s{sWAVE}, 3")
e("s_cbranch_scc1 L_w_h6_skip")
e(f"buffer_load_dwordx4 v[32:35], v212, s[{R_WS}:{R_WS+3}], s{sB} offen offset:{1024*3} sc1")
lab("L_w_h6_skip")
e("s_waitcnt vmcnt(0)")
umax_chain(11, range(20, 36))
e("v_cmp_eq_u32 vcc, -1, v11")
spin_retry_if_vcc("L_w_h6", "L_w_h6d", 0)
lab("L_w_h6d")
ts(10)
for i in range(4):
    for par in range(2):
        for ct in range(2):
            d = 40 + 8 * par + 4 * ct
            cc = "0" if i == 0 else f"v[{d}:{d+3}]"
            r = 100 + 16 * i + 8 * par + 4 * ct
            e(f"v_mfma_f32_16x16x32_bf16 v[{d}:{d+3}], v[{20+4*i}:{23+4*i}], v[{r}:{r+3}], {cc}")
e(f"v_cmp_gt_u32 vcc, 16, v{vL}")
e("s_nop 6")
e("v_add_f32 v40, v40, v50")
e("v_add_f32 v41, v41, v51")
e("v_add_f32 v44, v44, v54")
e("v_add_f32 v45, v45, v55")
exec_save_and()
e("ds_write_b32 v213, v40")
e("ds_write_b32 v213, v41 offset:128")
e("ds_write_b32 v213, v44 offset:64")
e("ds_write_b32 v213, v45 offset:192")
exec_restore()
e("s_waitcnt lgkmcnt(0)")
barrier()
e(f"s_cmp_lg_u32 s{sWAVE}, 0")
e("s_cbranch_scc1 L_w_fin")
for i in range(8):
    e(f"ds_read_b32 v{20+i}, v214 offset:{256*i}")
e("s_waitcnt lgkmcnt(0)")
e("v_add_f32 v20, v20, v21")
e("v_add_f32 v22, v22, v23")
e("v_add_f32 v24, v24, v25")
e("v_add_f32 v26, v26, v27")
e("v_add_f32 v20, v20, v22")
e("v_add_f32 v24, v24, v26")
e("v_add_f32 v20, v20, v70")
e("v_add_f32 v20, v20, v24")
e("v_cvt_pk_bf16_f32 v20, v20, v20")
e(f"buffer_store_short v20, v211, s[{R_C}:{R_C+3}], s{sKQ} offen")
ts(11)
lab("L_w_fin")
ts_flush(12)
e("s_endpgm")

LA_C = 0
LA_Q = 131072
LA_P = LA_Q
LA_MX = LA_Q + 8192
LA_LS = LA_Q + 8704
LA_O = 0
LA_WUV = 32768
LA_CX = 65536
LA_CF = 73728
LA_STG = 74752

lab("L_arole")
c("================= A role =================")
LA_WQ = 90112
LA_XN = LA_Q
LA_SQ = LA_Q + 4096
e(f"s_sub_u32 s{sIDX}, s2, 128")
e(f"s_lshr_b32 s{sB}, s{sIDX}, 6")
e(f"s_and_b32 s{sS}, s{sIDX}, 63")
e(f"s_and_b32 s{sH}, s{sIDX}, 31")
e(f"s_lshr_b32 s{sJQ}, s{sIDX}, 5")
srd(R_C, P_X, 2560)
srd(R_B, P_WQ, 640 * 8192)
srd(R_A, P_CKV, 2 * 8192 * 1024)
e(f"v_lshrrev_b32 v4, 4, v{vL}")
e(f"v_and_b32 v5, 15, v{vL}")
e(f"v_lshlrev_b32 v6, 4, v{vL}")
e(f"v_lshlrev_b32 v19, 2, v{vL}")
e(f"s_cmp_ge_u32 s{sWAVE}, 2")
e("s_cbranch_scc1 L_a_nox")
e(f"s_mul_i32 s{sT0}, s{sWAVE}, 1280")
for i in range(5):
    e(f"buffer_load_dword v{12+i}, v19, s[{R_C}:{R_C+3}], s{sT0} offen offset:{256*i}")
lab("L_a_nox")
e("v_lshlrev_b32 v7, 4, v5")
e("v_lshlrev_b32 v18, 5, v4")
e("v_xor_b32 v7, v7, v18")
e("v_lshl_add_u32 v7, v4, 13, v7")
e(f"s_mul_i32 s{sT2}, s{sJQ}, {160*8192}")
e(f"s_lshl_b32 s{sT0}, s{sH}, 8")
e(f"s_add_u32 s{sT2}, s{sT2}, s{sT0}")
e(f"s_mul_i32 s{sT3}, s{sWAVE}, 20")
for i in range(5):
    e(f"s_add_u32 s{sT4}, s{sT3}, {4*i}")
    e(f"s_lshl_b32 s{sT5}, s{sT4}, 4")
    e(f"s_and_b32 s{sT5}, s{sT5}, 128")
    e(f"v_xor_b32 v18, s{sT5}, v7")
    e(f"s_lshl_b32 s{sT5}, s{sT4}, 8")
    e(f"s_add_u32 m0, s{sT5}, {LA_WQ}")
    e(f"s_lshl_b32 s{sT4}, s{sT4}, 13")
    e(f"s_add_u32 s{sT4}, s{sT4}, s{sT2}")
    e(f"buffer_load_dwordx4 v18, s[{R_B}:{R_B+3}], s{sT4} offen nt lds")
e(f"s_and_b32 s{sT0}, s{sWAVE}, 3")
e(f"s_lshl_b32 s{sT0}, s{sT0}, 2")
e(f"s_lshr_b32 s{sT1}, s{sWAVE}, 2")
e(f"s_or_b32 s{sT0}, s{sT0}, s{sT1}")
e(f"v_xor_b32 v145, s{sT0}, v{vL}")
e("v_lshlrev_b32 v145, 4, v145")
e("v_xor_b32 v146, 32, v145")
e(f"s_lshl_b32 s{sCS}, s{sIDX}, 7")
e(f"s_add_u32 s{sCS}, s{sCS}, s{sWAVE}")
e(f"s_lshl_b32 s{sCS}, s{sCS}, 10")
e(f"s_lshl_b32 s{sKQ}, s{sWAVE}, 10")
def c_dma(i):
    e(f"s_add_u32 m0, s{sKQ}, {8192*i + LA_C}")
    e(f"s_add_u32 s{sT2}, s{sCS}, {8192*i}")
    e(f"buffer_load_dwordx4 v{145 + (i & 1)}, s[{R_A}:{R_A+3}], s{sT2} offen nt lds")
e(f"s_cmp_lg_u32 s{sWAVE}, 7")
e("s_cbranch_scc1 L_a_np1")
e(f"s_and_b32 s{sA1}, s{sH}, 7")
e(f"s_lshl_b32 s{sA1}, s{sA1}, 2")
e(f"buffer_load_dword v147, v3, s[{R_DBG}:{R_DBG+3}], s{sA1} offen offset:132 sc1")
lab("L_a_np1")
for i in range(NF):
    c_dma(i)
ts(1)
e(f"s_cmp_ge_u32 s{sWAVE}, 2")
e("s_cbranch_scc1 L_a_noln")
e(f"s_waitcnt vmcnt({5+NF})")
for i in range(5):
    e(f"v_lshlrev_b32 v{20+2*i}, 16, v{12+i}")
    e(f"v_and_b32 v{21+2*i}, 0xffff0000, v{12+i}")
e("v_add_f32 v30, v20, v21")
for i in range(2, 10):
    e(f"v_add_f32 v30, v30, v{20+i}")
allreduce("add", 30, 31)
e(f"v_mul_f32 v30, {fl(1.0/640.0)}, v30")
for i in range(10):
    e(f"v_sub_f32 v{20+i}, v{20+i}, v30")
e("v_mul_f32 v32, v20, v20")
for i in range(1, 10):
    e(f"v_fmac_f32 v32, v{20+i}, v{20+i}")
allreduce("add", 32, 31)
e(f"v_mov_b32 v33, {fl(1e-5)}")
e(f"v_fmac_f32 v33, {fl(1.0/640.0)}, v32")
e("v_rsq_f32 v33, v33")
e("s_nop 0")
for i in range(10):
    e(f"v_mul_f32 v{20+i}, v{20+i}, v33")
for i in range(5):
    e(f"v_cvt_pk_bf16_f32 v{12+i}, v{20+2*i}, v{21+2*i}")
e(f"s_mul_i32 s{sT0}, s{sWAVE}, 1280")
e(f"s_add_u32 s{sT0}, s{sT0}, {LA_XN}")
e(f"v_add_u32 v19, s{sT0}, v19")
for i in range(5):
    e(f"ds_write_b32 v19, v{12+i} offset:{256*i}")
lab("L_a_noln")
e(f"v_bfe_u32 v11, v{vL}, 2, 2")
e("v_and_b32 v10, 1, v4")
e("v_lshl_or_b32 v10, v10, 2, v11")
e(f"v_xor_b32 v10, s{sWAVE}, v10")
e("v_lshlrev_b32 v10, 5, v10")
e("v_lshl_add_u32 v140, v4, 3, v11")
e("v_lshl_add_u32 v140, v140, 8, v10")
e(f"v_and_b32 v10, 3, v{vL}")
e("v_lshl_add_u32 v140, v10, 3, v140")
e(f"v_add_u32 v140, {LA_WQ}, v140")
e(f"v_and_b32 v10, 1, v{vL}")
e("v_mul_u32_u24 v141, 1280, v10")
e("v_lshl_add_u32 v141, v4, 4, v141")
e(f"s_mul_i32 s{sT0}, s{sJQ}, 320")
e(f"s_add_u32 s{sT0}, s{sT0}, {LA_XN}")
e(f"v_add_u32 v141, s{sT0}, v141")
e("v_lshlrev_b32 v142, 8, v10")
e("v_lshl_add_u32 v142, v4, 3, v142")
e(f"s_lshl_b32 s{sT1}, s{sWAVE}, 5")
e(f"s_add_u32 s{sT1}, s{sT1}, {LA_SQ}")
e(f"v_add_u32 v142, s{sT1}, v142")
e("v_and_b32 v144, 511, v6")
e(f"v_add_u32 v143, {LA_SQ}, v144")
e(f"s_lshl_b32 s{sA0}, s{sH}, 2")
e(f"s_add_u32 s{sA0}, s{sA0}, s{sJQ}")
e(f"s_lshl_b32 s{sA0}, s{sA0}, 9")
e("v_cmp_gt_u32 vcc, 2, v5")
e(f"s_waitcnt vmcnt({NF}) lgkmcnt(0)")
barrier()
for ks in range(5):
    e(f"ds_read_b64_tr_b16 v[{20+4*ks}:{21+4*ks}], v140 offset:{ks*8192}")
    e(f"ds_read_b64_tr_b16 v[{22+4*ks}:{23+4*ks}], v140 offset:{ks*8192 + 1024}")
    e(f"ds_read_b128 v[{40+4*ks}:{43+4*ks}], v141 offset:{ks*64}")
for ks in range(5):
    e(f"s_waitcnt lgkmcnt({3*(4-ks)})")
    cc = "0" if ks == 0 else "v[60:63]"
    e(f"v_mfma_f32_16x16x32_bf16 v[60:63], v[{20+4*ks}:{23+4*ks}], v[{40+4*ks}:{43+4*ks}], {cc}")
e("s_nop 7")
e("v_cvt_pk_bf16_f32 v64, v60, v61")
e("v_cvt_pk_bf16_f32 v65, v62, v63")
exec_save_and()
e("ds_write_b64 v142, v[64:65]")
exec_restore()
e("s_waitcnt lgkmcnt(0)")
barrier()
e(f"s_cmp_lg_u32 s{sWAVE}, 7")
e("s_cbranch_scc1 L_a_notcomm")
e("ds_read_b128 v[60:63], v143")
spin_init()
lab("L_a_poll")
e("v_cmp_eq_u32 vcc, 0, v147")
e("s_cbranch_vccz L_a_polld")
e(f"s_add_u32 s{sSPIN}, s{sSPIN}, 1")
e(f"s_cmp_ge_u32 s{sSPIN}, {SPIN_MAX}")
e("s_cbranch_scc1 L_a_polld")
e(f"buffer_load_dword v147, v3, s[{R_DBG}:{R_DBG+3}], s{sA1} offen offset:132 sc1")
e("s_waitcnt vmcnt(0)")
e("s_branch L_a_poll")
lab("L_a_polld")
e(f"v_cmp_gt_u32 vcc, 32, v{vL}")
e("s_waitcnt lgkmcnt(0)")
for i in range(4):
    e(f"v_min_u32 v{60+i}, -2, v{60+i}")
exec_save_and()
e(f"buffer_store_dwordx4 v[60:63], v144, s[{R_WS}:{R_WS+3}], s{sA0} offen sc1")
exec_restore()
lab("L_a_notcomm")
barrier()
if TS:
    ts(11)
for i in range(NF, 16):
    c_dma(i)
barrier()
e("v_lshlrev_b32 v240, 4, v0")
e(f"s_lshl_b32 s{sA0}, s{sB}, 15")
e(f"s_add_u32 s{sA0}, s{sA0}, {WS_QA}")
for i in range(1, 4):
    e(f"s_add_u32 s{sA0+i}, s{sA0}, {8192*i}")
def qa_gather():
    e(f"buffer_load_dword v7, v3, s[{R_DBG}:{R_DBG+3}], 0 offen offset:128 sc1")
    for i in range(4):
        e(f"buffer_load_dwordx4 v[{20+4*i}:{23+4*i}], v240, s[{R_WS}:{R_WS+3}], s{sA0+i} offen sc1")
qa_gather()
if TS == 4:
    ts(12)
e("v_and_b32 v8, 3, v5")
e("v_lshrrev_b32 v9, 2, v5")
e("v_lshl_or_b32 v8, v8, 2, v9")
e(f"v_lshrrev_b32 v9, 5, v{vL}")
e(f"v_and_b32 v17, 31, v{vL}")
e("v_lshlrev_b32 v10, 10, v17")
e(f"s_and_b32 s{sT0}, s{sWAVE}, 3")
e(f"s_lshl_b32 s{sT0}, s{sT0}, 15")
for kk in range(8):
    e(f"v_add_u32 v11, {2*kk}, v9")
    e("v_xor_b32 v11, v11, v8")
    e("v_lshl_add_u32 v11, v11, 4, v10")
    e(f"v_add_u32 v{200+kk}, s{sT0}, v11")
    e(f"v_add_u32 v{208+kk}, {LA_Q}, v11")
e(f"v_bfe_u32 v11, v{vL}, 2, 2")
e("v_lshrrev_b32 v12, 1, v4")
e("v_lshl_or_b32 v13, v11, 2, v12")
e("v_lshl_add_u32 v14, v12, 2, v11")
e("v_lshlrev_b32 v14, 10, v14")
e(f"s_lshr_b32 s{sT0}, s{sWAVE}, 1")
e(f"s_lshl_b32 s{sT0}, s{sT0}, 8")
e(f"v_add_u32 v14, s{sT0}, v14")
e(f"v_and_b32 v15, 1, v{vL}")
e("v_lshl_add_u32 v14, v15, 3, v14")
e("v_and_b32 v15, 1, v4")
e("v_lshlrev_b32 v15, 1, v15")
e(f"v_bfe_u32 v16, v{vL}, 1, 1")
e("v_or_b32 v15, v15, v16")
e(f"s_and_b32 s{sT0}, s{sWAVE}, 1")
e(f"s_lshl_b32 s{sT0}, s{sT0}, 3")
e(f"v_or_b32 v15, s{sT0}, v15")
e("v_xor_b32 v15, v15, v13")
for ct in range(2):
    for rd in range(2):
        x = (4 * ct) ^ (2 * rd)
        r = 216 + 4 * ct + 2 * rd
        e(f"v_xor_b32 v16, {x}, v15")
        e(f"v_lshl_add_u32 v{r}, v16, 4, v14")
        if rd:
            e(f"v_add_u32 v{r}, 8192, v{r}")
        e(f"v_add_u32 v{r+1}, 0x10000, v{r}")
e(f"s_and_b32 s{sT0}, s{sWAVE}, 3")
e(f"s_lshl_b32 s{sT0}, s{sT0}, 2")
e(f"s_lshr_b32 s{sT1}, s{sWAVE}, 2")
e(f"s_or_b32 s{sT0}, s{sT0}, s{sT1}")
e(f"v_xor_b32 v241, s{sT0}, v{vL}")
e("v_lshlrev_b32 v241, 4, v241")
e(f"s_lshl_b32 s{sT1}, s{sWAVE}, 10")
e(f"s_add_u32 s{sT1}, s{sT1}, {LA_Q}")
e(f"v_add_u32 v241, s{sT1}, v241")
e("v_xor_b32 v242, 32, v241")
e("v_lshlrev_b32 v243, 4, v17")
e(f"v_add_u32 v243, {LA_MX}, v243")
e(f"s_and_b32 s{sT0}, s{sWAVE}, 3")
e(f"s_lshl_b32 s{sT1}, s{sT0}, 2")
e(f"v_add_u32 v244, s{sT1}, v243")
e(f"v_add_u32 v246, {LA_P}, v6")
e(f"s_lshl_b32 s{sT1}, s{sT0}, 11")
e(f"v_add_u32 v245, s{sT1}, v246")
e("v_lshl_add_u32 v12, v9, 3, v10")
e(f"s_lshl_b32 s{sT0}, s{sWAVE}, 3")
e(f"v_xor_b32 v13, s{sT0}, v5")
for j in range(8):
    e(f"v_xor_b32 v14, {j}, v13")
    e(f"v_lshl_add_u32 v{160+j}, v14, 4, v12")
e(f"s_lshl_b32 s{sT0}, s{sWAVE}, 2")
for i in range(4):
    e(f"s_add_u32 s{sT2}, s{sT0}, {i}")
    e(f"s_and_b32 s{sT3}, s{sT2}, 15")
    e(f"v_xor_b32 v14, s{sT3}, v{vL}")
    e("v_lshlrev_b32 v14, 4, v14")
    e(f"s_lshl_b32 s{sT2}, s{sT2}, 10")
    e(f"v_add_u32 v{168+i}, s{sT2}, v14")
e("v_lshlrev_b32 v172, 14, v4")
e("v_lshl_add_u32 v172, v5, 4, v172")
e(f"s_lshl_b32 s{sCS}, s{sB}, 5")
e(f"s_add_u32 s{sCS}, s{sCS}, s{sT0}")
e(f"s_lshl_b32 s{sCS}, s{sCS}, 16")
e(f"s_lshl_b32 s{sT2}, s{sS}, 8")
e(f"s_add_u32 s{sCS}, s{sCS}, s{sT2}")
e(f"s_add_u32 s{sCS}, s{sCS}, {WS_OP}")
e("v_lshlrev_b32 v173, 3, v17")
e(f"s_lshl_b32 s{sKQ}, s{sIDX}, 8")
e(f"s_add_u32 s{sKQ}, s{sKQ}, {WS_ST}")
srd(R_B, P_WUV, 512 * 8192)
e("v_lshlrev_b32 v174, 4, v5")
e("v_lshlrev_b32 v14, 5, v4")
e("v_xor_b32 v174, v174, v14")
e("v_lshl_add_u32 v174, v4, 13, v174")
e("v_xor_b32 v175, 128, v174")
e(f"s_lshl_b32 s{sT0}, s{sWAVE}, 12")
e(f"s_add_u32 s{sT0}, s{sT0}, {LA_WUV}")
e(f"v_add_u32 v176, s{sT0}, v6")
e("v_and_b32 v14, 1, v4")
e("v_lshl_or_b32 v14, v14, 2, v11")
e(f"v_xor_b32 v14, s{sWAVE}, v14")
e("v_lshlrev_b32 v14, 5, v14")
e("v_lshl_add_u32 v177, v4, 3, v11")
e("v_lshl_add_u32 v177, v177, 8, v14")
e(f"v_and_b32 v14, 3, v{vL}")
e("v_lshl_add_u32 v177, v14, 3, v177")
e(f"v_add_u32 v177, {LA_WUV}, v177")
e(f"v_lshlrev_b32 v178, 8, v{vL}")
e("v_lshlrev_b32 v179, 8, v4")
e("v_lshl_add_u32 v179, v5, 4, v179")
e(f"v_and_b32 v14, 3, v{vL}")
e("v_lshl_add_u32 v14, v4, 2, v14")
e("v_lshl_add_u32 v14, v14, 2, v11")
e("v_lshlrev_b32 v180, 2, v14")
e(f"s_lshr_b32 s{sT0}, s{sWAVE}, 2")
e(f"s_lshl_b32 s{sT0}, s{sT0}, 8")
e(f"s_add_u32 s{sT0}, s{sT0}, {LA_CF}")
e(f"v_add_u32 v180, s{sT0}, v180")
e(f"s_and_b32 s{sT1}, s{sWAVE}, 3")
e(f"s_lshl_b32 s{sT1}, s{sT1}, 6")
e(f"s_add_u32 s{sT0}, s{sT0}, s{sT1}")
e("v_lshlrev_b32 v181, 4, v4")
e(f"v_add_u32 v181, s{sT0}, v181")
e(f"s_lshl_b32 s{sT0}, s{sWAVE}, 2")
e(f"v_add_u32 v14, s{sT0}, v4")
e("v_and_b32 v15, 15, v14")
e("v_xor_b32 v15, v15, v5")
e("v_lshlrev_b32 v15, 4, v15")
e("v_lshl_add_u32 v182, v14, 8, v15")
e(f"v_add_u32 v182, {LA_CX}, v182")
e("v_lshlrev_b32 v14, 8, v5")
e(f"v_add_u32 v14, {LA_CX}, v14")
for ks in range(4):
    e(f"v_add_u32 v15, {4*ks}, v4")
    e("v_xor_b32 v15, v15, v5")
    e(f"v_lshl_add_u32 v{184+ks}, v15, 4, v14")
e("v_lshlrev_b32 v188, 8, v9")
e("v_lshl_add_u32 v188, v5, 1, v188")
e(f"s_lshl_b32 s{sT0}, s{sWAVE}, 5")
e(f"s_add_u32 s{sT0}, s{sT0}, {LA_STG}")
e(f"v_add_u32 v188, s{sT0}, v188")
e("v_and_b32 v189, 511, v6")
e(f"v_add_u32 v189, {LA_STG}, v189")
e("v_lshlrev_b32 v190, 13, v4")
e("v_lshl_add_u32 v190, v5, 4, v190")
spin_init()
lab("L_a_h2")
e("s_waitcnt vmcnt(0)")
if TS == 4:
    e(f"s_cmp_lg_u32 s{sSPIN}, 0")
    e("s_cbranch_scc1 L_a_h2x")
    ts(13)
    lab("L_a_h2x")
umax_chain(11, range(20, 36))
e("v_cmp_eq_u32 vcc, -1, v11")
e(f"v_cmp_eq_u32 s[{sEX}:{sEX+1}], 0, v7")
e("s_nop 1")
e(f"s_or_b64 s[{sEX}:{sEX+1}], vcc, s[{sEX}:{sEX+1}]")
e("s_cbranch_scc0 L_a_h2d")
e("s_sleep 2")
e(f"s_add_u32 s{sSPIN}, s{sSPIN}, 1")
e(f"s_cmp_ge_u32 s{sSPIN}, {SPIN_MAX}")
e("s_cbranch_scc1 L_a_h2d")
qa_gather()
e("s_branch L_a_h2")
lab("L_a_h2d")
ts(2)
if TS == 4:
    e("s_waitcnt lgkmcnt(0)")
    e(f"v_mov_b32 v8, s{sTSB+24}")
    e(f"v_mov_b32 v9, s{sTSB+26}")
    e(f"v_mov_b32 v10, s{sSPIN}")
    e(f"v_mov_b32 v11, s{sTSB+4}")
    e(f"s_lshl_b32 s{sT0}, s{sIDX}, 3")
    e(f"s_add_u32 s{sT0}, s{sT0}, s{sWAVE}")
    e(f"s_lshl_b32 s{sT0}, s{sT0}, 4")
    e(f"s_add_u32 s{sT0}, s{sT0}, {WS_TS + 0x10000}")
    e(f"s_mov_b64 s[{sEX}:{sEX+1}], exec")
    e("s_mov_b64 exec, 1")
    e(f"buffer_store_dwordx4 v[8:11], v3, s[{R_WS}:{R_WS+3}], s{sT0} offen")
    exec_restore()
    e("s_waitcnt vmcnt(0)")
for i in range(4):
    a = "v241" if (i & 1) == 0 else "v242"
    e(f"ds_write_b128 {a}, v[{20+4*i}:{23+4*i}] offset:{8192*i}")
e(f"s_lshl_b32 s{sT0}, s{sJQ}, 7")
e(f"s_lshl_b32 s{sT1}, s{sWAVE}, 4")
e(f"s_add_u32 s{sT0}, s{sT0}, s{sT1}")
e(f"s_lshl_b32 s{sT0}, s{sT0}, 13")
e(f"s_lshl_b32 s{sT1}, s{sH}, 8")
e(f"s_add_u32 s{sT0}, s{sT0}, s{sT1}")
for i in range(4):
    a = "v174" if (i >> 1) == 0 else "v175"
    if i:
        e(f"s_add_u32 s{sT0}, s{sT0}, {4*8192}")
    e(f"buffer_load_dwordx4 v[{224+4*i}:{227+4*i}], {a}, s[{R_B}:{R_B+3}], s{sT0} offen nt")
e("s_waitcnt lgkmcnt(0)")
barrier()
ts(3)
def ld_marker():
    e(f"s_cmp_lg_u32 s{sWAVE}, 7")
    e("s_cbranch_scc1 L_a_nold")
    e(f"s_lshl_b32 s{sT0}, s{sIDX}, 5")
    e(f"s_add_u32 s{sT0}, s{sT0}, {WS_LD}")
    e(f"s_mov_b64 s[{sEX}:{sEX+1}], exec")
    e("s_mov_b64 exec, 1")
    e(f"buffer_store_dword v3, v3, s[{R_WS}:{R_WS+3}], s{sT0} offen sc1")
    exec_restore()
    lab("L_a_nold")
if USE_LD == 1:
    ld_marker()
e(f"s_cmp_ge_u32 s{sWAVE}, 4")
e("s_cbranch_scc1 L_a_s_done")
DEPTH = 6
def s_read(ks):
    slot = ks % 8
    j, kk = ks >> 3, ks & 7
    e(f"ds_read_b128 v[{20+8*slot}:{23+8*slot}], v{200+kk} offset:{256*j}")
    e(f"ds_read_b128 v[{24+8*slot}:{27+8*slot}], v{208+kk} offset:{256*j}")
for ks in range(DEPTH):
    s_read(ks)
for ks in range(32):
    outstanding = min(DEPTH, 32 - ks)
    e(f"s_waitcnt lgkmcnt({2*(outstanding-1)})")
    slot = ks % 8
    cc = "0" if ks == 0 else "v[100:115]"
    e(f"v_mfma_f32_32x32x16_bf16 v[100:115], v[{20+8*slot}:{23+8*slot}], v[{24+8*slot}:{27+8*slot}], {cc}")
    if ks + DEPTH < 32:
        s_read(ks + DEPTH)
lab("L_a_s_done")
barrier()
ts(4)
e(f"s_cmp_ge_u32 s{sWAVE}, 4")
e("s_cbranch_scc1 L_a_mx_done")
e("s_nop 9")
e("v_max3_f32 v20, v100, v101, v102")
e("v_max3_f32 v21, v103, v104, v105")
e("v_max3_f32 v22, v106, v107, v108")
e("v_max3_f32 v23, v109, v110, v111")
e("v_max3_f32 v24, v112, v113, v114")
e("v_max3_f32 v20, v20, v21, v115")
e("v_max3_f32 v22, v22, v23, v24")
e("v_max_f32 v20, v20, v22")
e("v_mov_b32 v21, v20")
e("s_nop 1")
e("v_permlane32_swap_b32 v21, v20")
e("s_nop 0")
e("v_max_f32 v20, v20, v21")
e("ds_write_b32 v244, v20")
e("s_waitcnt lgkmcnt(0)")
lab("L_a_mx_done")
if USE_LD == 2:
    ld_marker()
barrier()
e(f"s_cmp_ge_u32 s{sWAVE}, 4")
e("s_cbranch_scc1 L_a_p_done")
e("ds_read_b128 v[24:27], v243")
e("s_waitcnt lgkmcnt(0)")
e("v_max3_f32 v247, v24, v25, v26")
e("v_max_f32 v247, v247, v27")
for i in range(16):
    e(f"v_sub_f32 v{100+i}, v{100+i}, v247")
    if i >= 1:
        e(f"v_exp_f32 v{100+i-1}, v{100+i-1}")
e("v_exp_f32 v115, v115")
for i in range(4):
    e(f"v_cvt_pk_bf16_f32 v{28+i}, v{100+2*i}, v{101+2*i}")
e("ds_write_b128 v245, v[28:31]")
for i in range(4, 8):
    e(f"v_cvt_pk_bf16_f32 v{28+i}, v{100+2*i}, v{101+2*i}")
e("ds_write_b128 v245, v[32:35] offset:1024")
e("s_waitcnt lgkmcnt(0)")
lab("L_a_p_done")
barrier()
ts(5)
def pv_read(kk):
    base = 64 + 8 * (kk % 4)
    hi = kk >> 2
    off = (kk & 3) * 16384
    e(f"ds_read_b128 v[{32+4*kk}:{35+4*kk}], v246 offset:{1024*kk}")
    for ct in range(2):
        for rd in range(2):
            r = base + 4 * ct + 2 * rd
            e(f"ds_read_b64_tr_b16 v[{r}:{r+1}], v{216+4*ct+2*rd+hi} offset:{off}")
PD = 3
for kk in range(PD):
    pv_read(kk)
for i in range(8):
    e(f"v_add_f32 v{20+i}, v{100+2*i}, v{101+2*i}")
for i in range(4):
    e(f"v_add_f32 v{20+i}, v{20+2*i}, v{21+2*i}")
e("v_add_f32 v20, v20, v21")
e("v_add_f32 v22, v22, v23")
e("v_add_f32 v20, v20, v22")
e("v_mov_b32 v21, v20")
e("s_nop 1")
e("v_permlane32_swap_b32 v21, v20")
e("s_nop 0")
e("v_add_f32 v248, v20, v21")
for kk in range(8):
    outstanding = min(PD, 8 - kk)
    e(f"s_waitcnt lgkmcnt({5*(outstanding-1)})")
    base = 64 + 8 * (kk % 4)
    for ct in range(2):
        d = 100 + 16 * ct
        cc = "0" if kk == 0 else f"v[{d}:{d+15}]"
        e(f"v_mfma_f32_32x32x16_bf16 v[{d}:{d+15}], v[{base+4*ct}:{base+4*ct+3}], v[{32+4*kk}:{35+4*kk}], {cc}")
    if kk + PD < 8:
        pv_read(kk + PD)
e(f"s_cmp_ge_u32 s{sWAVE}, 4")
e("s_cbranch_scc1 L_a_ls_done")
e(f"ds_write_b32 v244, v248 offset:{LA_LS - LA_MX}")
lab("L_a_ls_done")
barrier()
ts(6)
e("s_nop 7")
for ct in range(2):
    for i4 in range(4):
        d = 100 + 16 * ct + 4 * i4
        t = 20 + 2 * (4 * ct + i4)
        e(f"v_cvt_pk_bf16_f32 v{t}, v{d}, v{d+1}")
        e(f"v_cvt_pk_bf16_f32 v{t+1}, v{d+2}, v{d+3}")
        e(f"ds_write_b64 v{160+4*ct+i4}, v[{t}:{t+1}] offset:{LA_O}")
e("s_waitcnt lgkmcnt(0)")
barrier()
for i in range(4):
    e(f"ds_read_b128 v[{40+4*i}:{43+4*i}], v{168+i} offset:{LA_O}")
e(f"ds_read_b128 v[24:27], v243 offset:{LA_LS - LA_MX}")
for i in range(4):
    e(f"s_waitcnt lgkmcnt({4-i})")
    if i:
        e(f"s_add_u32 s{sCS}, s{sCS}, 65536")
    e(f"buffer_store_dwordx4 v[{40+4*i}:{43+4*i}], v172, s[{R_WS}:{R_WS+3}], s{sCS} offen sc1")
ts(7)
e("s_waitcnt vmcnt(4)")
for i in range(4):
    e(f"ds_write_b128 v176, v[{224+4*i}:{227+4*i}] offset:{1024*i}")
e("v_add_f32 v24, v24, v25")
e("v_add_f32 v26, v26, v27")
e("v_add_f32 v25, v24, v26")
e("v_min_u32 v24, -2, v247")
e("v_min_u32 v25, -2, v25")
e(f"v_cmp_gt_u32 vcc, 32, v{vL}")
e("s_waitcnt vmcnt(0) lgkmcnt(0)")
barrier()
ts(8)
e(f"s_cmp_lg_u32 s{sWAVE}, 0")
e("s_cbranch_scc1 L_a_st_done")
exec_save_and()
e(f"buffer_store_dwordx2 v[24:25], v173, s[{R_WS}:{R_WS+3}], s{sKQ} offen sc1")
exec_restore()
lab("L_a_st_done")
for ks in range(4):
    e(f"ds_read_b64_tr_b16 v[{100+4*ks}:{101+4*ks}], v177 offset:{ks*8192}")
    e(f"ds_read_b64_tr_b16 v[{102+4*ks}:{103+4*ks}], v177 offset:{ks*8192 + 1024}")
e(f"s_lshr_b32 s{sT0}, s{sWAVE}, 2")
e(f"s_lshl_b32 s{sA0}, s{sT0}, 14")
e(f"s_lshl_b32 s{sT1}, s{sH}, 3")
e(f"s_add_u32 s{sA0}, s{sA0}, s{sT1}")
e(f"s_add_u32 s{sA0}, s{sA0}, {WS_ST}")
e(f"s_lshl_b32 s{sA1}, s{sT0}, 5")
e(f"s_add_u32 s{sA1}, s{sA1}, s{sH}")
e(f"s_lshl_b32 s{sA1}, s{sA1}, 2")
e(f"s_add_u32 s{sA1}, s{sA1}, s{sJQ}")
e(f"s_lshl_b32 s{sA1}, s{sA1}, 6")
e(f"s_and_b32 s{sT3}, s{sWAVE}, 3")
e(f"s_lshl_b32 s{sT1}, s{sT3}, 4")
e(f"s_add_u32 s{sA1}, s{sA1}, s{sT1}")
e(f"s_lshl_b32 s{sA1}, s{sA1}, 8")
e(f"s_add_u32 s{sA1}, s{sA1}, {WS_OP}")
e(f"s_lshl_b32 s{sA2}, s{sJQ}, 14")
e(f"s_lshl_b32 s{sT1}, s{sH}, 8")
e(f"s_add_u32 s{sA2}, s{sA2}, s{sT1}")
e(f"s_add_u32 s{sA2}, s{sA2}, {WS_CP}")
e(f"s_cmp_lg_u32 s{sT3}, 1")
e("s_cbranch_scc1 L_a_h3d")
spin_init()
lab("L_a_h3")
e(f"buffer_load_dwordx2 v[14:15], v178, s[{R_WS}:{R_WS+3}], s{sA0} offen sc1")
e("s_waitcnt vmcnt(0)")
e("v_max_u32 v11, v14, v15")
e("v_cmp_eq_u32 vcc, -1, v11")
spin_retry_if_vcc("L_a_h3", "L_a_h3d", 1)
lab("L_a_h3d")
barrier()
ts(9)
for i in range(4):
    e(f"buffer_load_dwordx4 v[{20+4*i}:{23+4*i}], v179, s[{R_WS}:{R_WS+3}], s{sA1} offen offset:{1024*i} sc1")
e(f"s_cmp_lg_u32 s{sT3}, 1")
e("s_cbranch_scc1 L_a_cf_done")
e("v_mov_b32 v16, v14")
allreduce("max", 16, 17)
e("v_sub_f32 v16, v14, v16")
e("v_exp_f32 v16, v16")
e("s_nop 0")
e("v_mul_f32 v18, v16, v15")
allreduce("add", 18, 17)
e("v_rcp_f32 v18, v18")
e("s_nop 0")
e("v_mul_f32 v16, v16, v18")
e("ds_write_b32 v180, v16")
e("s_waitcnt lgkmcnt(0)")
lab("L_a_cf_done")
barrier()
e("ds_read_b128 v[40:43], v181")
e("s_waitcnt lgkmcnt(0)")
for i in range(4):
    e(f"s_waitcnt vmcnt({3-i})")
    for j in range(4):
        src = 20 + 4 * i + j
        e(f"v_lshlrev_b32 v{44+2*j}, 16, v{src}")
        e(f"v_and_b32 v{45+2*j}, 0xffff0000, v{src}")
    for j in range(8):
        if i == 0:
            e(f"v_mul_f32 v{52+j}, v{40+i}, v{44+j}")
        else:
            e(f"v_fmac_f32 v{52+j}, v{40+i}, v{44+j}")
for j in range(4):
    e(f"v_cvt_pk_bf16_f32 v{60+j}, v{52+2*j}, v{53+2*j}")
e("ds_write_b128 v182, v[60:63]")
e("s_waitcnt lgkmcnt(0)")
barrier()
ts(10)
for ks in range(4):
    e(f"ds_read_b128 v[{20+8*ks}:{23+8*ks}], v{184+ks}")
    e(f"ds_read_b128 v[{24+8*ks}:{27+8*ks}], v{184+ks} offset:4096")
for ks in range(4):
    e(f"s_waitcnt lgkmcnt({2*(3-ks)})")
    c0 = "0" if ks == 0 else "v[60:63]"
    c1 = "0" if ks == 0 else "v[64:67]"
    e(f"v_mfma_f32_16x16x32_bf16 v[60:63], v[{20+8*ks}:{23+8*ks}], v[{100+4*ks}:{103+4*ks}], {c0}")
    e(f"v_mfma_f32_16x16x32_bf16 v[64:67], v[{24+8*ks}:{27+8*ks}], v[{100+4*ks}:{103+4*ks}], {c1}")
e(f"v_cmp_gt_u32 vcc, 32, v{vL}")
e("s_nop 6")
e("v_add_f32 v60, v60, v61")
e("v_add_f32 v62, v62, v63")
e("v_add_f32 v64, v64, v65")
e("v_add_f32 v66, v66, v67")
e("v_add_f32 v60, v60, v62")
e("v_add_f32 v64, v64, v66")
e("s_nop 1")
e("v_permlane32_swap_b32 v60, v64")
e("s_nop 0")
e("v_add_f32 v60, v60, v64")
e("v_mov_b32 v61, v60")
e("s_nop 1")
e("v_permlane16_swap_b32 v61, v60")
e("s_nop 0")
e("v_add_f32 v60, v60, v61")
e("v_cvt_pk_bf16_f32 v60, v60, v60")
e("ds_write_b16 v188, v60")
e("s_waitcnt lgkmcnt(0)")
barrier()
e(f"s_cmp_lg_u32 s{sWAVE}, 0")
e("s_cbranch_scc1 L_a_fin")
e("ds_read_b128 v[60:63], v189")
e("s_waitcnt lgkmcnt(0)")
for i in range(4):
    e(f"v_min_u32 v{60+i}, -2, v{60+i}")
exec_save_and()
e(f"buffer_store_dwordx4 v[60:63], v190, s[{R_WS}:{R_WS+3}], s{sA2} offen sc1")
exec_restore()
lab("L_a_fin")
ts_flush(12)
lab("L_end")
e("s_endpgm")
lab("L_code_end")

tail = [
    '.section .rodata,"a"',
    ".p2align 6",
    f".amdhsa_kernel {NAME}_kernel",
    "  .amdhsa_next_free_vgpr 256",
    "  .amdhsa_next_free_sgpr 102",
    "  .amdhsa_accum_offset 256",
    "  .amdhsa_group_segment_fixed_size 0",
    "  .amdhsa_kernarg_size 104",
    "  .amdhsa_user_sgpr_count 2",
    "  .amdhsa_user_sgpr_kernarg_segment_ptr 1",
    "  .amdhsa_system_sgpr_workgroup_id_x 1",
    ".end_amdhsa_kernel",
]
open(OUT, "w").write("\n".join(head + L + tail) + "\n")
print("wrote", OUT, len(L), "lines")
```

```python
import sys

NAME = "sequential_preLN__compressed_kv_cla__glu_gated_swiglu__decode"
TS = int(sys.argv[2]) if len(sys.argv) > 2 else 0
OUT = sys.argv[1] if len(sys.argv) > 1 else f"cdna_kernels/{NAME}.s"

WS_QP = 0x00000
WS_QA = 0x10000
WS_ST = 0x20000
WS_CP = 0x28000
WS_HP = 0x38000
WS_ACT = 0x3D000
GOPT = int(sys.argv[8]) if len(sys.argv) > 8 else 0
PSLEEP = 0
TOUCH = int(sys.argv[11]) if len(sys.argv) > 11 else 1
GPOS = int(sys.argv[10]) if len(sys.argv) > 10 else 16
AOPT = int(sys.argv[9]) if len(sys.argv) > 9 else 1
DOUBLE = int(sys.argv[7]) if len(sys.argv) > 7 else 0
CODEPF = int(sys.argv[6]) if len(sys.argv) > 6 else 1
T5MAP = int(sys.argv[5]) if len(sys.argv) > 5 else 1
WS_LD = 0x3F000
NF = int(sys.argv[3]) if len(sys.argv) > 3 else 4
USE_LD = int(sys.argv[4]) if len(sys.argv) > 4 else 1
NCLR = 32
WS_OP = 0x100000
WS_TS = 0x800000
WS_SIZE = 0x10000000
SPIN_MAX = 40000

import struct
def fl(x):
    return '0x%08x' % struct.unpack('<I', struct.pack('<f', x))[0]
L = []
def e(s):
    L.append("    " + s)
def lab(s):
    L.append(s + ":")
def c(s):
    L.append("    ; " + s)

_uid = [0]
def uid(p):
    _uid[0] += 1
    return f"{p}_{_uid[0]}"

sWAVE = 3
sIDX = 4
sH = 5
sJQ = 6
sT0 = 7
P_X, P_CKV, P_WQ, P_WUK, P_WUV, P_WO, P_BX, P_W1, P_W3, P_W2, P_OUT, P_DBG, P_WS = [8 + 2 * i for i in range(13)]
sSPIN = 34
sT1 = 35
R_WS = 36
R_A = 40
R_B = 44
R_C = 48
R_DBG = 52
sT2, sT3, sT4, sT5 = 56, 57, 58, 59
sEX = 60
sB = 62
sS = 63
sCS = 64
sKQ = 65
sTSB = 70

def srd(r, p, nbytes):
    e(f"s_mov_b32 s{r}, s{p}")
    e(f"s_and_b32 s{r+1}, s{p+1}, 0xffff")
    e(f"s_mov_b32 s{r+2}, {nbytes:#x}")
    e(f"s_mov_b32 s{r+3}, 0x00020000")

_tsn = [0]
def ts(i):
    if TS:
        e(f"s_memrealtime s[{sTSB+2*i}:{sTSB+2*i+1}]")

def ts_flush(nslots):
    if not TS:
        return
    if TS == 3:
        l1 = uid("L_tsf")
        e("s_waitcnt lgkmcnt(0)")
        e(f"s_cmp_lg_u32 s{sWAVE}, 0")
        e(f"s_cbranch_scc1 {l1}")
        l2 = uid("L_tsg")
        e("s_cmp_eq_u32 s2, 94")
        e(f"s_cbranch_scc1 {l2}")
        e("s_cmp_lg_u32 s2, 200")
        e(f"s_cbranch_scc1 {l1}")
        lab(l2)
        e("v_mov_b32 v250, 0")
        e("s_cmp_eq_u32 s2, 94")
        e(f"s_cselect_b32 s{sT1}, 4, 32")
        for k, (a, b) in enumerate(zip([1, 2, 4, 5, 6, 10, 11, 11], [1, 2, 3, 6, 8, 9, 10, 11])):
            e("s_cmp_eq_u32 s2, 94")
            e(f"s_cselect_b32 s{sT0}, s{sTSB+2*a}, s{sTSB+2*b}")
            e(f"s_sub_u32 s{sT0}, s{sT0}, s{sTSB}")
            e(f"v_mov_b32 v251, s{sT0}")
            e(f"s_mov_b64 s[{sEX}:{sEX+1}], exec")
            e("s_mov_b64 exec, 1")
            if k == 7:
                e("s_cmp_eq_u32 s2, 94")
                e(f"s_cselect_b32 s{sT1}, 28, s{sT1}")
            e(f"buffer_store_dword v251, v250, s[{R_DBG}:{R_DBG+3}], s{sT1} offen")
            e(f"s_mov_b64 exec, s[{sEX}:{sEX+1}]")
            e(f"s_add_u32 s{sT1}, s{sT1}, 4")
        lab(l1)
        return
    l1 = uid("L_tsf")
    e("s_waitcnt lgkmcnt(0)")
    e(f"s_cmp_lg_u32 s{sWAVE}, 0")
    e(f"s_cbranch_scc1 {l1}")
    e("v_mov_b32 v250, 0")
    for i in range(nslots):
        e(f"v_mov_b32 v251, s{sTSB+2*i}")
        e(f"s_lshl_b32 s{sT0}, s2, 6")
        e(f"s_add_u32 s{sT0}, s{sT0}, {WS_TS + 4*i:#x}")
        e(f"s_mov_b64 s[{sEX}:{sEX+1}], exec")
        e("s_mov_b64 exec, 1")
        e(f"buffer_store_dword v251, v250, s[{R_WS}:{R_WS+3}], s{sT0} offen")
        e(f"s_mov_b64 exec, s[{sEX}:{sEX+1}]")
        e("s_nop 1")
    lab(l1)

def allreduce(op, v, t):
    for pat in ("quad_perm:[1,0,3,2]", "quad_perm:[2,3,0,1]", "row_half_mirror", "row_mirror"):
        e("s_nop 1")
        e(f"v_{op}_f32_dpp v{v}, v{v}, v{v} {pat} row_mask:0xf bank_mask:0xf")
    e(f"v_mov_b32 v{t}, v{v}")
    e("s_nop 1")
    e(f"v_permlane16_swap_b32 v{t}, v{v}")
    e("s_nop 0")
    e(f"v_{op}_f32 v{v}, v{v}, v{t}")
    e(f"v_mov_b32 v{t}, v{v}")
    e("s_nop 1")
    e(f"v_permlane32_swap_b32 v{t}, v{v}")
    e("s_nop 0")
    e(f"v_{op}_f32 v{v}, v{v}, v{t}")

def umax_chain(dst, regs):
    regs = list(regs)
    e(f"v_max3_u32 v{dst}, v{regs[0]}, v{regs[1]}, v{regs[2]}")
    i = 3
    while i < len(regs):
        if i + 1 < len(regs):
            e(f"v_max3_u32 v{dst}, v{dst}, v{regs[i]}, v{regs[i+1]}")
            i += 2
        else:
            e(f"v_max_u32 v{dst}, v{dst}, v{regs[i]}")
            i += 1

def spin_init():
    e(f"s_mov_b32 s{sSPIN}, 0")

def spin_retry_if_vcc(top, done, sleep=0):
    e(f"s_cbranch_vccz {done}")
    if sleep:
        e(f"s_sleep {sleep}")
    e(f"s_add_u32 s{sSPIN}, s{sSPIN}, 1")
    e(f"s_cmp_lt_u32 s{sSPIN}, {SPIN_MAX}")
    e(f"s_cbranch_scc1 {top}")

def barrier():
    e("s_barrier")

vL = 2

hdr = open(f"cdna_kernels/{NAME}.s.ref").read().split("\n")
head = []
for line in hdr:
    if line.startswith("; @launch"):
        head.append("; @launch grid=(256,1,1) block=(512,1,1) lds=163840")
        break
    head.append(line)
head += [
    '.amdgcn_target "amdgcn-amd-amdhsa--gfx950"',
    ".text",
    f".globl {NAME}_kernel",
    ".p2align 8",
    f".type {NAME}_kernel,@function",
    f"{NAME}_kernel:",
]

e("s_cmp_ge_u32 s2, 256")
e("s_cbranch_scc1 L_end")
ts(0)
if DOUBLE:
    e("s_memrealtime s[96:97]")
e("s_load_dwordx16 s[8:23], s[0:1], 0")
e("s_load_dwordx8 s[24:31], s[0:1], 64")
e("s_load_dwordx2 s[32:33], s[0:1], 96")
e("v_lshrrev_b32 v1, 6, v0")
e(f"v_and_b32 v{vL}, 63, v0")
e(f"v_readfirstlane_b32 s{sWAVE}, v1")
e("v_mov_b32 v3, 0")
e("s_waitcnt lgkmcnt(0)")
e(f"s_load_dword s101, s[{P_DBG}:{P_DBG+1}], 64")
srd(R_WS, P_WS, WS_SIZE)
srd(R_DBG, P_DBG, 256)
e("s_cmp_ge_u32 s2, 128")
e("s_cbranch_scc1 L_arole")


LW_WQ = 0
LW_XN = 40960
LW_STG = 43520
LW_RED = 131072
LW_H = 135168
LW_STAT = 139264
sA0, sA1, sA2, sA3 = 66, 67, 68, 69

def exec_save_and(mask="vcc"):
    e(f"s_and_saveexec_b64 s[{sEX}:{sEX+1}], {mask}")
def exec_restore():
    e(f"s_mov_b64 exec, s[{sEX}:{sEX+1}]")

c("================= W role =================")
LW_WUK = 49152
LW_QPL = 81920
e(f"s_mov_b32 s{sIDX}, s2")
e(f"s_and_b32 s{sH}, s2, 31")
e(f"s_lshr_b32 s{sJQ}, s2, 5")
e(f"v_lshrrev_b32 v4, 4, v{vL}")
e(f"v_and_b32 v5, 15, v{vL}")
if CODEPF:
    e(f"s_sub_u32 s{sT0}, s{sIDX}, 32")
    e(f"s_cmp_ge_u32 s{sT0}, 16")
    e("s_cbranch_scc1 L_w_nopf")
    e(f"s_getpc_b64 s[{sT2}:{sT3}]")
    lab("L_pc_ref")
    e(f"s_sub_u32 s{sT2}, s{sT2}, L_pc_ref-{NAME}_kernel")
    e(f"s_subb_u32 s{sT3}, s{sT3}, 0")
    e("v_lshlrev_b32 v6, 4, v0")
    for j in range(3):
        if j:
            e("v_add_u32 v6, 0x2000, v6")
        e(f"v_min_u32 v7, L_code_end-{NAME}_kernel-16, v6")
        e(f"global_load_dwordx4 v[{232+4*j}:{235+4*j}], v7, s[{sT2}:{sT3}]")
    lab("L_w_nopf")
e(f"s_cmp_ge_u32 s{sIDX}, {NCLR}")
e("s_cbranch_scc1 L_w_noclr")
e("v_lshlrev_b32 v6, 4, v0")
for j in range(4):
    e(f"v_mov_b32 v{8+j}, -1")
e(f"s_lshl_b32 s{sT0}, s{sIDX}, 13")
e(f"s_cmp_ge_u32 s{sIDX}, 8")
e("s_cbranch_scc1 L_w_clr_lin")
e("v_and_b32 v6, 0x7ff, v6")
e(f"s_lshr_b32 s{sT1}, s{sWAVE}, 1")
e(f"s_lshl_b32 s{sT1}, s{sT1}, 14")
e(f"s_lshl_b32 s{sT0}, s{sIDX}, 11")
e(f"s_add_u32 s{sT0}, s{sT0}, s{sT1}")
lab("L_w_clr_lin")
e(f"buffer_store_dwordx4 v[8:11], v6, s[{R_WS}:{R_WS+3}], s{sT0} offen sc1")
barrier()
lab("L_w_noclr")
srd(R_C, P_WUK, 512 * 8192)
e("v_xor_b32 v228, v5, v4")
e("v_lshlrev_b32 v228, 4, v228")
e("v_lshl_add_u32 v228, v4, 13, v228")
e(f"s_lshl_b32 s{sA1}, s{sJQ}, 7")
e(f"s_lshl_b32 s{sT1}, s{sWAVE}, 4")
e(f"s_add_u32 s{sA1}, s{sA1}, s{sT1}")
e(f"s_lshl_b32 s{sA1}, s{sA1}, 13")
e(f"s_lshl_b32 s{sT1}, s{sH}, 8")
e(f"s_add_u32 s{sA1}, s{sA1}, s{sT1}")
e(f"s_lshl_b32 s{sT1}, s{sWAVE}, 12")
for i in range(4):
    e(f"v_xor_b32 v18, {64*i}, v228")
    e(f"s_add_u32 m0, s{sT1}, {LW_WUK + 1024*i}")
    e(f"s_add_u32 s{sT4}, s{sA1}, {4*8192*i}")
    e(f"buffer_load_dwordx4 v18, s[{R_C}:{R_C+3}], s{sT4} offen nt lds")
ts(1)
e(f"s_cmp_ge_u32 s{sIDX}, {NCLR}")
e("s_cbranch_scc1 L_w_noclr2")
e("s_waitcnt vmcnt(4)")
ts(3)
barrier()
ts(8)
e(f"s_cmp_lg_u32 s{sWAVE}, 0")
e("s_cbranch_scc1 L_w_noclr2")
e(f"s_mov_b32 s{sT0}, 1")
e(f"s_cmp_ge_u32 s{sIDX}, 8")
e("s_cbranch_scc1 L_w_clr_b")
e(f"s_lshl_b32 s{sT1}, s{sIDX}, 2")
e(f"s_add_u32 s{sT1}, s{sT1}, 132")
e(f"s_atomic_add s{sT0}, s[{P_DBG}:{P_DBG+1}], s{sT1}")
e("s_branch L_w_noclr2")
lab("L_w_clr_b")
e(f"s_atomic_add s{sT0}, s[{P_DBG}:{P_DBG+1}], 4 glc")
e("s_waitcnt lgkmcnt(0)")
ts(9)
e(f"s_cmp_lg_u32 s{sT0}, {NCLR-9}")
e("s_cbranch_scc1 L_w_noclr2")
e(f"s_movk_i32 s{sT0}, 0x100")
e(f"s_atomic_add s{sT0}, s[{P_DBG}:{P_DBG+1}], 128")
lab("L_w_noclr2")
e(f"v_bfe_u32 v200, v{vL}, 2, 2")
e(f"v_and_b32 v201, 3, v{vL}")
e("v_lshl_add_u32 v202, v4, 3, v200")
e(f"v_lshlrev_b32 v204, 4, v{vL}")
e("v_and_b32 v208, 511, v204")
e(f"s_lshl_b32 s{sA2}, s{sH}, 11")
e("v_lshlrev_b32 v10, 1, v4")
e("v_xor_b32 v10, v10, v5")
e("v_lshlrev_b32 v10, 4, v10")
e("v_lshl_add_u32 v205, v4, 8, v10")
e(f"v_add_u32 v205, {LW_QPL}, v205")
e("v_xor_b32 v219, 128, v205")
e(f"v_bfe_u32 v11, v{vL}, 2, 1")
e("v_lshl_add_u32 v206, v201, 1, v11")
e("v_lshlrev_b32 v10, 1, v206")
e("v_lshlrev_b32 v11, 8, v206")
e(f"v_add_u32 v11, {LW_QPL}, v11")
for ks in range(4):
    e(f"v_add_u32 v12, {4*ks}, v4")
    e("v_xor_b32 v12, v12, v10")
    e(f"v_lshl_add_u32 v{220+ks}, v12, 4, v11")
e("v_lshlrev_b32 v11, 8, v5")
e(f"s_lshl_b32 s{sT1}, s{sWAVE}, 12")
e(f"s_add_u32 s{sT1}, s{sT1}, {LW_WUK}")
e(f"v_add_u32 v11, s{sT1}, v11")
for ks in range(4):
    e(f"v_add_u32 v12, {4*ks}, v4")
    e("v_xor_b32 v12, v12, v5")
    e(f"v_lshl_add_u32 v{224+ks}, v12, 4, v11")
e("v_lshlrev_b32 v207, 8, v4")
e("v_lshl_add_u32 v207, v5, 1, v207")
e(f"s_lshl_b32 s{sT0}, s{sWAVE}, 5")
e(f"v_add_u32 v207, s{sT0}, v207")
e("v_lshlrev_b32 v209, 15, v4")
e("v_lshl_add_u32 v209, v5, 4, v209")
e(f"s_lshl_b32 s{sA3}, s{sH}, 10")
e(f"s_lshl_b32 s{sT1}, s{sJQ}, 8")
e(f"s_add_u32 s{sA3}, s{sA3}, s{sT1}")
e(f"s_add_u32 s{sA3}, s{sA3}, {WS_QA}")
e("s_waitcnt vmcnt(0)")
ts(2)
for ks in range(4):
    e(f"ds_read_b128 v[{20+4*ks}:{23+4*ks}], v{224+ks}")
e(f"s_cmp_lg_u32 s{sWAVE}, 7")
e("s_cbranch_scc1 L_w_notcomm")
e(f"s_and_b32 s{sT0}, s{sH}, 7")
e(f"s_lshl_b32 s{sT0}, s{sT0}, 2")
spin_init()
lab("L_w_poll")
e(f"buffer_load_dword v10, v3, s[{R_DBG}:{R_DBG+3}], s{sT0} offen offset:132 sc1")
e("s_waitcnt vmcnt(0)")
e("v_cmp_eq_u32 vcc, 0, v10")
spin_retry_if_vcc("L_w_poll", "L_w_polld", 2)
lab("L_w_polld")
spin_init()
lab("L_w_h1")
e(f"buffer_load_dwordx4 v[40:43], v204, s[{R_WS}:{R_WS+3}], s{sA2} offen sc1")
e(f"buffer_load_dwordx4 v[44:47], v204, s[{R_WS}:{R_WS+3}], s{sA2} offen offset:1024 sc1")
e(f"buffer_load_dword v10, v3, s[{R_DBG}:{R_DBG+3}], 0 offen offset:128 sc1")
e("s_waitcnt vmcnt(0)")
umax_chain(11, range(40, 48))
e("v_add_u32 v10, -1, v10")
e("v_max_u32 v11, v11, v10")
e("v_cmp_eq_u32 vcc, -1, v11")
spin_retry_if_vcc("L_w_h1", "L_w_h1d", 0)
lab("L_w_h1d")
e("ds_write_b128 v205, v[40:43]")
e("ds_write_b128 v219, v[44:47] offset:1024")
lab("L_w_notcomm")
e(f"v_cmp_gt_u32 vcc, 32, v{vL}")
e("s_waitcnt lgkmcnt(0)")
barrier()
ts(4)
for ks in range(4):
    e(f"ds_read_b128 v[{40+4*ks}:{43+4*ks}], v{220+ks}")
SCALE = (128 ** -0.5) * 1.4426950408889634
e(f"s_mov_b32 s{sT1}, {fl(SCALE)}")
for ks in range(4):
    e(f"s_waitcnt lgkmcnt({3-ks})")
    cc = "0" if ks == 0 else "v[60:63]"
    e(f"v_mfma_f32_16x16x32_bf16 v[60:63], v[{40+4*ks}:{43+4*ks}], v[{20+4*ks}:{23+4*ks}], {cc}")
e("s_nop 7")
e("v_add_f32 v60, v60, v61")
e("v_add_f32 v62, v62, v63")
e("v_add_f32 v60, v60, v62")
e(f"v_mul_f32 v60, s{sT1}, v60")
e("v_cvt_pk_bf16_f32 v60, v60, v60")
exec_save_and()
e(f"ds_write_b16 v207, v60 offset:{LW_STG}")
exec_restore()
e("s_waitcnt lgkmcnt(0)")
barrier()
e(f"s_cmp_lg_u32 s{sWAVE}, 0")
e("s_cbranch_scc1 L_w_qa_done")
e(f"ds_read_b128 v[60:63], v208 offset:{LW_STG}")
e("s_waitcnt lgkmcnt(0)")
for i in range(4):
    e(f"v_min_u32 v{60+i}, -2, v{60+i}")
exec_save_and()
e(f"buffer_store_dwordx4 v[60:63], v209, s[{R_WS}:{R_WS+3}], s{sA3} offen sc1")
exec_restore()
lab("L_w_qa_done")
ts(5)
e(f"s_cmp_ge_u32 s{sIDX}, 114")
e("s_cbranch_scc1 L_w_fin")
if USE_LD:
    e(f"s_cmp_lg_u32 s{sWAVE}, 0")
    e("s_cbranch_scc1 L_w_ldd")
    e(f"s_lshl_b32 s{sT0}, s{sIDX}, 5")
    e(f"s_add_u32 s{sT0}, s{sT0}, {WS_LD}")
    spin_init()
    lab("L_w_ld")
    e(f"buffer_load_dword v10, v3, s[{R_WS}:{R_WS+3}], s{sT0} offen sc1")
    e("s_waitcnt vmcnt(0)")
    e("v_cmp_eq_u32 vcc, -1, v10")
    spin_retry_if_vcc("L_w_ld", "L_w_ldd", 2)
    lab("L_w_ldd")
barrier()
ts(7)
e(f"s_cmp_ge_u32 s{sIDX}, 94")
e("s_cbranch_scc1 L_t7")
e(f"s_cmp_ge_u32 s{sIDX}, 40")
e("s_cbranch_scc1 L_t6")
c("---- T5 ----")
if T5MAP:
    e(f"s_bfe_u32 s{sKQ}, s{sIDX}, 0x20001")
    e(f"s_and_b32 s{sT0}, s{sIDX}, 1")
    e(f"s_mul_i32 s{sT0}, s{sT0}, 5")
    e(f"s_lshr_b32 s{sCS}, s{sIDX}, 3")
    e(f"s_add_u32 s{sCS}, s{sCS}, s{sT0}")
else:
    e(f"s_mul_i32 s{sKQ}, s{sIDX}, 26")
    e(f"s_lshr_b32 s{sKQ}, s{sKQ}, 8")
    e(f"s_mul_i32 s{sT0}, s{sKQ}, 10")
    e(f"s_sub_u32 s{sCS}, s{sIDX}, s{sT0}")
srd(R_B, P_WO, 4096 * 1280)
e(f"v_lshrrev_b32 v9, 3, v{vL}")
e("v_mul_u32_u24 v9, 1280, v9")
e(f"v_and_b32 v10, 7, v{vL}")
e("v_lshl_add_u32 v9, v10, 4, v9")
e(f"s_lshl_b32 s{sT0}, s{sKQ}, 10")
e(f"s_lshl_b32 s{sT1}, s{sWAVE}, 7")
e(f"s_add_u32 s{sT0}, s{sT0}, s{sT1}")
e(f"s_mul_i32 s{sT0}, s{sT0}, 1280")
e(f"s_lshl_b32 s{sT1}, s{sCS}, 7")
e(f"s_add_u32 s{sT0}, s{sT0}, s{sT1}")
e(f"s_lshl_b32 s{sT1}, s{sWAVE}, 14")
for i in range(16):
    e(f"s_add_u32 m0, s{sT1}, {1024*i}")
    e(f"s_add_u32 s{sT2}, s{sT0}, {8*1280*i}")
    e(f"buffer_load_dwordx4 v9, s[{R_B}:{R_B+3}], s{sT2} offen nt lds")
e("v_lshlrev_b32 v9, 7, v202")
e("v_lshl_add_u32 v9, v201, 3, v9")
e(f"v_add_u32 v9, s{sT1}, v9")
e("v_lshlrev_b32 v10, 13, v206")
e("v_lshl_add_u32 v10, v4, 4, v10")
e(f"v_bfe_u32 v11, v{vL}, 3, 1")
e("v_lshl_add_u32 v10, v11, 6, v10")
e(f"s_lshl_b32 s{sA0}, s{sKQ}, 11")
e(f"s_lshl_b32 s{sT1}, s{sWAVE}, 8")
e(f"s_add_u32 s{sA0}, s{sA0}, s{sT1}")
e(f"s_add_u32 s{sA0}, s{sA0}, {WS_CP}")
e("v_and_b32 v12, 1, v4")
e("v_lshlrev_b32 v12, 8, v12")
e("v_lshl_add_u32 v12, v5, 2, v12")
e(f"v_lshrrev_b32 v11, 5, v{vL}")
e("v_lshl_add_u32 v12, v11, 6, v12")
e(f"s_lshl_b32 s{sT0}, s{sWAVE}, 9")
e(f"s_add_u32 s{sT0}, s{sT0}, {LW_RED}")
e(f"v_add_u32 v12, s{sT0}, v12")
e(f"v_lshlrev_b32 v14, 2, v{vL}")
e(f"s_and_b32 s{sT0}, s{sWAVE}, 1")
e(f"s_lshl_b32 s{sT1}, s{sT0}, 8")
e(f"s_add_u32 s{sT1}, s{sT1}, {LW_RED}")
e(f"v_add_u32 v13, s{sT1}, v14")
e(f"s_lshl_b32 s{sA1}, s{sKQ}, 1")
e(f"s_add_u32 s{sA1}, s{sA1}, s{sT0}")
e(f"s_mul_i32 s{sA1}, s{sA1}, 2560")
e(f"s_lshl_b32 s{sT1}, s{sCS}, 8")
e(f"s_add_u32 s{sA1}, s{sA1}, s{sT1}")
e(f"s_add_u32 s{sA1}, s{sA1}, {WS_HP}")
e("s_waitcnt vmcnt(0)")
ts(6)
for ks in range(4):
    for ct in range(4):
        r = 100 + 16 * ks + 4 * ct
        e(f"ds_read_b64_tr_b16 v[{r}:{r+1}], v9 offset:{ks*4096 + ct*32}")
        e(f"ds_read_b64_tr_b16 v[{r+2}:{r+3}], v9 offset:{ks*4096 + ct*32 + 512}")
    e("s_waitcnt lgkmcnt(0)")
e(f"v_cmp_gt_u32 s[{sA2}:{sA3}], 32, v{vL}")
spin_init()
lab("L_w_h4")
for j in range(2):
    e(f"buffer_load_dwordx4 v[{20+4*j}:{23+4*j}], v10, s[{R_WS}:{R_WS+3}], s{sA0} offen offset:{128*j} sc1")
e("s_waitcnt vmcnt(0)")
umax_chain(11, range(20, 28))
e("v_cmp_eq_u32 vcc, -1, v11")
spin_retry_if_vcc("L_w_h4", "L_w_h4d", 0)
lab("L_w_h4d")
ts(10)
for j in range(2):
    for par in range(2):
        for ct in range(4):
            d = 60 + 16 * par + 4 * ct
            cc = "0" if j == 0 else f"v[{d}:{d+3}]"
            r = 100 + 16 * (2 * j + par) + 4 * ct
            e(f"v_mfma_f32_16x16x32_bf16 v[{d}:{d+3}], v[{20+4*j}:{23+4*j}], v[{r}:{r+3}], {cc}")
e("s_nop 0")
for q in range(8):
    d = 60 + 4 * q
    e(f"v_add_f32 v{d}, v{d}, v{d+1}")
    e(f"v_add_f32 v{d+2}, v{d+2}, v{d+3}")
for q in range(8):
    d = 60 + 4 * q
    e(f"v_add_f32 v{d}, v{d}, v{d+2}")
e("s_nop 1")
e("v_permlane32_swap_b32 v76, v64")
e("v_permlane32_swap_b32 v84, v72")
e("s_nop 0")
e("v_add_f32 v60, v60, v64")
e("v_add_f32 v80, v80, v76")
e("v_add_f32 v68, v68, v72")
e("v_add_f32 v88, v88, v84")
e(f"v_cndmask_b32 v60, v80, v60, s[{sA2}:{sA3}]")
e(f"v_cndmask_b32 v68, v88, v68, s[{sA2}:{sA3}]")
e("ds_write_b32 v12, v60")
e("ds_write_b32 v12, v68 offset:128")
e("s_waitcnt lgkmcnt(0)")
barrier()
e(f"s_cmp_ge_u32 s{sWAVE}, 2")
e("s_cbranch_scc1 L_w_fin")
for i in range(8):
    e(f"ds_read_b32 v{20+i}, v13 offset:{512*i}")
e("s_waitcnt lgkmcnt(0)")
e("v_add_f32 v20, v20, v21")
e("v_add_f32 v22, v22, v23")
e("v_add_f32 v24, v24, v25")
e("v_add_f32 v26, v26, v27")
e("v_add_f32 v20, v20, v22")
e("v_add_f32 v24, v24, v26")
e("v_add_f32 v20, v20, v24")
e("v_min_u32 v20, -2, v20")
e(f"buffer_store_dword v20, v14, s[{R_WS}:{R_WS+3}], s{sA1} offen sc1")
ts(11)
e("s_branch L_w_fin")
lab("L_t6")
c("---- T6 ----")
e(f"s_sub_u32 s{sCS}, s{sIDX}, 40")
e(f"s_and_b32 s{sT0}, s{sWAVE}, 1")
e(f"s_cmp_eq_u32 s{sT0}, 0")
e(f"s_cselect_b32 s{R_B}, s{P_W1}, s{P_W3}")
e(f"s_cselect_b32 s{R_B+1}, s{P_W1+1}, s{P_W3+1}")
e(f"s_and_b32 s{R_B+1}, s{R_B+1}, 0xffff")
e(f"s_mov_b32 s{R_B+2}, {640*3456}")
e(f"s_mov_b32 s{R_B+3}, 0x00020000")
e(f"v_lshrrev_b32 v9, 2, v{vL}")
e("v_mul_u32_u24 v9, 3456, v9")
e("v_lshl_add_u32 v9, v201, 4, v9")
e(f"s_lshr_b32 s{sKQ}, s{sWAVE}, 1")
e(f"s_mul_i32 s{sT0}, s{sKQ}, {160*3456}")
e(f"s_lshl_b32 s{sT1}, s{sCS}, 6")
e(f"s_add_u32 s{sT0}, s{sT0}, s{sT1}")
e(f"s_mul_i32 s{sT1}, s{sWAVE}, 10240")
for i in range(10):
    e(f"s_add_u32 m0, s{sT1}, {1024*i}")
    e(f"s_add_u32 s{sT2}, s{sT0}, {16*3456*i}")
    e(f"buffer_load_dwordx4 v9, s[{R_B}:{R_B+3}], s{sT2} offen nt lds")
srd(R_A, P_X, 2560)
e(f"s_lshr_b32 s{sB}, s{sWAVE}, 2")
e(f"s_and_b32 s{sS}, s{sWAVE}, 3")
e(f"v_min_u32 v12, 39, v{vL}")
e("v_lshlrev_b32 v13, 3, v12")
e(f"s_mul_i32 s{sT2}, s{sB}, 1280")
e(f"s_mul_i32 s{sT3}, s{sS}, 320")
e(f"s_add_u32 s{sT2}, s{sT2}, s{sT3}")
e(f"buffer_load_dwordx2 v[14:15], v13, s[{R_A}:{R_A+3}], s{sT2} offen")
e("v_lshlrev_b32 v16, 2, v0")
e("v_mov_b32 v17, 0x3f803f80")
e("v_cmp_gt_u32 vcc, 320, v0")
e(f"v_add_u32 v16, {LW_H + 2560}, v16")
exec_save_and()
e("ds_write_b32 v16, v17")
exec_restore()
e("v_lshlrev_b32 v9, 6, v202")
e("v_lshl_add_u32 v9, v201, 3, v9")
e(f"v_add_u32 v9, s{sT1}, v9")
e("v_lshlrev_b32 v210, 4, v12")
e(f"s_lshl_b32 s{sA0}, s{sT2}, 1")
e(f"s_add_u32 s{sA0}, s{sA0}, {WS_HP}")
for kq in range(1, 4):
    e(f"s_add_u32 s{sA0+kq}, s{sA0}, {5120*kq}")
e(f"s_add_u32 s{sT2}, s{sT2}, {LW_H}")
e(f"v_add_u32 v211, s{sT2}, v13")
e(f"s_lshl_b32 s{sT0}, s{sWAVE}, 3")
e(f"s_add_u32 s{sT0}, s{sT0}, {LW_STAT}")
e(f"v_mov_b32 v212, s{sT0}")
e("v_min_u32 v213, 2, v5")
e("v_mul_u32_u24 v213, 1280, v213")
e("v_lshl_add_u32 v213, v4, 4, v213")
e(f"s_mul_i32 s{sT0}, s{sKQ}, 320")
e(f"s_add_u32 s{sT0}, s{sT0}, {LW_H}")
e(f"v_add_u32 v213, s{sT0}, v213")
e("v_lshlrev_b32 v214, 2, v5")
e(f"s_mul_i32 s{sT0}, s{sWAVE}, 384")
e(f"s_add_u32 s{sT0}, s{sT0}, {LW_RED}")
e(f"v_add_u32 v214, s{sT0}, v214")
e(f"v_lshrrev_b32 v16, 5, v{vL}")
e(f"v_and_b32 v17, 31, v{vL}")
e("v_lshlrev_b32 v215, 7, v16")
e("v_lshl_add_u32 v215, v17, 2, v215")
e(f"v_add_u32 v215, {LW_RED}, v215")
e("v_lshlrev_b32 v216, 2, v17")
e(f"v_add_u32 v216, {LW_RED + 256}, v216")
e("v_lshlrev_b32 v217, 5, v16")
e(f"v_add_u32 v217, {LW_STAT}, v217")
e("v_mul_u32_u24 v218, 3456, v16")
e("v_lshl_add_u32 v218, v17, 1, v218")
e(f"s_lshl_b32 s{sCS}, s{sCS}, 6")
e(f"s_add_u32 s{sCS}, s{sCS}, {WS_ACT}")
e("s_waitcnt vmcnt(0)")
ts(6)
for ks in range(5):
    for ct in range(2):
        r = 100 + 8 * ks + 4 * ct
        e(f"ds_read_b64_tr_b16 v[{r}:{r+1}], v9 offset:{ks*2048 + ct*32}")
        e(f"ds_read_b64_tr_b16 v[{r+2}:{r+3}], v9 offset:{ks*2048 + ct*32 + 256}")
    e("s_waitcnt lgkmcnt(4)")
e("v_lshlrev_b32 v40, 16, v14")
e("v_and_b32 v41, 0xffff0000, v14")
e("v_lshlrev_b32 v42, 16, v15")
e("v_and_b32 v43, 0xffff0000, v15")
e("s_waitcnt lgkmcnt(0)")
spin_init()
lab("L_w_h5")
for kq in range(4):
    e(f"buffer_load_dwordx4 v[{20+4*kq}:{23+4*kq}], v210, s[{R_WS}:{R_WS+3}], s{sA0+kq} offen sc1")
e("s_waitcnt vmcnt(0)")
umax_chain(11, range(20, 36))
e("v_cmp_eq_u32 vcc, -1, v11")
spin_retry_if_vcc("L_w_h5", "L_w_h5d", 0)
lab("L_w_h5d")
ts(10)
for j in range(4):
    e(f"v_add_f32 v{20+j}, v{20+j}, v{24+j}")
    e(f"v_add_f32 v{28+j}, v{28+j}, v{32+j}")
for j in range(4):
    e(f"v_add_f32 v{40+j}, v{40+j}, v{20+j}")
for j in range(4):
    e(f"v_add_f32 v{40+j}, v{40+j}, v{28+j}")
e("v_cvt_pk_bf16_f32 v44, v40, v41")
e("v_cvt_pk_bf16_f32 v45, v42, v43")
e("ds_write_b64 v211, v[44:45]")
e("v_lshlrev_b32 v40, 16, v44")
e("v_and_b32 v41, 0xffff0000, v44")
e("v_lshlrev_b32 v42, 16, v45")
e("v_and_b32 v43, 0xffff0000, v45")
e(f"v_cmp_gt_u32 vcc, 40, v{vL}")
e("v_add_f32 v46, v40, v41")
e("v_add_f32 v47, v42, v43")
e("v_add_f32 v46, v46, v47")
e("v_cndmask_b32 v46, 0, v46, vcc")
e("s_waitcnt lgkmcnt(0)")
barrier()
for ks in range(5):
    e(f"ds_read_b128 v[{20+4*ks}:{23+4*ks}], v213 offset:{64*ks}")
allreduce("add", 46, 47)
e(f"v_mul_f32 v46, {fl(1.0/160.0)}, v46")
for ks in range(5):
    e(f"s_waitcnt lgkmcnt({4-ks})")
    for ct in range(2):
        d = 60 + 4 * ct
        cc = "0" if ks == 0 else f"v[{d}:{d+3}]"
        r = 100 + 8 * ks + 4 * ct
        e(f"v_mfma_f32_16x16x32_bf16 v[{d}:{d+3}], v[{20+4*ks}:{23+4*ks}], v[{r}:{r+3}], {cc}")
for j in range(4):
    e(f"v_sub_f32 v{40+j}, v{40+j}, v46")
e("v_mul_f32 v48, v40, v40")
for j in range(1, 4):
    e(f"v_fmac_f32 v48, v{40+j}, v{40+j}")
e("v_cndmask_b32 v48, 0, v48, vcc")
allreduce("add", 48, 47)
e("v_mov_b32 v47, v48")
e("ds_write_b64 v212, v[46:47]")
e(f"v_cmp_gt_u32 vcc, 16, v{vL}")
exec_save_and()
for ct in range(2):
    for r in range(3):
        e(f"ds_write_b32 v214, v{60+4*ct+r} offset:{128*r + 64*ct}")
exec_restore()
e("s_waitcnt lgkmcnt(0)")
barrier()
e(f"s_cmp_lg_u32 s{sWAVE}, 0")
e("s_cbranch_scc1 L_w_fin")
e("ds_read_b128 v[40:43], v217")
e("ds_read_b128 v[44:47], v217 offset:16")
for w in range(8):
    e(f"ds_read_b32 v{20+w}, v215 offset:{384*w}")
e("s_waitcnt lgkmcnt(8)")
for w in range(8):
    e(f"ds_read_b32 v{28+w}, v216 offset:{384*w}")
e("v_add_f32 v48, v40, v42")
e("v_add_f32 v49, v44, v46")
e("v_add_f32 v50, v41, v43")
e("v_add_f32 v51, v45, v47")
e("v_add_f32 v48, v48, v49")
e("v_add_f32 v49, v50, v51")
e("v_mul_f32 v48, 0.25, v48")
e("v_sub_f32 v40, v40, v48")
e("v_sub_f32 v42, v42, v48")
e("v_sub_f32 v44, v44, v48")
e("v_sub_f32 v46, v46, v48")
e("v_mul_f32 v50, v40, v40")
e("v_mul_f32 v51, v42, v42")
e("v_fmac_f32 v50, v44, v44")
e("v_fmac_f32 v51, v46, v46")
e("v_add_f32 v50, v50, v51")
e("v_fmac_f32 v49, 0x43200000, v50")
e(f"v_mov_b32 v51, {fl(1e-5)}")
e(f"v_fmac_f32 v51, {fl(1.0/640.0)}, v49")
e("v_rsq_f32 v51, v51")
e("s_waitcnt lgkmcnt(8)")
e("v_add_f32 v20, v20, v22")
e("v_add_f32 v24, v24, v26")
e("v_add_f32 v21, v21, v23")
e("v_add_f32 v25, v25, v27")
e("v_add_f32 v20, v20, v24")
e("v_add_f32 v21, v21, v25")
e("s_waitcnt lgkmcnt(0)")
e("v_add_f32 v28, v28, v30")
e("v_add_f32 v32, v32, v34")
e("v_add_f32 v29, v29, v31")
e("v_add_f32 v33, v33, v35")
e("v_add_f32 v28, v28, v32")
e("v_add_f32 v29, v29, v33")
e("v_fma_f32 v20, -v48, v28, v20")
e("v_fma_f32 v21, -v48, v29, v21")
e("v_mul_f32 v20, v20, v51")
e("v_mul_f32 v21, v21, v51")
e("v_mul_f32 v22, 0xbfb8aa3b, v20")
e("v_exp_f32 v22, v22")
e("v_mul_f32 v20, v20, v21")
e("v_add_f32 v22, 1.0, v22")
e("v_rcp_f32 v22, v22")
e("s_nop 0")
e("v_mul_f32 v20, v20, v22")
e("s_nop 1")
e("v_mov_b32_dpp v21, v20 quad_perm:[1,1,3,3] row_mask:0xf bank_mask:0xf")
e("s_nop 0")
e("v_cvt_pk_bf16_f32 v20, v20, v21")
e("v_min_u32 v20, -2, v20")
e(f"s_mov_b64 s[{sEX}:{sEX+1}], exec")
e("s_mov_b32 exec_lo, 0x55555555")
e("s_mov_b32 exec_hi, 0x55555555")
e(f"buffer_store_dword v20, v218, s[{R_WS}:{R_WS+3}], s{sCS} offen sc1")
exec_restore()
ts(11)
e("s_branch L_w_fin")
lab("L_t7")
c("---- T7 ----")
e(f"s_sub_u32 s{sCS}, s{sIDX}, 94")
srd(R_B, P_W2, 1728 * 1280)
e(f"v_lshrrev_b32 v9, 2, v{vL}")
e("v_mul_u32_u24 v9, 1280, v9")
e("v_lshl_add_u32 v9, v201, 4, v9")
e(f"s_mul_i32 s{sT0}, s{sWAVE}, {64*1280}")
e(f"s_lshl_b32 s{sT1}, s{sCS}, 6")
e(f"s_add_u32 s{sT0}, s{sT0}, s{sT1}")
e(f"s_lshl_b32 s{sT1}, s{sWAVE}, 12")
for i in range(4):
    if i == 3:
        e(f"s_cmp_ge_u32 s{sWAVE}, 3")
        e("s_cbranch_scc1 L_t7_dma_done")
    for j in range(4):
        e(f"s_add_u32 m0, s{sT1}, {32768*i + 1024*j}")
        e(f"s_add_u32 s{sT2}, s{sT0}, {(8*64*i + 16*j)*1280}")
        e(f"buffer_load_dwordx4 v9, s[{R_B}:{R_B+3}], s{sT2} offen nt lds")
lab("L_t7_dma_done")
srd(R_A, P_X, 2560)
srd(R_C, P_OUT, 2560)
e(f"v_lshrrev_b32 v16, 5, v{vL}")
e(f"v_and_b32 v17, 31, v{vL}")
e("v_mul_u32_u24 v210, 2560, v16")
e("v_lshl_add_u32 v210, v17, 2, v210")
e("v_mul_u32_u24 v211, 1280, v16")
e("v_lshl_add_u32 v211, v17, 1, v211")
e(f"s_lshl_b32 s{sKQ}, s{sCS}, 6")
e(f"buffer_load_ushort v70, v211, s[{R_A}:{R_A+3}], s{sKQ} offen")
if TOUCH:
    e(f"buffer_load_ushort v71, v211, s[{R_C}:{R_C+3}], s{sKQ} offen")
e(f"s_lshl_b32 s{sA0}, s{sCS}, 7")
e(f"s_add_u32 s{sA0}, s{sA0}, {WS_HP}")
for kq in range(1, 4):
    e(f"s_add_u32 s{sA0+kq}, s{sA0}, {5120*kq}")
e("v_lshlrev_b32 v9, 6, v202")
e("v_lshl_add_u32 v9, v201, 3, v9")
e(f"v_add_u32 v9, s{sT1}, v9")
e("v_add_u32 v10, 0x10000, v9")
e(f"v_and_b32 v212, 1, v{vL}")
e("v_mul_u32_u24 v212, 3456, v212")
e("v_lshl_add_u32 v212, v4, 4, v212")
e(f"v_bfe_u32 v11, v{vL}, 1, 1")
e("v_lshl_add_u32 v212, v11, 6, v212")
e(f"s_lshl_b32 s{sB}, s{sWAVE}, 7")
e(f"s_add_u32 s{sB}, s{sB}, {WS_ACT}")
e("v_lshlrev_b32 v213, 2, v5")
e(f"s_lshl_b32 s{sT0}, s{sWAVE}, 8")
e(f"s_add_u32 s{sT0}, s{sT0}, {LW_RED}")
e(f"v_add_u32 v213, s{sT0}, v213")
e(f"v_lshlrev_b32 v214, 2, v{vL}")
e(f"v_add_u32 v214, {LW_RED}, v214")
for j in range(4):
    e(f"v_mov_b32 v{32+j}, 0")
for j in range(16):
    e(f"v_mov_b32 v{148+j}, 0")
e("s_waitcnt vmcnt(0)")
ts(6)
for i in range(4):
    if i == 3:
        e(f"s_cmp_ge_u32 s{sWAVE}, 3")
        e("s_cbranch_scc1 L_t7_frag_done")
    a_ = "v9" if i < 2 else "v10"
    off = (i & 1) * 32768
    for par in range(2):
        for ct in range(2):
            r = 100 + 16 * i + 8 * par + 4 * ct
            e(f"ds_read_b64_tr_b16 v[{r}:{r+1}], {a_} offset:{off + par*2048 + ct*32}")
            e(f"ds_read_b64_tr_b16 v[{r+2}:{r+3}], {a_} offset:{off + par*2048 + ct*32 + 256}")
    e("s_waitcnt lgkmcnt(0)")
lab("L_t7_frag_done")
e(f"s_cmp_lg_u32 s{sWAVE}, 0")
e("s_cbranch_scc1 L_w_s7_noh")
spin_init()
lab("L_w_h5b")
for kq in range(4):
    e(f"buffer_load_dword v{72+kq}, v210, s[{R_WS}:{R_WS+3}], s{sA0+kq} offen sc1")
e("s_waitcnt vmcnt(0)")
umax_chain(11, range(72, 76))
e("v_cmp_eq_u32 vcc, -1, v11")
spin_retry_if_vcc("L_w_h5b", "L_w_h5bd", 1)
lab("L_w_h5bd")
e("v_lshlrev_b32 v70, 16, v70")
e("v_add_f32 v72, v72, v73")
e("v_add_f32 v74, v74, v75")
e("v_add_f32 v70, v70, v72")
e("v_add_f32 v70, v70, v74")
e("v_cvt_pk_bf16_f32 v70, v70, v70")
e("v_and_b32 v70, 0xffff0000, v70")
lab("L_w_s7_noh")
spin_init()
lab("L_w_h6")
for i in range(3):
    e(f"buffer_load_dwordx4 v[{20+4*i}:{23+4*i}], v212, s[{R_WS}:{R_WS+3}], s{sB} offen offset:{1024*i} sc1")
e(f"s_cmp_ge_u32 s{sWAVE}, 3")
e("s_cbranch_scc1 L_w_h6_skip")
e(f"buffer_load_dwordx4 v[32:35], v212, s[{R_WS}:{R_WS+3}], s{sB} offen offset:{1024*3} sc1")
lab("L_w_h6_skip")
e("s_waitcnt vmcnt(0)")
umax_chain(11, range(20, 36))
e("v_cmp_eq_u32 vcc, -1, v11")
spin_retry_if_vcc("L_w_h6", "L_w_h6d", 0)
lab("L_w_h6d")
ts(10)
for i in range(4):
    for par in range(2):
        for ct in range(2):
            d = 40 + 8 * par + 4 * ct
            cc = "0" if i == 0 else f"v[{d}:{d+3}]"
            r = 100 + 16 * i + 8 * par + 4 * ct
            e(f"v_mfma_f32_16x16x32_bf16 v[{d}:{d+3}], v[{20+4*i}:{23+4*i}], v[{r}:{r+3}], {cc}")
e(f"v_cmp_gt_u32 vcc, 16, v{vL}")
e("s_nop 6")
e("v_add_f32 v40, v40, v50")
e("v_add_f32 v41, v41, v51")
e("v_add_f32 v44, v44, v54")
e("v_add_f32 v45, v45, v55")
exec_save_and()
e("ds_write_b32 v213, v40")
e("ds_write_b32 v213, v41 offset:128")
e("ds_write_b32 v213, v44 offset:64")
e("ds_write_b32 v213, v45 offset:192")
exec_restore()
e("s_waitcnt lgkmcnt(0)")
barrier()
e(f"s_cmp_lg_u32 s{sWAVE}, 0")
e("s_cbranch_scc1 L_w_fin")
for i in range(8):
    e(f"ds_read_b32 v{20+i}, v214 offset:{256*i}")
e("s_waitcnt lgkmcnt(0)")
e("v_add_f32 v20, v20, v21")
e("v_add_f32 v22, v22, v23")
e("v_add_f32 v24, v24, v25")
e("v_add_f32 v26, v26, v27")
e("v_add_f32 v20, v20, v22")
e("v_add_f32 v24, v24, v26")
e("v_add_f32 v20, v20, v70")
e("v_add_f32 v20, v20, v24")
e("v_cvt_pk_bf16_f32 v20, v20, v20")
e(f"buffer_store_short v20, v211, s[{R_C}:{R_C+3}], s{sKQ} offen")
ts(11)
if DOUBLE:
    e("s_memrealtime s[98:99]")
    e("s_waitcnt lgkmcnt(0)")
    e("s_sub_u32 s94, s98, s96")
    e("s_min_u32 s94, s94, 10000")
    lab("L_dbl")
    e("s_memrealtime s[92:93]")
    e("s_waitcnt lgkmcnt(0)")
    e("s_sub_u32 s95, s92, s98")
    e("s_cmp_lt_u32 s95, s94")
    e("s_cbranch_scc1 L_dbl")
lab("L_w_fin")
ts_flush(12)
e("s_endpgm")

LA_C = 0
LA_Q = 131072
LA_P = LA_Q
LA_MX = LA_Q + 8192
LA_LS = LA_Q + 8704
LA_O = 0
LA_WUV = 32768
LA_CX = 65536
LA_CF = 73728
LA_STG = 74752

lab("L_arole")
c("================= A role =================")
LA_WQ = 90112
LA_XN = LA_Q
LA_SQ = LA_Q + 4096
e(f"s_sub_u32 s{sIDX}, s2, 128")
e(f"s_lshr_b32 s{sB}, s{sIDX}, 6")
e(f"s_and_b32 s{sS}, s{sIDX}, 63")
e(f"s_and_b32 s{sH}, s{sIDX}, 31")
e(f"s_lshr_b32 s{sJQ}, s{sIDX}, 5")
srd(R_C, P_X, 2560)
srd(R_B, P_WQ, 640 * 8192)
srd(R_A, P_CKV, 2 * 8192 * 1024)
e(f"v_lshrrev_b32 v4, 4, v{vL}")
e(f"v_and_b32 v5, 15, v{vL}")
e(f"v_lshlrev_b32 v6, 4, v{vL}")
e(f"v_lshlrev_b32 v19, 2, v{vL}")
e(f"s_cmp_ge_u32 s{sWAVE}, 2")
e("s_cbranch_scc1 L_a_nox")
e(f"s_mul_i32 s{sT0}, s{sWAVE}, 1280")
for i in range(5):
    e(f"buffer_load_dword v{12+i}, v19, s[{R_C}:{R_C+3}], s{sT0} offen offset:{256*i}")
lab("L_a_nox")
e("v_lshlrev_b32 v7, 4, v5")
e("v_lshlrev_b32 v18, 5, v4")
e("v_xor_b32 v7, v7, v18")
e("v_lshl_add_u32 v7, v4, 13, v7")
e(f"s_mul_i32 s{sT2}, s{sJQ}, {160*8192}")
e(f"s_lshl_b32 s{sT0}, s{sH}, 8")
e(f"s_add_u32 s{sT2}, s{sT2}, s{sT0}")
e(f"s_mul_i32 s{sT3}, s{sWAVE}, 20")
for i in range(5):
    e(f"s_add_u32 s{sT4}, s{sT3}, {4*i}")
    e(f"s_lshl_b32 s{sT5}, s{sT4}, 4")
    e(f"s_and_b32 s{sT5}, s{sT5}, 128")
    e(f"v_xor_b32 v18, s{sT5}, v7")
    e(f"s_lshl_b32 s{sT5}, s{sT4}, 8")
    e(f"s_add_u32 m0, s{sT5}, {LA_WQ}")
    e(f"s_lshl_b32 s{sT4}, s{sT4}, 13")
    e(f"s_add_u32 s{sT4}, s{sT4}, s{sT2}")
    e(f"buffer_load_dwordx4 v18, s[{R_B}:{R_B+3}], s{sT4} offen nt lds")
e(f"s_and_b32 s{sT0}, s{sWAVE}, 3")
e(f"s_lshl_b32 s{sT0}, s{sT0}, 2")
e(f"s_lshr_b32 s{sT1}, s{sWAVE}, 2")
e(f"s_or_b32 s{sT0}, s{sT0}, s{sT1}")
e(f"v_xor_b32 v145, s{sT0}, v{vL}")
e("v_lshlrev_b32 v145, 4, v145")
e("v_xor_b32 v146, 32, v145")
e(f"s_lshl_b32 s{sCS}, s{sIDX}, 7")
e(f"s_add_u32 s{sCS}, s{sCS}, s{sWAVE}")
e(f"s_lshl_b32 s{sCS}, s{sCS}, 10")
e(f"s_lshl_b32 s{sKQ}, s{sWAVE}, 10")
def c_dma(i):
    e(f"s_add_u32 m0, s{sKQ}, {8192*i + LA_C}")
    e(f"s_add_u32 s{sT2}, s{sCS}, {8192*i}")
    e(f"buffer_load_dwordx4 v{145 + (i & 1)}, s[{R_A}:{R_A+3}], s{sT2} offen nt lds")
e(f"s_cmp_lg_u32 s{sWAVE}, 7")
e("s_cbranch_scc1 L_a_np1")
e(f"s_and_b32 s{sA1}, s{sH}, 7")
e(f"s_lshl_b32 s{sA1}, s{sA1}, 2")
e(f"buffer_load_dword v147, v3, s[{R_DBG}:{R_DBG+3}], s{sA1} offen offset:132 sc1")
lab("L_a_np1")
for i in range(NF):
    c_dma(i)
if TOUCH:
    e(f"s_cmp_lg_u32 s{sWAVE}, 6")
    e("s_cbranch_scc1 L_a_notouch")
    e(f"buffer_load_dword v150, v3, s[{R_A}:{R_A+3}], s{sCS} offen")
    e(f"v_and_b32 v151, 3, v{vL}")
    e("v_lshlrev_b32 v151, 20, v151")
    e(f"s_lshl_b32 s{sT0}, s{sH}, 15")
    e(f"s_add_u32 s{sT0}, s{sT0}, {WS_OP}")
    e(f"buffer_load_dword v152, v151, s[{R_WS}:{R_WS+3}], s{sT0} offen sc1")
    srd(R_C, P_WUV, 512 * 8192)
    e(f"s_lshl_b32 s{sT0}, s{sJQ}, 20")
    e(f"buffer_load_dword v153, v3, s[{R_C}:{R_C+3}], s{sT0} offen")
    lab("L_a_notouch")
ts(1)
e(f"s_cmp_ge_u32 s{sWAVE}, 2")
e("s_cbranch_scc1 L_a_noln")
e(f"s_waitcnt vmcnt({5+NF})")
for i in range(5):
    e(f"v_lshlrev_b32 v{20+2*i}, 16, v{12+i}")
    e(f"v_and_b32 v{21+2*i}, 0xffff0000, v{12+i}")
e("v_add_f32 v30, v20, v21")
for i in range(2, 10):
    e(f"v_add_f32 v30, v30, v{20+i}")
allreduce("add", 30, 31)
e(f"v_mul_f32 v30, {fl(1.0/640.0)}, v30")
for i in range(10):
    e(f"v_sub_f32 v{20+i}, v{20+i}, v30")
e("v_mul_f32 v32, v20, v20")
for i in range(1, 10):
    e(f"v_fmac_f32 v32, v{20+i}, v{20+i}")
allreduce("add", 32, 31)
e(f"v_mov_b32 v33, {fl(1e-5)}")
e(f"v_fmac_f32 v33, {fl(1.0/640.0)}, v32")
e("v_rsq_f32 v33, v33")
e("s_nop 0")
for i in range(10):
    e(f"v_mul_f32 v{20+i}, v{20+i}, v33")
for i in range(5):
    e(f"v_cvt_pk_bf16_f32 v{12+i}, v{20+2*i}, v{21+2*i}")
e(f"s_mul_i32 s{sT0}, s{sWAVE}, 1280")
e(f"s_add_u32 s{sT0}, s{sT0}, {LA_XN}")
e(f"v_add_u32 v19, s{sT0}, v19")
for i in range(5):
    e(f"ds_write_b32 v19, v{12+i} offset:{256*i}")
lab("L_a_noln")
e(f"v_bfe_u32 v11, v{vL}, 2, 2")
e("v_and_b32 v10, 1, v4")
e("v_lshl_or_b32 v10, v10, 2, v11")
e(f"v_xor_b32 v10, s{sWAVE}, v10")
e("v_lshlrev_b32 v10, 5, v10")
e("v_lshl_add_u32 v140, v4, 3, v11")
e("v_lshl_add_u32 v140, v140, 8, v10")
e(f"v_and_b32 v10, 3, v{vL}")
e("v_lshl_add_u32 v140, v10, 3, v140")
e(f"v_add_u32 v140, {LA_WQ}, v140")
e(f"v_and_b32 v10, 1, v{vL}")
e("v_mul_u32_u24 v141, 1280, v10")
e("v_lshl_add_u32 v141, v4, 4, v141")
e(f"s_mul_i32 s{sT0}, s{sJQ}, 320")
e(f"s_add_u32 s{sT0}, s{sT0}, {LA_XN}")
e(f"v_add_u32 v141, s{sT0}, v141")
e("v_lshlrev_b32 v142, 8, v10")
e("v_lshl_add_u32 v142, v4, 3, v142")
e(f"s_lshl_b32 s{sT1}, s{sWAVE}, 5")
e(f"s_add_u32 s{sT1}, s{sT1}, {LA_SQ}")
e(f"v_add_u32 v142, s{sT1}, v142")
e("v_and_b32 v144, 511, v6")
e(f"v_add_u32 v143, {LA_SQ}, v144")
e(f"s_lshl_b32 s{sA0}, s{sH}, 2")
e(f"s_add_u32 s{sA0}, s{sA0}, s{sJQ}")
e(f"s_lshl_b32 s{sA0}, s{sA0}, 9")
if GOPT:
    e(f"v_and_b32 v10, 1, v{vL}")
    e("v_lshlrev_b32 v142, 8, v10")
    e("v_lshl_add_u32 v142, v4, 3, v142")
    e(f"s_lshl_b32 s{sT1}, s{sWAVE}, 5")
    e(f"s_add_u32 s{sA0}, s{sA0}, s{sT1}")
    e(f"s_waitcnt vmcnt({NF}) lgkmcnt(0)")
    e(f"s_cmp_lg_u32 s{sWAVE}, 7")
    e("s_cbranch_scc1 L_a_polld")
    spin_init()
    lab("L_a_poll")
    e("v_cmp_eq_u32 vcc, 0, v147")
    e("s_cbranch_vccz L_a_polld")
    e(f"s_add_u32 s{sSPIN}, s{sSPIN}, 1")
    e(f"s_cmp_ge_u32 s{sSPIN}, {SPIN_MAX}")
    e("s_cbranch_scc1 L_a_polld")
    e(f"buffer_load_dword v147, v3, s[{R_DBG}:{R_DBG+3}], s{sA1} offen offset:132 sc1")
    e("s_waitcnt vmcnt(0)")
    e("s_branch L_a_poll")
    lab("L_a_polld")
    e("v_cmp_gt_u32 vcc, 2, v5")
    barrier()
    for ks in range(5):
        e(f"ds_read_b64_tr_b16 v[{20+4*ks}:{21+4*ks}], v140 offset:{ks*8192}")
        e(f"ds_read_b64_tr_b16 v[{22+4*ks}:{23+4*ks}], v140 offset:{ks*8192 + 1024}")
        e(f"ds_read_b128 v[{40+4*ks}:{43+4*ks}], v141 offset:{ks*64}")
    for ks in range(5):
        e(f"s_waitcnt lgkmcnt({3*(4-ks)})")
        cc = "0" if ks == 0 else "v[60:63]"
        e(f"v_mfma_f32_16x16x32_bf16 v[60:63], v[{20+4*ks}:{23+4*ks}], v[{40+4*ks}:{43+4*ks}], {cc}")
    e("s_nop 7")
    e("v_cvt_pk_bf16_f32 v64, v60, v61")
    e("v_cvt_pk_bf16_f32 v65, v62, v63")
    e("v_min_u32 v64, -2, v64")
    e("v_min_u32 v65, -2, v65")
    exec_save_and()
    e(f"buffer_store_dwordx2 v[64:65], v142, s[{R_WS}:{R_WS+3}], s{sA0} offen sc1")
    exec_restore()
    barrier()
    if TS:
        ts(11)
else:
    if PSLEEP:
        e(f"s_cmp_lg_u32 s{sWAVE}, 7")
        e("s_cbranch_scc1 L_a_np2")
        for r in (148, 149, 150):
            e(f"s_sleep {PSLEEP}")
            e(f"buffer_load_dword v{r}, v3, s[{R_DBG}:{R_DBG+3}], s{sA1} offen offset:132 sc1")
        e("s_waitcnt vmcnt(0)")
        e("v_or3_b32 v147, v147, v148, v149")
        e("v_or_b32 v147, v147, v150")
        lab("L_a_np2")
    e("v_cmp_gt_u32 vcc, 2, v5")
    if TOUCH:
        e(f"s_cmp_lg_u32 s{sWAVE}, 6")
        e("s_cbranch_scc1 L_a_b1w")
        e(f"s_waitcnt vmcnt({NF+3}) lgkmcnt(0)")
        e("s_branch L_a_b1x")
        lab("L_a_b1w")
    e(f"s_waitcnt vmcnt({NF}) lgkmcnt(0)")
    if TOUCH:
        lab("L_a_b1x")
    barrier()
    for ks in range(5):
        e(f"ds_read_b64_tr_b16 v[{20+4*ks}:{21+4*ks}], v140 offset:{ks*8192}")
        e(f"ds_read_b64_tr_b16 v[{22+4*ks}:{23+4*ks}], v140 offset:{ks*8192 + 1024}")
        e(f"ds_read_b128 v[{40+4*ks}:{43+4*ks}], v141 offset:{ks*64}")
    for ks in range(5):
        e(f"s_waitcnt lgkmcnt({3*(4-ks)})")
        cc = "0" if ks == 0 else "v[60:63]"
        e(f"v_mfma_f32_16x16x32_bf16 v[60:63], v[{20+4*ks}:{23+4*ks}], v[{40+4*ks}:{43+4*ks}], {cc}")
    e("s_nop 7")
    e("v_cvt_pk_bf16_f32 v64, v60, v61")
    e("v_cvt_pk_bf16_f32 v65, v62, v63")
    exec_save_and()
    e("ds_write_b64 v142, v[64:65]")
    exec_restore()
    e("s_waitcnt lgkmcnt(0)")
    barrier()
    e(f"s_cmp_lg_u32 s{sWAVE}, 7")
    e("s_cbranch_scc1 L_a_notcomm")
    e("ds_read_b128 v[60:63], v143")
    spin_init()
    lab("L_a_poll")
    e("v_cmp_eq_u32 vcc, 0, v147")
    e("s_cbranch_vccz L_a_polld")
    e(f"s_add_u32 s{sSPIN}, s{sSPIN}, 1")
    e(f"s_cmp_ge_u32 s{sSPIN}, {SPIN_MAX}")
    e("s_cbranch_scc1 L_a_polld")
    e(f"buffer_load_dword v147, v3, s[{R_DBG}:{R_DBG+3}], s{sA1} offen offset:132 sc1")
    e("s_waitcnt vmcnt(0)")
    e("s_branch L_a_poll")
    lab("L_a_polld")
    e(f"v_cmp_gt_u32 vcc, 32, v{vL}")
    e("s_waitcnt lgkmcnt(0)")
    for i in range(4):
        e(f"v_min_u32 v{60+i}, -2, v{60+i}")
    exec_save_and()
    e(f"buffer_store_dwordx4 v[60:63], v144, s[{R_WS}:{R_WS+3}], s{sA0} offen sc1")
    exec_restore()
    lab("L_a_notcomm")
    barrier()
    if TS:
        ts(11)

for i in range(NF, GPOS):
    c_dma(i)
barrier()
e("v_lshlrev_b32 v240, 4, v0")
e(f"s_lshl_b32 s{sA0}, s{sB}, 15")
e(f"s_add_u32 s{sA0}, s{sA0}, {WS_QA}")
for i in range(1, 4):
    e(f"s_add_u32 s{sA0+i}, s{sA0}, {8192*i}")
def qa_gather():
    e(f"buffer_load_dword v7, v3, s[{R_DBG}:{R_DBG+3}], 0 offen offset:128 sc1")
    for i in range(4):
        e(f"buffer_load_dwordx4 v[{20+4*i}:{23+4*i}], v240, s[{R_WS}:{R_WS+3}], s{sA0+i} offen sc1")
qa_gather()
for i in range(GPOS, 16):
    c_dma(i)
e("v_and_b32 v8, 3, v5")
e("v_lshrrev_b32 v9, 2, v5")
e("v_lshl_or_b32 v8, v8, 2, v9")
e(f"v_lshrrev_b32 v9, 5, v{vL}")
e(f"v_and_b32 v17, 31, v{vL}")
e("v_lshlrev_b32 v10, 10, v17")
e(f"s_and_b32 s{sT0}, s{sWAVE}, 3")
e(f"s_lshl_b32 s{sT0}, s{sT0}, 15")
for kk in range(8):
    e(f"v_add_u32 v11, {2*kk}, v9")
    e("v_xor_b32 v11, v11, v8")
    e("v_lshl_add_u32 v11, v11, 4, v10")
    e(f"v_add_u32 v{200+kk}, s{sT0}, v11")
    e(f"v_add_u32 v{208+kk}, {LA_Q}, v11")
e(f"v_bfe_u32 v11, v{vL}, 2, 2")
e("v_lshrrev_b32 v12, 1, v4")
e("v_lshl_or_b32 v13, v11, 2, v12")
e("v_lshl_add_u32 v14, v12, 2, v11")
e("v_lshlrev_b32 v14, 10, v14")
e(f"s_lshr_b32 s{sT0}, s{sWAVE}, 1")
e(f"s_lshl_b32 s{sT0}, s{sT0}, 8")
e(f"v_add_u32 v14, s{sT0}, v14")
e(f"v_and_b32 v15, 1, v{vL}")
e("v_lshl_add_u32 v14, v15, 3, v14")
e("v_and_b32 v15, 1, v4")
e("v_lshlrev_b32 v15, 1, v15")
e(f"v_bfe_u32 v16, v{vL}, 1, 1")
e("v_or_b32 v15, v15, v16")
e(f"s_and_b32 s{sT0}, s{sWAVE}, 1")
e(f"s_lshl_b32 s{sT0}, s{sT0}, 3")
e(f"v_or_b32 v15, s{sT0}, v15")
e("v_xor_b32 v15, v15, v13")
for ct in range(2):
    for rd in range(2):
        x = (4 * ct) ^ (2 * rd)
        r = 216 + 4 * ct + 2 * rd
        e(f"v_xor_b32 v16, {x}, v15")
        e(f"v_lshl_add_u32 v{r}, v16, 4, v14")
        if rd:
            e(f"v_add_u32 v{r}, 8192, v{r}")
        e(f"v_add_u32 v{r+1}, 0x10000, v{r}")
e(f"s_and_b32 s{sT0}, s{sWAVE}, 3")
e(f"s_lshl_b32 s{sT0}, s{sT0}, 2")
e(f"s_lshr_b32 s{sT1}, s{sWAVE}, 2")
e(f"s_or_b32 s{sT0}, s{sT0}, s{sT1}")
e(f"v_xor_b32 v241, s{sT0}, v{vL}")
e("v_lshlrev_b32 v241, 4, v241")
e(f"s_lshl_b32 s{sT1}, s{sWAVE}, 10")
e(f"s_add_u32 s{sT1}, s{sT1}, {LA_Q}")
e(f"v_add_u32 v241, s{sT1}, v241")
e("v_xor_b32 v242, 32, v241")
e("v_lshlrev_b32 v243, 4, v17")
e(f"v_add_u32 v243, {LA_MX}, v243")
e(f"s_and_b32 s{sT0}, s{sWAVE}, 3")
e(f"s_lshl_b32 s{sT1}, s{sT0}, 2")
e(f"v_add_u32 v244, s{sT1}, v243")
e(f"v_add_u32 v246, {LA_P}, v6")
e(f"s_lshl_b32 s{sT1}, s{sT0}, 11")
e(f"v_add_u32 v245, s{sT1}, v246")
e("v_lshl_add_u32 v12, v9, 3, v10")
e(f"s_lshl_b32 s{sT0}, s{sWAVE}, 3")
e(f"v_xor_b32 v13, s{sT0}, v5")
for j in range(8):
    e(f"v_xor_b32 v14, {j}, v13")
    e(f"v_lshl_add_u32 v{160+j}, v14, 4, v12")
e(f"s_lshl_b32 s{sT0}, s{sWAVE}, 2")
for i in range(4):
    e(f"s_add_u32 s{sT2}, s{sT0}, {i}")
    e(f"s_and_b32 s{sT3}, s{sT2}, 15")
    e(f"v_xor_b32 v14, s{sT3}, v{vL}")
    e("v_lshlrev_b32 v14, 4, v14")
    e(f"s_lshl_b32 s{sT2}, s{sT2}, 10")
    e(f"v_add_u32 v{168+i}, s{sT2}, v14")
e("v_lshlrev_b32 v172, 14, v4")
e("v_lshl_add_u32 v172, v5, 4, v172")
e(f"s_lshl_b32 s{sCS}, s{sB}, 5")
e(f"s_add_u32 s{sCS}, s{sCS}, s{sT0}")
e(f"s_lshl_b32 s{sCS}, s{sCS}, 16")
e(f"s_lshl_b32 s{sT2}, s{sS}, 8")
e(f"s_add_u32 s{sCS}, s{sCS}, s{sT2}")
e(f"s_add_u32 s{sCS}, s{sCS}, {WS_OP}")
e("v_lshlrev_b32 v173, 3, v17")
e(f"s_lshl_b32 s{sKQ}, s{sIDX}, 8")
e(f"s_add_u32 s{sKQ}, s{sKQ}, {WS_ST}")
srd(R_B, P_WUV, 512 * 8192)
e("v_lshlrev_b32 v174, 4, v5")
e("v_lshlrev_b32 v14, 5, v4")
e("v_xor_b32 v174, v174, v14")
e("v_lshl_add_u32 v174, v4, 13, v174")
e("v_xor_b32 v175, 128, v174")
e(f"s_lshl_b32 s{sT0}, s{sWAVE}, 12")
e(f"s_add_u32 s{sT0}, s{sT0}, {LA_WUV}")
e(f"v_add_u32 v176, s{sT0}, v6")
e("v_and_b32 v14, 1, v4")
e("v_lshl_or_b32 v14, v14, 2, v11")
e(f"v_xor_b32 v14, s{sWAVE}, v14")
e("v_lshlrev_b32 v14, 5, v14")
e("v_lshl_add_u32 v177, v4, 3, v11")
e("v_lshl_add_u32 v177, v177, 8, v14")
e(f"v_and_b32 v14, 3, v{vL}")
e("v_lshl_add_u32 v177, v14, 3, v177")
e(f"v_add_u32 v177, {LA_WUV}, v177")
if AOPT:
    e(f"v_and_b32 v178, 3, v{vL}")
    e("v_lshl_add_u32 v178, v178, 2, v4")
    e("v_lshlrev_b32 v178, 8, v178")
else:
    e(f"v_lshlrev_b32 v178, 8, v{vL}")
e("v_lshlrev_b32 v179, 8, v4")
e("v_lshl_add_u32 v179, v5, 4, v179")
e(f"v_and_b32 v14, 3, v{vL}")
e("v_lshl_add_u32 v14, v4, 2, v14")
e("v_lshl_add_u32 v14, v14, 2, v11")
e("v_lshlrev_b32 v180, 2, v14")
e(f"s_lshr_b32 s{sT0}, s{sWAVE}, 2")
e(f"s_lshl_b32 s{sT0}, s{sT0}, 8")
e(f"s_add_u32 s{sT0}, s{sT0}, {LA_CF}")
e(f"v_add_u32 v180, s{sT0}, v180")
e(f"s_and_b32 s{sT1}, s{sWAVE}, 3")
e(f"s_lshl_b32 s{sT1}, s{sT1}, 6")
e(f"s_add_u32 s{sT0}, s{sT0}, s{sT1}")
e("v_lshlrev_b32 v181, 4, v4")
e(f"v_add_u32 v181, s{sT0}, v181")
e(f"s_lshl_b32 s{sT0}, s{sWAVE}, 2")
e(f"v_add_u32 v14, s{sT0}, v4")
e("v_and_b32 v15, 15, v14")
e("v_xor_b32 v15, v15, v5")
e("v_lshlrev_b32 v15, 4, v15")
e("v_lshl_add_u32 v182, v14, 8, v15")
e(f"v_add_u32 v182, {LA_CX}, v182")
e("v_lshlrev_b32 v14, 8, v5")
e(f"v_add_u32 v14, {LA_CX}, v14")
for ks in range(4):
    e(f"v_add_u32 v15, {4*ks}, v4")
    e("v_xor_b32 v15, v15, v5")
    e(f"v_lshl_add_u32 v{184+ks}, v15, 4, v14")
e("v_lshlrev_b32 v188, 8, v9")
e("v_lshl_add_u32 v188, v5, 1, v188")
e(f"s_lshl_b32 s{sT0}, s{sWAVE}, 5")
e(f"s_add_u32 s{sT0}, s{sT0}, {LA_STG}")
e(f"v_add_u32 v188, s{sT0}, v188")
e("v_and_b32 v189, 511, v6")
e(f"v_add_u32 v189, {LA_STG}, v189")
e("v_lshlrev_b32 v190, 13, v4")
e("v_lshl_add_u32 v190, v5, 4, v190")
spin_init()
e(f"s_waitcnt vmcnt({16-GPOS})")
e("s_branch L_a_h2c")
lab("L_a_h2")
e("s_waitcnt vmcnt(0)")
lab("L_a_h2c")
if TS == 4:
    e(f"s_cmp_lg_u32 s{sSPIN}, 0")
    e("s_cbranch_scc1 L_a_h2x")
    ts(13)
    lab("L_a_h2x")
umax_chain(11, range(20, 36))
e("v_cmp_eq_u32 vcc, -1, v11")
e(f"v_cmp_eq_u32 s[{sEX}:{sEX+1}], 0, v7")
e("s_nop 1")
e(f"s_or_b64 s[{sEX}:{sEX+1}], vcc, s[{sEX}:{sEX+1}]")
e("s_cbranch_scc0 L_a_h2d")
e("s_sleep 2")
e(f"s_add_u32 s{sSPIN}, s{sSPIN}, 1")
e(f"s_cmp_ge_u32 s{sSPIN}, {SPIN_MAX}")
e("s_cbranch_scc1 L_a_h2d")
qa_gather()
e("s_branch L_a_h2")
lab("L_a_h2d")
ts(2)
if TS == 4:
    e("s_waitcnt lgkmcnt(0)")
    e(f"v_mov_b32 v8, s{sTSB+24}")
    e(f"v_mov_b32 v9, s{sTSB+26}")
    e(f"v_mov_b32 v10, s{sSPIN}")
    e(f"v_mov_b32 v11, s{sTSB+4}")
    e(f"s_lshl_b32 s{sT0}, s{sIDX}, 3")
    e(f"s_add_u32 s{sT0}, s{sT0}, s{sWAVE}")
    e(f"s_lshl_b32 s{sT0}, s{sT0}, 4")
    e(f"s_add_u32 s{sT0}, s{sT0}, {WS_TS + 0x10000}")
    e(f"s_mov_b64 s[{sEX}:{sEX+1}], exec")
    e("s_mov_b64 exec, 1")
    e(f"buffer_store_dwordx4 v[8:11], v3, s[{R_WS}:{R_WS+3}], s{sT0} offen")
    exec_restore()
    e("s_waitcnt vmcnt(0)")
for i in range(4):
    a = "v241" if (i & 1) == 0 else "v242"
    e(f"ds_write_b128 {a}, v[{20+4*i}:{23+4*i}] offset:{8192*i}")
e(f"s_lshl_b32 s{sT5}, s{sJQ}, 7")
e(f"s_lshl_b32 s{sT1}, s{sWAVE}, 4")
e(f"s_add_u32 s{sT5}, s{sT5}, s{sT1}")
e(f"s_lshl_b32 s{sT5}, s{sT5}, 13")
e(f"s_lshl_b32 s{sT1}, s{sH}, 8")
e(f"s_add_u32 s{sT5}, s{sT5}, s{sT1}")
e("s_waitcnt vmcnt(0) lgkmcnt(0)")
barrier()
ts(3)
for i in range(4):
    a = "v174" if (i >> 1) == 0 else "v175"
    if i:
        e(f"s_add_u32 s{sT5}, s{sT5}, {4*8192}")
    e(f"buffer_load_dwordx4 v[{224+4*i}:{227+4*i}], {a}, s[{R_B}:{R_B+3}], s{sT5} offen nt")
def ld_marker():
    e(f"s_cmp_lg_u32 s{sWAVE}, 7")
    e("s_cbranch_scc1 L_a_nold")
    e(f"s_lshl_b32 s{sT0}, s{sIDX}, 5")
    e(f"s_add_u32 s{sT0}, s{sT0}, {WS_LD}")
    e(f"s_mov_b64 s[{sEX}:{sEX+1}], exec")
    e("s_mov_b64 exec, 1")
    e(f"buffer_store_dword v3, v3, s[{R_WS}:{R_WS+3}], s{sT0} offen sc1")
    exec_restore()
    lab("L_a_nold")
if USE_LD == 1:
    ld_marker()
e(f"s_cmp_ge_u32 s{sWAVE}, 4")
e("s_cbranch_scc1 L_a_s_done")
DEPTH = 6
def s_read(ks):
    slot = ks % 8
    j, kk = ks >> 3, ks & 7
    e(f"ds_read_b128 v[{20+8*slot}:{23+8*slot}], v{200+kk} offset:{256*j}")
    e(f"ds_read_b128 v[{24+8*slot}:{27+8*slot}], v{208+kk} offset:{256*j}")
for ks in range(DEPTH):
    s_read(ks)
for ks in range(32):
    outstanding = min(DEPTH, 32 - ks)
    e(f"s_waitcnt lgkmcnt({2*(outstanding-1)})")
    slot = ks % 8
    cc = "0" if ks == 0 else "v[100:115]"
    e(f"v_mfma_f32_32x32x16_bf16 v[100:115], v[{20+8*slot}:{23+8*slot}], v[{24+8*slot}:{27+8*slot}], {cc}")
    if ks + DEPTH < 32:
        s_read(ks + DEPTH)
lab("L_a_s_done")
barrier()
ts(4)
e(f"s_cmp_ge_u32 s{sWAVE}, 4")
e("s_cbranch_scc1 L_a_mx_done")
e("s_nop 9")
e("v_max3_f32 v20, v100, v101, v102")
e("v_max3_f32 v21, v103, v104, v105")
e("v_max3_f32 v22, v106, v107, v108")
e("v_max3_f32 v23, v109, v110, v111")
e("v_max3_f32 v24, v112, v113, v114")
e("v_max3_f32 v20, v20, v21, v115")
e("v_max3_f32 v22, v22, v23, v24")
e("v_max_f32 v20, v20, v22")
e("v_mov_b32 v21, v20")
e("s_nop 1")
e("v_permlane32_swap_b32 v21, v20")
e("s_nop 0")
e("v_max_f32 v20, v20, v21")
e("ds_write_b32 v244, v20")
e("s_waitcnt lgkmcnt(0)")
lab("L_a_mx_done")
if USE_LD == 2:
    ld_marker()
barrier()
e(f"s_cmp_ge_u32 s{sWAVE}, 4")
e("s_cbranch_scc1 L_a_p_done")
e("ds_read_b128 v[24:27], v243")
e("s_waitcnt lgkmcnt(0)")
e("v_max3_f32 v247, v24, v25, v26")
e("v_max_f32 v247, v247, v27")
for i in range(16):
    e(f"v_sub_f32 v{100+i}, v{100+i}, v247")
    if i >= 1:
        e(f"v_exp_f32 v{100+i-1}, v{100+i-1}")
e("v_exp_f32 v115, v115")
for i in range(4):
    e(f"v_cvt_pk_bf16_f32 v{28+i}, v{100+2*i}, v{101+2*i}")
e("ds_write_b128 v245, v[28:31]")
for i in range(4, 8):
    e(f"v_cvt_pk_bf16_f32 v{28+i}, v{100+2*i}, v{101+2*i}")
e("ds_write_b128 v245, v[32:35] offset:1024")
e("s_waitcnt lgkmcnt(0)")
lab("L_a_p_done")
barrier()
ts(5)
def pv_read(kk):
    base = 64 + 8 * (kk % 4)
    hi = kk >> 2
    off = (kk & 3) * 16384
    e(f"ds_read_b128 v[{32+4*kk}:{35+4*kk}], v246 offset:{1024*kk}")
    for ct in range(2):
        for rd in range(2):
            r = base + 4 * ct + 2 * rd
            e(f"ds_read_b64_tr_b16 v[{r}:{r+1}], v{216+4*ct+2*rd+hi} offset:{off}")
PD = 3
for kk in range(PD):
    pv_read(kk)
for i in range(8):
    e(f"v_add_f32 v{20+i}, v{100+2*i}, v{101+2*i}")
for i in range(4):
    e(f"v_add_f32 v{20+i}, v{20+2*i}, v{21+2*i}")
e("v_add_f32 v20, v20, v21")
e("v_add_f32 v22, v22, v23")
e("v_add_f32 v20, v20, v22")
e("v_mov_b32 v21, v20")
e("s_nop 1")
e("v_permlane32_swap_b32 v21, v20")
e("s_nop 0")
e("v_add_f32 v248, v20, v21")
for kk in range(8):
    outstanding = min(PD, 8 - kk)
    e(f"s_waitcnt lgkmcnt({5*(outstanding-1)})")
    base = 64 + 8 * (kk % 4)
    for ct in range(2):
        d = 100 + 16 * ct
        cc = "0" if kk == 0 else f"v[{d}:{d+15}]"
        e(f"v_mfma_f32_32x32x16_bf16 v[{d}:{d+15}], v[{base+4*ct}:{base+4*ct+3}], v[{32+4*kk}:{35+4*kk}], {cc}")
    if kk + PD < 8:
        pv_read(kk + PD)
e(f"s_cmp_ge_u32 s{sWAVE}, 4")
e("s_cbranch_scc1 L_a_ls_done")
e(f"ds_write_b32 v244, v248 offset:{LA_LS - LA_MX}")
lab("L_a_ls_done")
barrier()
ts(6)
e("s_nop 7")
for ct in range(2):
    for i4 in range(4):
        d = 100 + 16 * ct + 4 * i4
        t = 20 + 2 * (4 * ct + i4)
        e(f"v_cvt_pk_bf16_f32 v{t}, v{d}, v{d+1}")
        e(f"v_cvt_pk_bf16_f32 v{t+1}, v{d+2}, v{d+3}")
        e(f"ds_write_b64 v{160+4*ct+i4}, v[{t}:{t+1}] offset:{LA_O}")
e("s_waitcnt lgkmcnt(0)")
barrier()
for i in range(4):
    e(f"ds_read_b128 v[{40+4*i}:{43+4*i}], v{168+i} offset:{LA_O}")
e(f"ds_read_b128 v[24:27], v243 offset:{LA_LS - LA_MX}")
for i in range(4):
    e(f"s_waitcnt lgkmcnt({4-i})")
    if i:
        e(f"s_add_u32 s{sCS}, s{sCS}, 65536")
    e(f"buffer_store_dwordx4 v[{40+4*i}:{43+4*i}], v172, s[{R_WS}:{R_WS+3}], s{sCS} offen sc1")
ts(7)
e("s_waitcnt vmcnt(4)")
for i in range(4):
    e(f"ds_write_b128 v176, v[{224+4*i}:{227+4*i}] offset:{1024*i}")
e("v_add_f32 v24, v24, v25")
e("v_add_f32 v26, v26, v27")
e("v_add_f32 v25, v24, v26")
e("v_min_u32 v24, -2, v247")
e("v_min_u32 v25, -2, v25")
e(f"v_cmp_gt_u32 vcc, 32, v{vL}")
e("s_waitcnt vmcnt(0) lgkmcnt(0)")
barrier()
ts(8)
e(f"s_cmp_lg_u32 s{sWAVE}, 0")
e("s_cbranch_scc1 L_a_st_done")
exec_save_and()
e(f"buffer_store_dwordx2 v[24:25], v173, s[{R_WS}:{R_WS+3}], s{sKQ} offen sc1")
exec_restore()
lab("L_a_st_done")
for ks in range(4):
    e(f"ds_read_b64_tr_b16 v[{100+4*ks}:{101+4*ks}], v177 offset:{ks*8192}")
    e(f"ds_read_b64_tr_b16 v[{102+4*ks}:{103+4*ks}], v177 offset:{ks*8192 + 1024}")
e(f"s_lshr_b32 s{sT0}, s{sWAVE}, 2")
e(f"s_lshl_b32 s{sA0}, s{sT0}, 14")
e(f"s_lshl_b32 s{sT1}, s{sH}, 3")
e(f"s_add_u32 s{sA0}, s{sA0}, s{sT1}")
e(f"s_add_u32 s{sA0}, s{sA0}, {WS_ST}")
e(f"s_lshl_b32 s{sA1}, s{sT0}, 5")
e(f"s_add_u32 s{sA1}, s{sA1}, s{sH}")
e(f"s_lshl_b32 s{sA1}, s{sA1}, 2")
e(f"s_add_u32 s{sA1}, s{sA1}, s{sJQ}")
e(f"s_lshl_b32 s{sA1}, s{sA1}, 6")
e(f"s_and_b32 s{sT3}, s{sWAVE}, 3")
e(f"s_lshl_b32 s{sT1}, s{sT3}, 4")
e(f"s_add_u32 s{sA1}, s{sA1}, s{sT1}")
e(f"s_lshl_b32 s{sA1}, s{sA1}, 8")
e(f"s_add_u32 s{sA1}, s{sA1}, {WS_OP}")
e(f"s_lshl_b32 s{sA2}, s{sJQ}, 14")
e(f"s_lshl_b32 s{sT1}, s{sH}, 8")
e(f"s_add_u32 s{sA2}, s{sA2}, s{sT1}")
e(f"s_add_u32 s{sA2}, s{sA2}, {WS_CP}")
if AOPT:
    e(f"s_lshl_b32 s{sT1}, s{sT3}, 12")
    e(f"s_add_u32 s{sA0}, s{sA0}, s{sT1}")
    e(f"s_lshl_b32 s{sT1}, s{sWAVE}, 3")
    e(f"s_add_u32 s{sT1}, s{sT1}, {LA_CF}")
    e(f"v_mov_b32 v180, s{sT1}")
    e(f"s_lshr_b32 s{sT1}, s{sWAVE}, 2")
    e(f"s_lshl_b32 s{sT1}, s{sT1}, 5")
    e(f"s_add_u32 s{sT1}, s{sT1}, {LA_CF}")
    e(f"v_mov_b32 v181, s{sT1}")
    spin_init()
    lab("L_a_h3")
    e(f"buffer_load_dwordx2 v[14:15], v178, s[{R_WS}:{R_WS+3}], s{sA0} offen sc1")
    e("s_waitcnt vmcnt(0)")
    e("v_max_u32 v11, v14, v15")
    e("v_cmp_eq_u32 vcc, -1, v11")
    spin_retry_if_vcc("L_a_h3", "L_a_h3d", 1)
    lab("L_a_h3d")
    ts(9)
    for i in range(4):
        e(f"buffer_load_dwordx4 v[{20+4*i}:{23+4*i}], v179, s[{R_WS}:{R_WS+3}], s{sA1} offen offset:{1024*i} sc1")
    def red16(op, v, t):
        for pat in ("quad_perm:[1,0,3,2]", "quad_perm:[2,3,0,1]"):
            e("s_nop 1")
            e(f"v_{op}_f32_dpp v{v}, v{v}, v{v} {pat} row_mask:0xf bank_mask:0xf")
        e(f"v_mov_b32 v{t}, v{v}")
        e("s_nop 1")
        e(f"v_permlane16_swap_b32 v{t}, v{v}")
        e("s_nop 0")
        e(f"v_{op}_f32 v{v}, v{v}, v{t}")
        e(f"v_mov_b32 v{t}, v{v}")
        e("s_nop 1")
        e(f"v_permlane32_swap_b32 v{t}, v{v}")
        e("s_nop 0")
        e(f"v_{op}_f32 v{v}, v{v}, v{t}")
    e("v_mov_b32 v16, v14")
    red16("max", 16, 17)
    e("v_sub_f32 v18, v14, v16")
    e("v_exp_f32 v18, v18")
    e("s_nop 0")
    e("v_mul_f32 v17, v18, v15")
    red16("add", 17, 19)
    e("ds_write_b64 v180, v[16:17]")
    e("s_nop 0")
    for i in range(4):
        e(f"v_mov_b32_dpp v{40+i}, v18 quad_perm:[{i},{i},{i},{i}] row_mask:0xf bank_mask:0xf")
    for i in range(4):
        e(f"s_waitcnt vmcnt({3-i})")
        for j in range(4):
            src = 20 + 4 * i + j
            e(f"v_lshlrev_b32 v{44+2*j}, 16, v{src}")
            e(f"v_and_b32 v{45+2*j}, 0xffff0000, v{src}")
        for j in range(8):
            if i == 0:
                e(f"v_mul_f32 v{52+j}, v{40+i}, v{44+j}")
            else:
                e(f"v_fmac_f32 v{52+j}, v{40+i}, v{44+j}")
    e("s_waitcnt lgkmcnt(0)")
    barrier()
    e("ds_read_b128 v[40:43], v181")
    e("ds_read_b128 v[44:47], v181 offset:16")
    e("s_waitcnt lgkmcnt(0)")
    e("v_max3_f32 v18, v40, v42, v44")
    e("v_max_f32 v18, v18, v46")
    e("v_sub_f32 v40, v40, v18")
    e("v_sub_f32 v42, v42, v18")
    e("v_sub_f32 v44, v44, v18")
    e("v_sub_f32 v46, v46, v18")
    e("v_sub_f32 v16, v16, v18")
    e("v_exp_f32 v40, v40")
    e("v_exp_f32 v42, v42")
    e("v_exp_f32 v44, v44")
    e("v_exp_f32 v46, v46")
    e("v_exp_f32 v16, v16")
    e("v_mul_f32 v41, v40, v41")
    e("v_mul_f32 v45, v44, v45")
    e("v_fmac_f32 v41, v42, v43")
    e("v_fmac_f32 v45, v46, v47")
    e("v_add_f32 v41, v41, v45")
    e("v_rcp_f32 v41, v41")
    e("s_nop 0")
    e("v_mul_f32 v16, v16, v41")
    for j in range(8):
        e(f"v_mul_f32 v{52+j}, v16, v{52+j}")
else:
    e(f"s_cmp_lg_u32 s{sT3}, 1")
    e("s_cbranch_scc1 L_a_h3d")
    spin_init()
    lab("L_a_h3")
    e(f"buffer_load_dwordx2 v[14:15], v178, s[{R_WS}:{R_WS+3}], s{sA0} offen sc1")
    e("s_waitcnt vmcnt(0)")
    e("v_max_u32 v11, v14, v15")
    e("v_cmp_eq_u32 vcc, -1, v11")
    spin_retry_if_vcc("L_a_h3", "L_a_h3d", 1)
    lab("L_a_h3d")
    barrier()
    ts(9)
    for i in range(4):
        e(f"buffer_load_dwordx4 v[{20+4*i}:{23+4*i}], v179, s[{R_WS}:{R_WS+3}], s{sA1} offen offset:{1024*i} sc1")
    e(f"s_cmp_lg_u32 s{sT3}, 1")
    e("s_cbranch_scc1 L_a_cf_done")
    e("v_mov_b32 v16, v14")
    allreduce("max", 16, 17)
    e("v_sub_f32 v16, v14, v16")
    e("v_exp_f32 v16, v16")
    e("s_nop 0")
    e("v_mul_f32 v18, v16, v15")
    allreduce("add", 18, 17)
    e("v_rcp_f32 v18, v18")
    e("s_nop 0")
    e("v_mul_f32 v16, v16, v18")
    e("ds_write_b32 v180, v16")
    e("s_waitcnt lgkmcnt(0)")
    lab("L_a_cf_done")
    barrier()
    e("ds_read_b128 v[40:43], v181")
    e("s_waitcnt lgkmcnt(0)")
    for i in range(4):
        e(f"s_waitcnt vmcnt({3-i})")
        for j in range(4):
            src = 20 + 4 * i + j
            e(f"v_lshlrev_b32 v{44+2*j}, 16, v{src}")
            e(f"v_and_b32 v{45+2*j}, 0xffff0000, v{src}")
        for j in range(8):
            if i == 0:
                e(f"v_mul_f32 v{52+j}, v{40+i}, v{44+j}")
            else:
                e(f"v_fmac_f32 v{52+j}, v{40+i}, v{44+j}")

for j in range(4):
    e(f"v_cvt_pk_bf16_f32 v{60+j}, v{52+2*j}, v{53+2*j}")
e("ds_write_b128 v182, v[60:63]")
e("s_waitcnt lgkmcnt(0)")
barrier()
ts(10)
for ks in range(4):
    e(f"ds_read_b128 v[{20+8*ks}:{23+8*ks}], v{184+ks}")
    e(f"ds_read_b128 v[{24+8*ks}:{27+8*ks}], v{184+ks} offset:4096")
for ks in range(4):
    e(f"s_waitcnt lgkmcnt({2*(3-ks)})")
    c0 = "0" if ks == 0 else "v[60:63]"
    c1 = "0" if ks == 0 else "v[64:67]"
    e(f"v_mfma_f32_16x16x32_bf16 v[60:63], v[{20+8*ks}:{23+8*ks}], v[{100+4*ks}:{103+4*ks}], {c0}")
    e(f"v_mfma_f32_16x16x32_bf16 v[64:67], v[{24+8*ks}:{27+8*ks}], v[{100+4*ks}:{103+4*ks}], {c1}")
e(f"v_cmp_gt_u32 vcc, 32, v{vL}")
e("s_nop 6")
e("v_add_f32 v60, v60, v61")
e("v_add_f32 v62, v62, v63")
e("v_add_f32 v64, v64, v65")
e("v_add_f32 v66, v66, v67")
e("v_add_f32 v60, v60, v62")
e("v_add_f32 v64, v64, v66")
e("s_nop 1")
e("v_permlane32_swap_b32 v60, v64")
e("s_nop 0")
e("v_add_f32 v60, v60, v64")
e("v_mov_b32 v61, v60")
e("s_nop 1")
e("v_permlane16_swap_b32 v61, v60")
e("s_nop 0")
e("v_add_f32 v60, v60, v61")
e("v_cvt_pk_bf16_f32 v60, v60, v60")
e("ds_write_b16 v188, v60")
e("s_waitcnt lgkmcnt(0)")
barrier()
e(f"s_cmp_lg_u32 s{sWAVE}, 0")
e("s_cbranch_scc1 L_a_fin")
e("ds_read_b128 v[60:63], v189")
e("s_waitcnt lgkmcnt(0)")
for i in range(4):
    e(f"v_min_u32 v{60+i}, -2, v{60+i}")
exec_save_and()
e(f"buffer_store_dwordx4 v[60:63], v190, s[{R_WS}:{R_WS+3}], s{sA2} offen sc1")
exec_restore()
lab("L_a_fin")
ts_flush(12)
lab("L_end")
e("s_endpgm")
lab("L_code_end")

tail = [
    '.section .rodata,"a"',
    ".p2align 6",
    f".amdhsa_kernel {NAME}_kernel",
    "  .amdhsa_next_free_vgpr 256",
    "  .amdhsa_next_free_sgpr 102",
    "  .amdhsa_accum_offset 256",
    "  .amdhsa_group_segment_fixed_size 0",
    "  .amdhsa_kernarg_size 104",
    "  .amdhsa_user_sgpr_count 2",
    "  .amdhsa_user_sgpr_kernarg_segment_ptr 1",
    "  .amdhsa_system_sgpr_workgroup_id_x 1",
    ".end_amdhsa_kernel",
]
open(OUT, "w").write("\n".join(head + L + tail) + "\n")
print("wrote", OUT, len(L), "lines")
```

```python
import sys

NAME = "sequential_preLN__compressed_kv_cla__glu_gated_swiglu__decode"
TS = int(sys.argv[2]) if len(sys.argv) > 2 else 0
OUT = sys.argv[1] if len(sys.argv) > 1 else f"cdna_kernels/{NAME}.s"

WS_QP = 0x00000
WS_QA = 0x10000
WS_ST = 0x20000
WS_CP = 0x28000
WS_HP = 0x38000
WS_ACT = 0x3D000
GOPT = int(sys.argv[8]) if len(sys.argv) > 8 else 0
PSLEEP = 0
TOUCH = int(sys.argv[11]) if len(sys.argv) > 11 else 1
GPOS = int(sys.argv[10]) if len(sys.argv) > 10 else 16
AOPT = int(sys.argv[9]) if len(sys.argv) > 9 else 1
DOUBLE = int(sys.argv[7]) if len(sys.argv) > 7 else 0
CODEPF = int(sys.argv[6]) if len(sys.argv) > 6 else 1
T5MAP = int(sys.argv[5]) if len(sys.argv) > 5 else 1
WS_LD = 0x3F000
NF = int(sys.argv[3]) if len(sys.argv) > 3 else 4
USE_LD = int(sys.argv[4]) if len(sys.argv) > 4 else 1
NCLR = 32
WS_OP = 0x100000
WS_TS = 0x800000
WS_SIZE = 0x10000000
SPIN_MAX = 40000

import struct
def fl(x):
    return '0x%08x' % struct.unpack('<I', struct.pack('<f', x))[0]
L = []
def e(s):
    L.append("    " + s)
def lab(s):
    L.append(s + ":")
def c(s):
    L.append("    ; " + s)

_uid = [0]
def uid(p):
    _uid[0] += 1
    return f"{p}_{_uid[0]}"

sWAVE = 3
sIDX = 4
sH = 5
sJQ = 6
sT0 = 7
P_X, P_CKV, P_WQ, P_WUK, P_WUV, P_WO, P_BX, P_W1, P_W3, P_W2, P_OUT, P_DBG, P_WS = [8 + 2 * i for i in range(13)]
sSPIN = 34
sT1 = 35
R_WS = 36
R_A = 40
R_B = 44
R_C = 48
R_DBG = 52
sT2, sT3, sT4, sT5 = 56, 57, 58, 59
sEX = 60
sB = 62
sS = 63
sCS = 64
sKQ = 65
sTSB = 70

def srd(r, p, nbytes):
    e(f"s_mov_b32 s{r}, s{p}")
    e(f"s_and_b32 s{r+1}, s{p+1}, 0xffff")
    e(f"s_mov_b32 s{r+2}, {nbytes:#x}")
    e(f"s_mov_b32 s{r+3}, 0x00020000")

_tsn = [0]
def ts(i):
    if TS:
        e(f"s_memrealtime s[{sTSB+2*i}:{sTSB+2*i+1}]")

def ts_flush(nslots):
    if not TS:
        return
    if TS == 3:
        l1 = uid("L_tsf")
        e("s_waitcnt lgkmcnt(0)")
        e(f"s_cmp_lg_u32 s{sWAVE}, 0")
        e(f"s_cbranch_scc1 {l1}")
        l2 = uid("L_tsg")
        e("s_cmp_eq_u32 s2, 94")
        e(f"s_cbranch_scc1 {l2}")
        e("s_cmp_lg_u32 s2, 200")
        e(f"s_cbranch_scc1 {l1}")
        lab(l2)
        e("v_mov_b32 v250, 0")
        e("s_cmp_eq_u32 s2, 94")
        e(f"s_cselect_b32 s{sT1}, 4, 32")
        for k, (a, b) in enumerate(zip([1, 2, 4, 5, 6, 10, 11, 11], [1, 2, 3, 6, 8, 9, 10, 11])):
            e("s_cmp_eq_u32 s2, 94")
            e(f"s_cselect_b32 s{sT0}, s{sTSB+2*a}, s{sTSB+2*b}")
            e(f"s_sub_u32 s{sT0}, s{sT0}, s{sTSB}")
            e(f"v_mov_b32 v251, s{sT0}")
            e(f"s_mov_b64 s[{sEX}:{sEX+1}], exec")
            e("s_mov_b64 exec, 1")
            if k == 7:
                e("s_cmp_eq_u32 s2, 94")
                e(f"s_cselect_b32 s{sT1}, 28, s{sT1}")
            e(f"buffer_store_dword v251, v250, s[{R_DBG}:{R_DBG+3}], s{sT1} offen")
            e(f"s_mov_b64 exec, s[{sEX}:{sEX+1}]")
            e(f"s_add_u32 s{sT1}, s{sT1}, 4")
        lab(l1)
        return
    l1 = uid("L_tsf")
    e("s_waitcnt lgkmcnt(0)")
    e(f"s_cmp_lg_u32 s{sWAVE}, 0")
    e(f"s_cbranch_scc1 {l1}")
    e("v_mov_b32 v250, 0")
    for i in range(nslots):
        e(f"v_mov_b32 v251, s{sTSB+2*i}")
        e(f"s_lshl_b32 s{sT0}, s2, 6")
        e(f"s_add_u32 s{sT0}, s{sT0}, {WS_TS + 4*i:#x}")
        e(f"s_mov_b64 s[{sEX}:{sEX+1}], exec")
        e("s_mov_b64 exec, 1")
        e(f"buffer_store_dword v251, v250, s[{R_WS}:{R_WS+3}], s{sT0} offen")
        e(f"s_mov_b64 exec, s[{sEX}:{sEX+1}]")
        e("s_nop 1")
    lab(l1)

def allreduce(op, v, t):
    for pat in ("quad_perm:[1,0,3,2]", "quad_perm:[2,3,0,1]", "row_half_mirror", "row_mirror"):
        e("s_nop 1")
        e(f"v_{op}_f32_dpp v{v}, v{v}, v{v} {pat} row_mask:0xf bank_mask:0xf")
    e(f"v_mov_b32 v{t}, v{v}")
    e("s_nop 1")
    e(f"v_permlane16_swap_b32 v{t}, v{v}")
    e("s_nop 0")
    e(f"v_{op}_f32 v{v}, v{v}, v{t}")
    e(f"v_mov_b32 v{t}, v{v}")
    e("s_nop 1")
    e(f"v_permlane32_swap_b32 v{t}, v{v}")
    e("s_nop 0")
    e(f"v_{op}_f32 v{v}, v{v}, v{t}")

def umax_chain(dst, regs):
    regs = list(regs)
    e(f"v_max3_u32 v{dst}, v{regs[0]}, v{regs[1]}, v{regs[2]}")
    i = 3
    while i < len(regs):
        if i + 1 < len(regs):
            e(f"v_max3_u32 v{dst}, v{dst}, v{regs[i]}, v{regs[i+1]}")
            i += 2
        else:
            e(f"v_max_u32 v{dst}, v{dst}, v{regs[i]}")
            i += 1

def spin_init():
    e(f"s_mov_b32 s{sSPIN}, 0")

def spin_retry_if_vcc(top, done, sleep=0):
    e(f"s_cbranch_vccz {done}")
    if sleep:
        e(f"s_sleep {sleep}")
    e(f"s_add_u32 s{sSPIN}, s{sSPIN}, 1")
    e(f"s_cmp_lt_u32 s{sSPIN}, {SPIN_MAX}")
    e(f"s_cbranch_scc1 {top}")

def barrier():
    e("s_barrier")

vL = 2

hdr = open(f"cdna_kernels/{NAME}.s.ref").read().split("\n")
head = []
for line in hdr:
    if line.startswith("; @launch"):
        head.append("; @launch grid=(256,1,1) block=(512,1,1) lds=163840")
        break
    head.append(line)
head += [
    '.amdgcn_target "amdgcn-amd-amdhsa--gfx950"',
    ".text",
    f".globl {NAME}_kernel",
    ".p2align 8",
    f".type {NAME}_kernel,@function",
    f"{NAME}_kernel:",
]

e("s_cmp_ge_u32 s2, 256")
e("s_cbranch_scc1 L_end")
ts(0)
if DOUBLE:
    e("s_memrealtime s[96:97]")
e("s_load_dwordx16 s[8:23], s[0:1], 0")
e("s_load_dwordx8 s[24:31], s[0:1], 64")
e("s_load_dwordx2 s[32:33], s[0:1], 96")
e("v_lshrrev_b32 v1, 6, v0")
e(f"v_and_b32 v{vL}, 63, v0")
e(f"v_readfirstlane_b32 s{sWAVE}, v1")
e("v_mov_b32 v3, 0")
e("s_waitcnt lgkmcnt(0)")
e(f"s_load_dword s101, s[{P_DBG}:{P_DBG+1}], 64")
srd(R_WS, P_WS, WS_SIZE)
srd(R_DBG, P_DBG, 256)
e("s_cmp_ge_u32 s2, 128")
e("s_cbranch_scc1 L_arole")


LW_WQ = 0
LW_XN = 40960
LW_STG = 43520
LW_RED = 131072
LW_H = 135168
LW_STAT = 139264
sA0, sA1, sA2, sA3 = 66, 67, 68, 69

def exec_save_and(mask="vcc"):
    e(f"s_and_saveexec_b64 s[{sEX}:{sEX+1}], {mask}")
def exec_restore():
    e(f"s_mov_b64 exec, s[{sEX}:{sEX+1}]")

c("================= W role =================")
LW_WUK = 49152
LW_QPL = 81920
e(f"s_mov_b32 s{sIDX}, s2")
e(f"s_and_b32 s{sH}, s2, 31")
e(f"s_lshr_b32 s{sJQ}, s2, 5")
e(f"v_lshrrev_b32 v4, 4, v{vL}")
e(f"v_and_b32 v5, 15, v{vL}")
if CODEPF:
    e(f"s_sub_u32 s{sT0}, s{sIDX}, 32")
    e(f"s_cmp_ge_u32 s{sT0}, 16")
    e("s_cbranch_scc1 L_w_nopf")
    e(f"s_getpc_b64 s[{sT2}:{sT3}]")
    lab("L_pc_ref")
    e(f"s_sub_u32 s{sT2}, s{sT2}, L_pc_ref-{NAME}_kernel")
    e(f"s_subb_u32 s{sT3}, s{sT3}, 0")
    e("v_lshlrev_b32 v6, 4, v0")
    for j in range(3):
        if j:
            e("v_add_u32 v6, 0x2000, v6")
        e(f"v_min_u32 v7, L_code_end-{NAME}_kernel-16, v6")
        e(f"global_load_dwordx4 v[{232+4*j}:{235+4*j}], v7, s[{sT2}:{sT3}]")
    lab("L_w_nopf")
if TOUCH >= 2:
    e(f"s_sub_u32 s{sT0}, s{sIDX}, 32")
    e(f"s_cmp_ge_u32 s{sT0}, 16")
    e("s_cbranch_scc1 L_w_notouch")
    e(f"v_lshlrev_b32 v6, 18, v{vL}")
    tl = [[(P_CKV, 2*8192*1024)], [(P_WUV, 512*8192), (P_OUT, 2560)], [(P_WO, 4096*1280), (P_X, 2560)], [(P_W1, 640*3456)],
          [(P_W3, 640*3456)], [(P_W2, 1728*1280)], [(P_WS, 0x600000)], [(P_WQ, 640*8192)]]
    for wv, lst in enumerate(tl):
        l1 = uid("L_tw")
        e(f"s_cmp_lg_u32 s{sWAVE}, {wv}")
        e(f"s_cbranch_scc1 {l1}")
        for k, (p, n) in enumerate(lst):
            srd(R_A, p, n)
            e(f"buffer_load_dword v{232+k}, v6, s[{R_A}:{R_A+3}], 0 offen" + (" sc1" if p == P_WS else ""))
        lab(l1)
    lab("L_w_notouch")
e(f"s_cmp_ge_u32 s{sIDX}, {NCLR}")
e("s_cbranch_scc1 L_w_noclr")
e("v_lshlrev_b32 v6, 4, v0")
for j in range(4):
    e(f"v_mov_b32 v{8+j}, -1")
e(f"s_lshl_b32 s{sT0}, s{sIDX}, 13")
e(f"s_cmp_ge_u32 s{sIDX}, 8")
e("s_cbranch_scc1 L_w_clr_lin")
e("v_and_b32 v6, 0x7ff, v6")
e(f"s_lshr_b32 s{sT1}, s{sWAVE}, 1")
e(f"s_lshl_b32 s{sT1}, s{sT1}, 14")
e(f"s_lshl_b32 s{sT0}, s{sIDX}, 11")
e(f"s_add_u32 s{sT0}, s{sT0}, s{sT1}")
lab("L_w_clr_lin")
e(f"buffer_store_dwordx4 v[8:11], v6, s[{R_WS}:{R_WS+3}], s{sT0} offen sc1")
barrier()
lab("L_w_noclr")
srd(R_C, P_WUK, 512 * 8192)
e("v_xor_b32 v228, v5, v4")
e("v_lshlrev_b32 v228, 4, v228")
e("v_lshl_add_u32 v228, v4, 13, v228")
e(f"s_lshl_b32 s{sA1}, s{sJQ}, 7")
e(f"s_lshl_b32 s{sT1}, s{sWAVE}, 4")
e(f"s_add_u32 s{sA1}, s{sA1}, s{sT1}")
e(f"s_lshl_b32 s{sA1}, s{sA1}, 13")
e(f"s_lshl_b32 s{sT1}, s{sH}, 8")
e(f"s_add_u32 s{sA1}, s{sA1}, s{sT1}")
e(f"s_lshl_b32 s{sT1}, s{sWAVE}, 12")
for i in range(4):
    e(f"v_xor_b32 v18, {64*i}, v228")
    e(f"s_add_u32 m0, s{sT1}, {LW_WUK + 1024*i}")
    e(f"s_add_u32 s{sT4}, s{sA1}, {4*8192*i}")
    e(f"buffer_load_dwordx4 v18, s[{R_C}:{R_C+3}], s{sT4} offen nt lds")
ts(1)
e(f"s_cmp_ge_u32 s{sIDX}, {NCLR}")
e("s_cbranch_scc1 L_w_noclr2")
e("s_waitcnt vmcnt(4)")
ts(3)
barrier()
ts(8)
e(f"s_cmp_lg_u32 s{sWAVE}, 0")
e("s_cbranch_scc1 L_w_noclr2")
e(f"s_mov_b32 s{sT0}, 1")
e(f"s_cmp_ge_u32 s{sIDX}, 8")
e("s_cbranch_scc1 L_w_clr_b")
e(f"s_lshl_b32 s{sT1}, s{sIDX}, 2")
e(f"s_add_u32 s{sT1}, s{sT1}, 132")
e(f"s_atomic_add s{sT0}, s[{P_DBG}:{P_DBG+1}], s{sT1}")
e("s_branch L_w_noclr2")
lab("L_w_clr_b")
e(f"s_atomic_add s{sT0}, s[{P_DBG}:{P_DBG+1}], 4 glc")
e("s_waitcnt lgkmcnt(0)")
ts(9)
e(f"s_cmp_lg_u32 s{sT0}, {NCLR-9}")
e("s_cbranch_scc1 L_w_noclr2")
e(f"s_movk_i32 s{sT0}, 0x100")
e(f"s_atomic_add s{sT0}, s[{P_DBG}:{P_DBG+1}], 128")
lab("L_w_noclr2")
e(f"v_bfe_u32 v200, v{vL}, 2, 2")
e(f"v_and_b32 v201, 3, v{vL}")
e("v_lshl_add_u32 v202, v4, 3, v200")
e(f"v_lshlrev_b32 v204, 4, v{vL}")
e("v_and_b32 v208, 511, v204")
e(f"s_lshl_b32 s{sA2}, s{sH}, 11")
e("v_lshlrev_b32 v10, 1, v4")
e("v_xor_b32 v10, v10, v5")
e("v_lshlrev_b32 v10, 4, v10")
e("v_lshl_add_u32 v205, v4, 8, v10")
e(f"v_add_u32 v205, {LW_QPL}, v205")
e("v_xor_b32 v219, 128, v205")
e(f"v_bfe_u32 v11, v{vL}, 2, 1")
e("v_lshl_add_u32 v206, v201, 1, v11")
e("v_lshlrev_b32 v10, 1, v206")
e("v_lshlrev_b32 v11, 8, v206")
e(f"v_add_u32 v11, {LW_QPL}, v11")
for ks in range(4):
    e(f"v_add_u32 v12, {4*ks}, v4")
    e("v_xor_b32 v12, v12, v10")
    e(f"v_lshl_add_u32 v{220+ks}, v12, 4, v11")
e("v_lshlrev_b32 v11, 8, v5")
e(f"s_lshl_b32 s{sT1}, s{sWAVE}, 12")
e(f"s_add_u32 s{sT1}, s{sT1}, {LW_WUK}")
e(f"v_add_u32 v11, s{sT1}, v11")
for ks in range(4):
    e(f"v_add_u32 v12, {4*ks}, v4")
    e("v_xor_b32 v12, v12, v5")
    e(f"v_lshl_add_u32 v{224+ks}, v12, 4, v11")
e("v_lshlrev_b32 v207, 8, v4")
e("v_lshl_add_u32 v207, v5, 1, v207")
e(f"s_lshl_b32 s{sT0}, s{sWAVE}, 5")
e(f"v_add_u32 v207, s{sT0}, v207")
e("v_lshlrev_b32 v209, 15, v4")
e("v_lshl_add_u32 v209, v5, 4, v209")
e(f"s_lshl_b32 s{sA3}, s{sH}, 10")
e(f"s_lshl_b32 s{sT1}, s{sJQ}, 8")
e(f"s_add_u32 s{sA3}, s{sA3}, s{sT1}")
e(f"s_add_u32 s{sA3}, s{sA3}, {WS_QA}")
e("s_waitcnt vmcnt(0)")
ts(2)
for ks in range(4):
    e(f"ds_read_b128 v[{20+4*ks}:{23+4*ks}], v{224+ks}")
e(f"s_cmp_lg_u32 s{sWAVE}, 7")
e("s_cbranch_scc1 L_w_notcomm")
e(f"s_and_b32 s{sT0}, s{sH}, 7")
e(f"s_lshl_b32 s{sT0}, s{sT0}, 2")
spin_init()
lab("L_w_poll")
e(f"buffer_load_dword v10, v3, s[{R_DBG}:{R_DBG+3}], s{sT0} offen offset:132 sc1")
e("s_waitcnt vmcnt(0)")
e("v_cmp_eq_u32 vcc, 0, v10")
spin_retry_if_vcc("L_w_poll", "L_w_polld", 2)
lab("L_w_polld")
spin_init()
lab("L_w_h1")
e(f"buffer_load_dwordx4 v[40:43], v204, s[{R_WS}:{R_WS+3}], s{sA2} offen sc1")
e(f"buffer_load_dwordx4 v[44:47], v204, s[{R_WS}:{R_WS+3}], s{sA2} offen offset:1024 sc1")
e(f"buffer_load_dword v10, v3, s[{R_DBG}:{R_DBG+3}], 0 offen offset:128 sc1")
e("s_waitcnt vmcnt(0)")
umax_chain(11, range(40, 48))
e("v_add_u32 v10, -1, v10")
e("v_max_u32 v11, v11, v10")
e("v_cmp_eq_u32 vcc, -1, v11")
spin_retry_if_vcc("L_w_h1", "L_w_h1d", 0)
lab("L_w_h1d")
e("ds_write_b128 v205, v[40:43]")
e("ds_write_b128 v219, v[44:47] offset:1024")
lab("L_w_notcomm")
e(f"v_cmp_gt_u32 vcc, 32, v{vL}")
e("s_waitcnt lgkmcnt(0)")
barrier()
ts(4)
for ks in range(4):
    e(f"ds_read_b128 v[{40+4*ks}:{43+4*ks}], v{220+ks}")
SCALE = (128 ** -0.5) * 1.4426950408889634
e(f"s_mov_b32 s{sT1}, {fl(SCALE)}")
for ks in range(4):
    e(f"s_waitcnt lgkmcnt({3-ks})")
    cc = "0" if ks == 0 else "v[60:63]"
    e(f"v_mfma_f32_16x16x32_bf16 v[60:63], v[{40+4*ks}:{43+4*ks}], v[{20+4*ks}:{23+4*ks}], {cc}")
e("s_nop 7")
e("v_add_f32 v60, v60, v61")
e("v_add_f32 v62, v62, v63")
e("v_add_f32 v60, v60, v62")
e(f"v_mul_f32 v60, s{sT1}, v60")
e("v_cvt_pk_bf16_f32 v60, v60, v60")
exec_save_and()
e(f"ds_write_b16 v207, v60 offset:{LW_STG}")
exec_restore()
e("s_waitcnt lgkmcnt(0)")
barrier()
e(f"s_cmp_lg_u32 s{sWAVE}, 0")
e("s_cbranch_scc1 L_w_qa_done")
e(f"ds_read_b128 v[60:63], v208 offset:{LW_STG}")
e("s_waitcnt lgkmcnt(0)")
for i in range(4):
    e(f"v_min_u32 v{60+i}, -2, v{60+i}")
exec_save_and()
e(f"buffer_store_dwordx4 v[60:63], v209, s[{R_WS}:{R_WS+3}], s{sA3} offen sc1")
exec_restore()
lab("L_w_qa_done")
ts(5)
e(f"s_cmp_ge_u32 s{sIDX}, 114")
e("s_cbranch_scc1 L_w_fin")
if USE_LD:
    e(f"s_cmp_lg_u32 s{sWAVE}, 0")
    e("s_cbranch_scc1 L_w_ldd")
    e(f"s_lshl_b32 s{sT0}, s{sIDX}, 5")
    e(f"s_add_u32 s{sT0}, s{sT0}, {WS_LD}")
    spin_init()
    lab("L_w_ld")
    e(f"buffer_load_dword v10, v3, s[{R_WS}:{R_WS+3}], s{sT0} offen sc1")
    e("s_waitcnt vmcnt(0)")
    e("v_cmp_eq_u32 vcc, -1, v10")
    spin_retry_if_vcc("L_w_ld", "L_w_ldd", 2)
    lab("L_w_ldd")
barrier()
ts(7)
e(f"s_cmp_ge_u32 s{sIDX}, 94")
e("s_cbranch_scc1 L_t7")
e(f"s_cmp_ge_u32 s{sIDX}, 40")
e("s_cbranch_scc1 L_t6")
c("---- T5 ----")
if T5MAP:
    e(f"s_bfe_u32 s{sKQ}, s{sIDX}, 0x20001")
    e(f"s_and_b32 s{sT0}, s{sIDX}, 1")
    e(f"s_mul_i32 s{sT0}, s{sT0}, 5")
    e(f"s_lshr_b32 s{sCS}, s{sIDX}, 3")
    e(f"s_add_u32 s{sCS}, s{sCS}, s{sT0}")
else:
    e(f"s_mul_i32 s{sKQ}, s{sIDX}, 26")
    e(f"s_lshr_b32 s{sKQ}, s{sKQ}, 8")
    e(f"s_mul_i32 s{sT0}, s{sKQ}, 10")
    e(f"s_sub_u32 s{sCS}, s{sIDX}, s{sT0}")
srd(R_B, P_WO, 4096 * 1280)
e(f"v_lshrrev_b32 v9, 3, v{vL}")
e("v_mul_u32_u24 v9, 1280, v9")
e(f"v_and_b32 v10, 7, v{vL}")
e("v_lshl_add_u32 v9, v10, 4, v9")
e(f"s_lshl_b32 s{sT0}, s{sKQ}, 10")
e(f"s_lshl_b32 s{sT1}, s{sWAVE}, 7")
e(f"s_add_u32 s{sT0}, s{sT0}, s{sT1}")
e(f"s_mul_i32 s{sT0}, s{sT0}, 1280")
e(f"s_lshl_b32 s{sT1}, s{sCS}, 7")
e(f"s_add_u32 s{sT0}, s{sT0}, s{sT1}")
e(f"s_lshl_b32 s{sT1}, s{sWAVE}, 14")
for i in range(16):
    e(f"s_add_u32 m0, s{sT1}, {1024*i}")
    e(f"s_add_u32 s{sT2}, s{sT0}, {8*1280*i}")
    e(f"buffer_load_dwordx4 v9, s[{R_B}:{R_B+3}], s{sT2} offen nt lds")
e("v_lshlrev_b32 v9, 7, v202")
e("v_lshl_add_u32 v9, v201, 3, v9")
e(f"v_add_u32 v9, s{sT1}, v9")
e("v_lshlrev_b32 v10, 13, v206")
e("v_lshl_add_u32 v10, v4, 4, v10")
e(f"v_bfe_u32 v11, v{vL}, 3, 1")
e("v_lshl_add_u32 v10, v11, 6, v10")
e(f"s_lshl_b32 s{sA0}, s{sKQ}, 11")
e(f"s_lshl_b32 s{sT1}, s{sWAVE}, 8")
e(f"s_add_u32 s{sA0}, s{sA0}, s{sT1}")
e(f"s_add_u32 s{sA0}, s{sA0}, {WS_CP}")
e("v_and_b32 v12, 1, v4")
e("v_lshlrev_b32 v12, 8, v12")
e("v_lshl_add_u32 v12, v5, 2, v12")
e(f"v_lshrrev_b32 v11, 5, v{vL}")
e("v_lshl_add_u32 v12, v11, 6, v12")
e(f"s_lshl_b32 s{sT0}, s{sWAVE}, 9")
e(f"s_add_u32 s{sT0}, s{sT0}, {LW_RED}")
e(f"v_add_u32 v12, s{sT0}, v12")
e(f"v_lshlrev_b32 v14, 2, v{vL}")
e(f"s_and_b32 s{sT0}, s{sWAVE}, 1")
e(f"s_lshl_b32 s{sT1}, s{sT0}, 8")
e(f"s_add_u32 s{sT1}, s{sT1}, {LW_RED}")
e(f"v_add_u32 v13, s{sT1}, v14")
e(f"s_lshl_b32 s{sA1}, s{sKQ}, 1")
e(f"s_add_u32 s{sA1}, s{sA1}, s{sT0}")
e(f"s_mul_i32 s{sA1}, s{sA1}, 2560")
e(f"s_lshl_b32 s{sT1}, s{sCS}, 8")
e(f"s_add_u32 s{sA1}, s{sA1}, s{sT1}")
e(f"s_add_u32 s{sA1}, s{sA1}, {WS_HP}")
e("s_waitcnt vmcnt(0)")
ts(6)
for ks in range(4):
    for ct in range(4):
        r = 100 + 16 * ks + 4 * ct
        e(f"ds_read_b64_tr_b16 v[{r}:{r+1}], v9 offset:{ks*4096 + ct*32}")
        e(f"ds_read_b64_tr_b16 v[{r+2}:{r+3}], v9 offset:{ks*4096 + ct*32 + 512}")
    e("s_waitcnt lgkmcnt(0)")
e(f"v_cmp_gt_u32 s[{sA2}:{sA3}], 32, v{vL}")
spin_init()
lab("L_w_h4")
for j in range(2):
    e(f"buffer_load_dwordx4 v[{20+4*j}:{23+4*j}], v10, s[{R_WS}:{R_WS+3}], s{sA0} offen offset:{128*j} sc1")
e("s_waitcnt vmcnt(0)")
umax_chain(11, range(20, 28))
e("v_cmp_eq_u32 vcc, -1, v11")
spin_retry_if_vcc("L_w_h4", "L_w_h4d", 0)
lab("L_w_h4d")
ts(10)
for j in range(2):
    for par in range(2):
        for ct in range(4):
            d = 60 + 16 * par + 4 * ct
            cc = "0" if j == 0 else f"v[{d}:{d+3}]"
            r = 100 + 16 * (2 * j + par) + 4 * ct
            e(f"v_mfma_f32_16x16x32_bf16 v[{d}:{d+3}], v[{20+4*j}:{23+4*j}], v[{r}:{r+3}], {cc}")
e("s_nop 0")
for q in range(8):
    d = 60 + 4 * q
    e(f"v_add_f32 v{d}, v{d}, v{d+1}")
    e(f"v_add_f32 v{d+2}, v{d+2}, v{d+3}")
for q in range(8):
    d = 60 + 4 * q
    e(f"v_add_f32 v{d}, v{d}, v{d+2}")
e("s_nop 1")
e("v_permlane32_swap_b32 v76, v64")
e("v_permlane32_swap_b32 v84, v72")
e("s_nop 0")
e("v_add_f32 v60, v60, v64")
e("v_add_f32 v80, v80, v76")
e("v_add_f32 v68, v68, v72")
e("v_add_f32 v88, v88, v84")
e(f"v_cndmask_b32 v60, v80, v60, s[{sA2}:{sA3}]")
e(f"v_cndmask_b32 v68, v88, v68, s[{sA2}:{sA3}]")
e("ds_write_b32 v12, v60")
e("ds_write_b32 v12, v68 offset:128")
e("s_waitcnt lgkmcnt(0)")
barrier()
e(f"s_cmp_ge_u32 s{sWAVE}, 2")
e("s_cbranch_scc1 L_w_fin")
for i in range(8):
    e(f"ds_read_b32 v{20+i}, v13 offset:{512*i}")
e("s_waitcnt lgkmcnt(0)")
e("v_add_f32 v20, v20, v21")
e("v_add_f32 v22, v22, v23")
e("v_add_f32 v24, v24, v25")
e("v_add_f32 v26, v26, v27")
e("v_add_f32 v20, v20, v22")
e("v_add_f32 v24, v24, v26")
e("v_add_f32 v20, v20, v24")
e("v_min_u32 v20, -2, v20")
e(f"buffer_store_dword v20, v14, s[{R_WS}:{R_WS+3}], s{sA1} offen sc1")
ts(11)
e("s_branch L_w_fin")
lab("L_t6")
c("---- T6 ----")
e(f"s_sub_u32 s{sCS}, s{sIDX}, 40")
e(f"s_and_b32 s{sT0}, s{sWAVE}, 1")
e(f"s_cmp_eq_u32 s{sT0}, 0")
e(f"s_cselect_b32 s{R_B}, s{P_W1}, s{P_W3}")
e(f"s_cselect_b32 s{R_B+1}, s{P_W1+1}, s{P_W3+1}")
e(f"s_and_b32 s{R_B+1}, s{R_B+1}, 0xffff")
e(f"s_mov_b32 s{R_B+2}, {640*3456}")
e(f"s_mov_b32 s{R_B+3}, 0x00020000")
e(f"v_lshrrev_b32 v9, 2, v{vL}")
e("v_mul_u32_u24 v9, 3456, v9")
e("v_lshl_add_u32 v9, v201, 4, v9")
e(f"s_lshr_b32 s{sKQ}, s{sWAVE}, 1")
e(f"s_mul_i32 s{sT0}, s{sKQ}, {160*3456}")
e(f"s_lshl_b32 s{sT1}, s{sCS}, 6")
e(f"s_add_u32 s{sT0}, s{sT0}, s{sT1}")
e(f"s_mul_i32 s{sT1}, s{sWAVE}, 10240")
for i in range(10):
    e(f"s_add_u32 m0, s{sT1}, {1024*i}")
    e(f"s_add_u32 s{sT2}, s{sT0}, {16*3456*i}")
    e(f"buffer_load_dwordx4 v9, s[{R_B}:{R_B+3}], s{sT2} offen nt lds")
srd(R_A, P_X, 2560)
e(f"s_lshr_b32 s{sB}, s{sWAVE}, 2")
e(f"s_and_b32 s{sS}, s{sWAVE}, 3")
e(f"v_min_u32 v12, 39, v{vL}")
e("v_lshlrev_b32 v13, 3, v12")
e(f"s_mul_i32 s{sT2}, s{sB}, 1280")
e(f"s_mul_i32 s{sT3}, s{sS}, 320")
e(f"s_add_u32 s{sT2}, s{sT2}, s{sT3}")
e(f"buffer_load_dwordx2 v[14:15], v13, s[{R_A}:{R_A+3}], s{sT2} offen")
e("v_lshlrev_b32 v16, 2, v0")
e("v_mov_b32 v17, 0x3f803f80")
e("v_cmp_gt_u32 vcc, 320, v0")
e(f"v_add_u32 v16, {LW_H + 2560}, v16")
exec_save_and()
e("ds_write_b32 v16, v17")
exec_restore()
e("v_lshlrev_b32 v9, 6, v202")
e("v_lshl_add_u32 v9, v201, 3, v9")
e(f"v_add_u32 v9, s{sT1}, v9")
e("v_lshlrev_b32 v210, 4, v12")
e(f"s_lshl_b32 s{sA0}, s{sT2}, 1")
e(f"s_add_u32 s{sA0}, s{sA0}, {WS_HP}")
for kq in range(1, 4):
    e(f"s_add_u32 s{sA0+kq}, s{sA0}, {5120*kq}")
e(f"s_add_u32 s{sT2}, s{sT2}, {LW_H}")
e(f"v_add_u32 v211, s{sT2}, v13")
e(f"s_lshl_b32 s{sT0}, s{sWAVE}, 3")
e(f"s_add_u32 s{sT0}, s{sT0}, {LW_STAT}")
e(f"v_mov_b32 v212, s{sT0}")
e("v_min_u32 v213, 2, v5")
e("v_mul_u32_u24 v213, 1280, v213")
e("v_lshl_add_u32 v213, v4, 4, v213")
e(f"s_mul_i32 s{sT0}, s{sKQ}, 320")
e(f"s_add_u32 s{sT0}, s{sT0}, {LW_H}")
e(f"v_add_u32 v213, s{sT0}, v213")
e("v_lshlrev_b32 v214, 2, v5")
e(f"s_mul_i32 s{sT0}, s{sWAVE}, 384")
e(f"s_add_u32 s{sT0}, s{sT0}, {LW_RED}")
e(f"v_add_u32 v214, s{sT0}, v214")
e(f"v_lshrrev_b32 v16, 5, v{vL}")
e(f"v_and_b32 v17, 31, v{vL}")
e("v_lshlrev_b32 v215, 7, v16")
e("v_lshl_add_u32 v215, v17, 2, v215")
e(f"v_add_u32 v215, {LW_RED}, v215")
e("v_lshlrev_b32 v216, 2, v17")
e(f"v_add_u32 v216, {LW_RED + 256}, v216")
e("v_lshlrev_b32 v217, 5, v16")
e(f"v_add_u32 v217, {LW_STAT}, v217")
e("v_mul_u32_u24 v218, 3456, v16")
e("v_lshl_add_u32 v218, v17, 1, v218")
e(f"s_lshl_b32 s{sCS}, s{sCS}, 6")
e(f"s_add_u32 s{sCS}, s{sCS}, {WS_ACT}")
e("s_waitcnt vmcnt(0)")
ts(6)
for ks in range(5):
    for ct in range(2):
        r = 100 + 8 * ks + 4 * ct
        e(f"ds_read_b64_tr_b16 v[{r}:{r+1}], v9 offset:{ks*2048 + ct*32}")
        e(f"ds_read_b64_tr_b16 v[{r+2}:{r+3}], v9 offset:{ks*2048 + ct*32 + 256}")
    e("s_waitcnt lgkmcnt(4)")
e("v_lshlrev_b32 v40, 16, v14")
e("v_and_b32 v41, 0xffff0000, v14")
e("v_lshlrev_b32 v42, 16, v15")
e("v_and_b32 v43, 0xffff0000, v15")
e("s_waitcnt lgkmcnt(0)")
spin_init()
lab("L_w_h5")
for kq in range(4):
    e(f"buffer_load_dwordx4 v[{20+4*kq}:{23+4*kq}], v210, s[{R_WS}:{R_WS+3}], s{sA0+kq} offen sc1")
e("s_waitcnt vmcnt(0)")
umax_chain(11, range(20, 36))
e("v_cmp_eq_u32 vcc, -1, v11")
spin_retry_if_vcc("L_w_h5", "L_w_h5d", 0)
lab("L_w_h5d")
ts(10)
for j in range(4):
    e(f"v_add_f32 v{20+j}, v{20+j}, v{24+j}")
    e(f"v_add_f32 v{28+j}, v{28+j}, v{32+j}")
for j in range(4):
    e(f"v_add_f32 v{40+j}, v{40+j}, v{20+j}")
for j in range(4):
    e(f"v_add_f32 v{40+j}, v{40+j}, v{28+j}")
e("v_cvt_pk_bf16_f32 v44, v40, v41")
e("v_cvt_pk_bf16_f32 v45, v42, v43")
e("ds_write_b64 v211, v[44:45]")
e("v_lshlrev_b32 v40, 16, v44")
e("v_and_b32 v41, 0xffff0000, v44")
e("v_lshlrev_b32 v42, 16, v45")
e("v_and_b32 v43, 0xffff0000, v45")
e(f"v_cmp_gt_u32 vcc, 40, v{vL}")
e("v_add_f32 v46, v40, v41")
e("v_add_f32 v47, v42, v43")
e("v_add_f32 v46, v46, v47")
e("v_cndmask_b32 v46, 0, v46, vcc")
e("s_waitcnt lgkmcnt(0)")
barrier()
for ks in range(5):
    e(f"ds_read_b128 v[{20+4*ks}:{23+4*ks}], v213 offset:{64*ks}")
allreduce("add", 46, 47)
e(f"v_mul_f32 v46, {fl(1.0/160.0)}, v46")
for ks in range(5):
    e(f"s_waitcnt lgkmcnt({4-ks})")
    for ct in range(2):
        d = 60 + 4 * ct
        cc = "0" if ks == 0 else f"v[{d}:{d+3}]"
        r = 100 + 8 * ks + 4 * ct
        e(f"v_mfma_f32_16x16x32_bf16 v[{d}:{d+3}], v[{20+4*ks}:{23+4*ks}], v[{r}:{r+3}], {cc}")
for j in range(4):
    e(f"v_sub_f32 v{40+j}, v{40+j}, v46")
e("v_mul_f32 v48, v40, v40")
for j in range(1, 4):
    e(f"v_fmac_f32 v48, v{40+j}, v{40+j}")
e("v_cndmask_b32 v48, 0, v48, vcc")
allreduce("add", 48, 47)
e("v_mov_b32 v47, v48")
e("ds_write_b64 v212, v[46:47]")
e(f"v_cmp_gt_u32 vcc, 16, v{vL}")
exec_save_and()
for ct in range(2):
    for r in range(3):
        e(f"ds_write_b32 v214, v{60+4*ct+r} offset:{128*r + 64*ct}")
exec_restore()
e("s_waitcnt lgkmcnt(0)")
barrier()
e(f"s_cmp_lg_u32 s{sWAVE}, 0")
e("s_cbranch_scc1 L_w_fin")
e("ds_read_b128 v[40:43], v217")
e("ds_read_b128 v[44:47], v217 offset:16")
for w in range(8):
    e(f"ds_read_b32 v{20+w}, v215 offset:{384*w}")
e("s_waitcnt lgkmcnt(8)")
for w in range(8):
    e(f"ds_read_b32 v{28+w}, v216 offset:{384*w}")
e("v_add_f32 v48, v40, v42")
e("v_add_f32 v49, v44, v46")
e("v_add_f32 v50, v41, v43")
e("v_add_f32 v51, v45, v47")
e("v_add_f32 v48, v48, v49")
e("v_add_f32 v49, v50, v51")
e("v_mul_f32 v48, 0.25, v48")
e("v_sub_f32 v40, v40, v48")
e("v_sub_f32 v42, v42, v48")
e("v_sub_f32 v44, v44, v48")
e("v_sub_f32 v46, v46, v48")
e("v_mul_f32 v50, v40, v40")
e("v_mul_f32 v51, v42, v42")
e("v_fmac_f32 v50, v44, v44")
e("v_fmac_f32 v51, v46, v46")
e("v_add_f32 v50, v50, v51")
e("v_fmac_f32 v49, 0x43200000, v50")
e(f"v_mov_b32 v51, {fl(1e-5)}")
e(f"v_fmac_f32 v51, {fl(1.0/640.0)}, v49")
e("v_rsq_f32 v51, v51")
e("s_waitcnt lgkmcnt(8)")
e("v_add_f32 v20, v20, v22")
e("v_add_f32 v24, v24, v26")
e("v_add_f32 v21, v21, v23")
e("v_add_f32 v25, v25, v27")
e("v_add_f32 v20, v20, v24")
e("v_add_f32 v21, v21, v25")
e("s_waitcnt lgkmcnt(0)")
e("v_add_f32 v28, v28, v30")
e("v_add_f32 v32, v32, v34")
e("v_add_f32 v29, v29, v31")
e("v_add_f32 v33, v33, v35")
e("v_add_f32 v28, v28, v32")
e("v_add_f32 v29, v29, v33")
e("v_fma_f32 v20, -v48, v28, v20")
e("v_fma_f32 v21, -v48, v29, v21")
e("v_mul_f32 v20, v20, v51")
e("v_mul_f32 v21, v21, v51")
e("v_mul_f32 v22, 0xbfb8aa3b, v20")
e("v_exp_f32 v22, v22")
e("v_mul_f32 v20, v20, v21")
e("v_add_f32 v22, 1.0, v22")
e("v_rcp_f32 v22, v22")
e("s_nop 0")
e("v_mul_f32 v20, v20, v22")
e("s_nop 1")
e("v_mov_b32_dpp v21, v20 quad_perm:[1,1,3,3] row_mask:0xf bank_mask:0xf")
e("s_nop 0")
e("v_cvt_pk_bf16_f32 v20, v20, v21")
e("v_min_u32 v20, -2, v20")
e(f"s_mov_b64 s[{sEX}:{sEX+1}], exec")
e("s_mov_b32 exec_lo, 0x55555555")
e("s_mov_b32 exec_hi, 0x55555555")
e(f"buffer_store_dword v20, v218, s[{R_WS}:{R_WS+3}], s{sCS} offen sc1")
exec_restore()
ts(11)
e("s_branch L_w_fin")
lab("L_t7")
c("---- T7 ----")
e(f"s_sub_u32 s{sCS}, s{sIDX}, 94")
srd(R_B, P_W2, 1728 * 1280)
e(f"v_lshrrev_b32 v9, 2, v{vL}")
e("v_mul_u32_u24 v9, 1280, v9")
e("v_lshl_add_u32 v9, v201, 4, v9")
e(f"s_mul_i32 s{sT0}, s{sWAVE}, {64*1280}")
e(f"s_lshl_b32 s{sT1}, s{sCS}, 6")
e(f"s_add_u32 s{sT0}, s{sT0}, s{sT1}")
e(f"s_lshl_b32 s{sT1}, s{sWAVE}, 12")
for i in range(4):
    if i == 3:
        e(f"s_cmp_ge_u32 s{sWAVE}, 3")
        e("s_cbranch_scc1 L_t7_dma_done")
    for j in range(4):
        e(f"s_add_u32 m0, s{sT1}, {32768*i + 1024*j}")
        e(f"s_add_u32 s{sT2}, s{sT0}, {(8*64*i + 16*j)*1280}")
        e(f"buffer_load_dwordx4 v9, s[{R_B}:{R_B+3}], s{sT2} offen nt lds")
lab("L_t7_dma_done")
srd(R_A, P_X, 2560)
srd(R_C, P_OUT, 2560)
e(f"v_lshrrev_b32 v16, 5, v{vL}")
e(f"v_and_b32 v17, 31, v{vL}")
e("v_mul_u32_u24 v210, 2560, v16")
e("v_lshl_add_u32 v210, v17, 2, v210")
e("v_mul_u32_u24 v211, 1280, v16")
e("v_lshl_add_u32 v211, v17, 1, v211")
e(f"s_lshl_b32 s{sKQ}, s{sCS}, 6")
e(f"buffer_load_ushort v70, v211, s[{R_A}:{R_A+3}], s{sKQ} offen")
if TOUCH:
    e(f"buffer_load_ushort v71, v211, s[{R_C}:{R_C+3}], s{sKQ} offen")
e(f"s_lshl_b32 s{sA0}, s{sCS}, 7")
e(f"s_add_u32 s{sA0}, s{sA0}, {WS_HP}")
for kq in range(1, 4):
    e(f"s_add_u32 s{sA0+kq}, s{sA0}, {5120*kq}")
e("v_lshlrev_b32 v9, 6, v202")
e("v_lshl_add_u32 v9, v201, 3, v9")
e(f"v_add_u32 v9, s{sT1}, v9")
e("v_add_u32 v10, 0x10000, v9")
e(f"v_and_b32 v212, 1, v{vL}")
e("v_mul_u32_u24 v212, 3456, v212")
e("v_lshl_add_u32 v212, v4, 4, v212")
e(f"v_bfe_u32 v11, v{vL}, 1, 1")
e("v_lshl_add_u32 v212, v11, 6, v212")
e(f"s_lshl_b32 s{sB}, s{sWAVE}, 7")
e(f"s_add_u32 s{sB}, s{sB}, {WS_ACT}")
e("v_lshlrev_b32 v213, 2, v5")
e(f"s_lshl_b32 s{sT0}, s{sWAVE}, 8")
e(f"s_add_u32 s{sT0}, s{sT0}, {LW_RED}")
e(f"v_add_u32 v213, s{sT0}, v213")
e(f"v_lshlrev_b32 v214, 2, v{vL}")
e(f"v_add_u32 v214, {LW_RED}, v214")
for j in range(4):
    e(f"v_mov_b32 v{32+j}, 0")
for j in range(16):
    e(f"v_mov_b32 v{148+j}, 0")
e("s_waitcnt vmcnt(0)")
ts(6)
for i in range(4):
    if i == 3:
        e(f"s_cmp_ge_u32 s{sWAVE}, 3")
        e("s_cbranch_scc1 L_t7_frag_done")
    a_ = "v9" if i < 2 else "v10"
    off = (i & 1) * 32768
    for par in range(2):
        for ct in range(2):
            r = 100 + 16 * i + 8 * par + 4 * ct
            e(f"ds_read_b64_tr_b16 v[{r}:{r+1}], {a_} offset:{off + par*2048 + ct*32}")
            e(f"ds_read_b64_tr_b16 v[{r+2}:{r+3}], {a_} offset:{off + par*2048 + ct*32 + 256}")
    e("s_waitcnt lgkmcnt(0)")
lab("L_t7_frag_done")
e(f"s_cmp_lg_u32 s{sWAVE}, 0")
e("s_cbranch_scc1 L_w_s7_noh")
spin_init()
lab("L_w_h5b")
for kq in range(4):
    e(f"buffer_load_dword v{72+kq}, v210, s[{R_WS}:{R_WS+3}], s{sA0+kq} offen sc1")
e("s_waitcnt vmcnt(0)")
umax_chain(11, range(72, 76))
e("v_cmp_eq_u32 vcc, -1, v11")
spin_retry_if_vcc("L_w_h5b", "L_w_h5bd", 1)
lab("L_w_h5bd")
e("v_lshlrev_b32 v70, 16, v70")
e("v_add_f32 v72, v72, v73")
e("v_add_f32 v74, v74, v75")
e("v_add_f32 v70, v70, v72")
e("v_add_f32 v70, v70, v74")
e("v_cvt_pk_bf16_f32 v70, v70, v70")
e("v_and_b32 v70, 0xffff0000, v70")
lab("L_w_s7_noh")
spin_init()
lab("L_w_h6")
for i in range(3):
    e(f"buffer_load_dwordx4 v[{20+4*i}:{23+4*i}], v212, s[{R_WS}:{R_WS+3}], s{sB} offen offset:{1024*i} sc1")
e(f"s_cmp_ge_u32 s{sWAVE}, 3")
e("s_cbranch_scc1 L_w_h6_skip")
e(f"buffer_load_dwordx4 v[32:35], v212, s[{R_WS}:{R_WS+3}], s{sB} offen offset:{1024*3} sc1")
lab("L_w_h6_skip")
e("s_waitcnt vmcnt(0)")
umax_chain(11, range(20, 36))
e("v_cmp_eq_u32 vcc, -1, v11")
spin_retry_if_vcc("L_w_h6", "L_w_h6d", 0)
lab("L_w_h6d")
ts(10)
for i in range(4):
    for par in range(2):
        for ct in range(2):
            d = 40 + 8 * par + 4 * ct
            cc = "0" if i == 0 else f"v[{d}:{d+3}]"
            r = 100 + 16 * i + 8 * par + 4 * ct
            e(f"v_mfma_f32_16x16x32_bf16 v[{d}:{d+3}], v[{20+4*i}:{23+4*i}], v[{r}:{r+3}], {cc}")
e(f"v_cmp_gt_u32 vcc, 16, v{vL}")
e("s_nop 6")
e("v_add_f32 v40, v40, v50")
e("v_add_f32 v41, v41, v51")
e("v_add_f32 v44, v44, v54")
e("v_add_f32 v45, v45, v55")
exec_save_and()
e("ds_write_b32 v213, v40")
e("ds_write_b32 v213, v41 offset:128")
e("ds_write_b32 v213, v44 offset:64")
e("ds_write_b32 v213, v45 offset:192")
exec_restore()
e("s_waitcnt lgkmcnt(0)")
barrier()
e(f"s_cmp_lg_u32 s{sWAVE}, 0")
e("s_cbranch_scc1 L_w_fin")
for i in range(8):
    e(f"ds_read_b32 v{20+i}, v214 offset:{256*i}")
e("s_waitcnt lgkmcnt(0)")
e("v_add_f32 v20, v20, v21")
e("v_add_f32 v22, v22, v23")
e("v_add_f32 v24, v24, v25")
e("v_add_f32 v26, v26, v27")
e("v_add_f32 v20, v20, v22")
e("v_add_f32 v24, v24, v26")
e("v_add_f32 v20, v20, v70")
e("v_add_f32 v20, v20, v24")
e("v_cvt_pk_bf16_f32 v20, v20, v20")
e(f"buffer_store_short v20, v211, s[{R_C}:{R_C+3}], s{sKQ} offen")
ts(11)
if DOUBLE:
    e("s_memrealtime s[98:99]")
    e("s_waitcnt lgkmcnt(0)")
    e("s_sub_u32 s94, s98, s96")
    e("s_min_u32 s94, s94, 10000")
    lab("L_dbl")
    e("s_memrealtime s[92:93]")
    e("s_waitcnt lgkmcnt(0)")
    e("s_sub_u32 s95, s92, s98")
    e("s_cmp_lt_u32 s95, s94")
    e("s_cbranch_scc1 L_dbl")
lab("L_w_fin")
ts_flush(12)
e("s_endpgm")

LA_C = 0
LA_Q = 131072
LA_P = LA_Q
LA_MX = LA_Q + 8192
LA_LS = LA_Q + 8704
LA_O = 0
LA_WUV = 32768
LA_CX = 65536
LA_CF = 73728
LA_STG = 74752

lab("L_arole")
c("================= A role =================")
LA_WQ = 90112
LA_XN = LA_Q
LA_SQ = LA_Q + 4096
e(f"s_sub_u32 s{sIDX}, s2, 128")
e(f"s_lshr_b32 s{sB}, s{sIDX}, 6")
e(f"s_and_b32 s{sS}, s{sIDX}, 63")
e(f"s_and_b32 s{sH}, s{sIDX}, 31")
e(f"s_lshr_b32 s{sJQ}, s{sIDX}, 5")
srd(R_C, P_X, 2560)
srd(R_B, P_WQ, 640 * 8192)
srd(R_A, P_CKV, 2 * 8192 * 1024)
e(f"v_lshrrev_b32 v4, 4, v{vL}")
e(f"v_and_b32 v5, 15, v{vL}")
e(f"v_lshlrev_b32 v6, 4, v{vL}")
e(f"v_lshlrev_b32 v19, 2, v{vL}")
e(f"s_cmp_ge_u32 s{sWAVE}, 2")
e("s_cbranch_scc1 L_a_nox")
e(f"s_mul_i32 s{sT0}, s{sWAVE}, 1280")
for i in range(5):
    e(f"buffer_load_dword v{12+i}, v19, s[{R_C}:{R_C+3}], s{sT0} offen offset:{256*i}")
lab("L_a_nox")
e("v_lshlrev_b32 v7, 4, v5")
e("v_lshlrev_b32 v18, 5, v4")
e("v_xor_b32 v7, v7, v18")
e("v_lshl_add_u32 v7, v4, 13, v7")
e(f"s_mul_i32 s{sT2}, s{sJQ}, {160*8192}")
e(f"s_lshl_b32 s{sT0}, s{sH}, 8")
e(f"s_add_u32 s{sT2}, s{sT2}, s{sT0}")
e(f"s_mul_i32 s{sT3}, s{sWAVE}, 20")
for i in range(5):
    e(f"s_add_u32 s{sT4}, s{sT3}, {4*i}")
    e(f"s_lshl_b32 s{sT5}, s{sT4}, 4")
    e(f"s_and_b32 s{sT5}, s{sT5}, 128")
    e(f"v_xor_b32 v18, s{sT5}, v7")
    e(f"s_lshl_b32 s{sT5}, s{sT4}, 8")
    e(f"s_add_u32 m0, s{sT5}, {LA_WQ}")
    e(f"s_lshl_b32 s{sT4}, s{sT4}, 13")
    e(f"s_add_u32 s{sT4}, s{sT4}, s{sT2}")
    e(f"buffer_load_dwordx4 v18, s[{R_B}:{R_B+3}], s{sT4} offen nt lds")
e(f"s_and_b32 s{sT0}, s{sWAVE}, 3")
e(f"s_lshl_b32 s{sT0}, s{sT0}, 2")
e(f"s_lshr_b32 s{sT1}, s{sWAVE}, 2")
e(f"s_or_b32 s{sT0}, s{sT0}, s{sT1}")
e(f"v_xor_b32 v145, s{sT0}, v{vL}")
e("v_lshlrev_b32 v145, 4, v145")
e("v_xor_b32 v146, 32, v145")
e(f"s_lshl_b32 s{sCS}, s{sIDX}, 7")
e(f"s_add_u32 s{sCS}, s{sCS}, s{sWAVE}")
e(f"s_lshl_b32 s{sCS}, s{sCS}, 10")
e(f"s_lshl_b32 s{sKQ}, s{sWAVE}, 10")
def c_dma(i):
    e(f"s_add_u32 m0, s{sKQ}, {8192*i + LA_C}")
    e(f"s_add_u32 s{sT2}, s{sCS}, {8192*i}")
    e(f"buffer_load_dwordx4 v{145 + (i & 1)}, s[{R_A}:{R_A+3}], s{sT2} offen nt lds")
e(f"s_cmp_lg_u32 s{sWAVE}, 7")
e("s_cbranch_scc1 L_a_np1")
e(f"s_and_b32 s{sA1}, s{sH}, 7")
e(f"s_lshl_b32 s{sA1}, s{sA1}, 2")
e(f"buffer_load_dword v147, v3, s[{R_DBG}:{R_DBG+3}], s{sA1} offen offset:132 sc1")
lab("L_a_np1")
for i in range(NF):
    c_dma(i)
if TOUCH:
    e(f"s_cmp_lg_u32 s{sWAVE}, 6")
    e("s_cbranch_scc1 L_a_notouch")
    e(f"buffer_load_dword v150, v3, s[{R_A}:{R_A+3}], s{sCS} offen")
    e(f"v_and_b32 v151, 3, v{vL}")
    e("v_lshlrev_b32 v151, 20, v151")
    e(f"s_lshl_b32 s{sT0}, s{sH}, 15")
    e(f"s_add_u32 s{sT0}, s{sT0}, {WS_OP}")
    e(f"buffer_load_dword v152, v151, s[{R_WS}:{R_WS+3}], s{sT0} offen sc1")
    srd(R_C, P_WUV, 512 * 8192)
    e(f"s_lshl_b32 s{sT0}, s{sJQ}, 20")
    e(f"buffer_load_dword v153, v3, s[{R_C}:{R_C+3}], s{sT0} offen")
    lab("L_a_notouch")
ts(1)
e(f"s_cmp_ge_u32 s{sWAVE}, 2")
e("s_cbranch_scc1 L_a_noln")
e(f"s_waitcnt vmcnt({5+NF})")
for i in range(5):
    e(f"v_lshlrev_b32 v{20+2*i}, 16, v{12+i}")
    e(f"v_and_b32 v{21+2*i}, 0xffff0000, v{12+i}")
e("v_add_f32 v30, v20, v21")
for i in range(2, 10):
    e(f"v_add_f32 v30, v30, v{20+i}")
allreduce("add", 30, 31)
e(f"v_mul_f32 v30, {fl(1.0/640.0)}, v30")
for i in range(10):
    e(f"v_sub_f32 v{20+i}, v{20+i}, v30")
e("v_mul_f32 v32, v20, v20")
for i in range(1, 10):
    e(f"v_fmac_f32 v32, v{20+i}, v{20+i}")
allreduce("add", 32, 31)
e(f"v_mov_b32 v33, {fl(1e-5)}")
e(f"v_fmac_f32 v33, {fl(1.0/640.0)}, v32")
e("v_rsq_f32 v33, v33")
e("s_nop 0")
for i in range(10):
    e(f"v_mul_f32 v{20+i}, v{20+i}, v33")
for i in range(5):
    e(f"v_cvt_pk_bf16_f32 v{12+i}, v{20+2*i}, v{21+2*i}")
e(f"s_mul_i32 s{sT0}, s{sWAVE}, 1280")
e(f"s_add_u32 s{sT0}, s{sT0}, {LA_XN}")
e(f"v_add_u32 v19, s{sT0}, v19")
for i in range(5):
    e(f"ds_write_b32 v19, v{12+i} offset:{256*i}")
lab("L_a_noln")
e(f"v_bfe_u32 v11, v{vL}, 2, 2")
e("v_and_b32 v10, 1, v4")
e("v_lshl_or_b32 v10, v10, 2, v11")
e(f"v_xor_b32 v10, s{sWAVE}, v10")
e("v_lshlrev_b32 v10, 5, v10")
e("v_lshl_add_u32 v140, v4, 3, v11")
e("v_lshl_add_u32 v140, v140, 8, v10")
e(f"v_and_b32 v10, 3, v{vL}")
e("v_lshl_add_u32 v140, v10, 3, v140")
e(f"v_add_u32 v140, {LA_WQ}, v140")
e(f"v_and_b32 v10, 1, v{vL}")
e("v_mul_u32_u24 v141, 1280, v10")
e("v_lshl_add_u32 v141, v4, 4, v141")
e(f"s_mul_i32 s{sT0}, s{sJQ}, 320")
e(f"s_add_u32 s{sT0}, s{sT0}, {LA_XN}")
e(f"v_add_u32 v141, s{sT0}, v141")
e("v_lshlrev_b32 v142, 8, v10")
e("v_lshl_add_u32 v142, v4, 3, v142")
e(f"s_lshl_b32 s{sT1}, s{sWAVE}, 5")
e(f"s_add_u32 s{sT1}, s{sT1}, {LA_SQ}")
e(f"v_add_u32 v142, s{sT1}, v142")
e("v_and_b32 v144, 511, v6")
e(f"v_add_u32 v143, {LA_SQ}, v144")
e(f"s_lshl_b32 s{sA0}, s{sH}, 2")
e(f"s_add_u32 s{sA0}, s{sA0}, s{sJQ}")
e(f"s_lshl_b32 s{sA0}, s{sA0}, 9")
if GOPT:
    e(f"v_and_b32 v10, 1, v{vL}")
    e("v_lshlrev_b32 v142, 8, v10")
    e("v_lshl_add_u32 v142, v4, 3, v142")
    e(f"s_lshl_b32 s{sT1}, s{sWAVE}, 5")
    e(f"s_add_u32 s{sA0}, s{sA0}, s{sT1}")
    e(f"s_waitcnt vmcnt({NF}) lgkmcnt(0)")
    e(f"s_cmp_lg_u32 s{sWAVE}, 7")
    e("s_cbranch_scc1 L_a_polld")
    spin_init()
    lab("L_a_poll")
    e("v_cmp_eq_u32 vcc, 0, v147")
    e("s_cbranch_vccz L_a_polld")
    e(f"s_add_u32 s{sSPIN}, s{sSPIN}, 1")
    e(f"s_cmp_ge_u32 s{sSPIN}, {SPIN_MAX}")
    e("s_cbranch_scc1 L_a_polld")
    e(f"buffer_load_dword v147, v3, s[{R_DBG}:{R_DBG+3}], s{sA1} offen offset:132 sc1")
    e("s_waitcnt vmcnt(0)")
    e("s_branch L_a_poll")
    lab("L_a_polld")
    e("v_cmp_gt_u32 vcc, 2, v5")
    barrier()
    for ks in range(5):
        e(f"ds_read_b64_tr_b16 v[{20+4*ks}:{21+4*ks}], v140 offset:{ks*8192}")
        e(f"ds_read_b64_tr_b16 v[{22+4*ks}:{23+4*ks}], v140 offset:{ks*8192 + 1024}")
        e(f"ds_read_b128 v[{40+4*ks}:{43+4*ks}], v141 offset:{ks*64}")
    for ks in range(5):
        e(f"s_waitcnt lgkmcnt({3*(4-ks)})")
        cc = "0" if ks == 0 else "v[60:63]"
        e(f"v_mfma_f32_16x16x32_bf16 v[60:63], v[{20+4*ks}:{23+4*ks}], v[{40+4*ks}:{43+4*ks}], {cc}")
    e("s_nop 7")
    e("v_cvt_pk_bf16_f32 v64, v60, v61")
    e("v_cvt_pk_bf16_f32 v65, v62, v63")
    e("v_min_u32 v64, -2, v64")
    e("v_min_u32 v65, -2, v65")
    exec_save_and()
    e(f"buffer_store_dwordx2 v[64:65], v142, s[{R_WS}:{R_WS+3}], s{sA0} offen sc1")
    exec_restore()
    barrier()
    if TS:
        ts(11)
else:
    if PSLEEP:
        e(f"s_cmp_lg_u32 s{sWAVE}, 7")
        e("s_cbranch_scc1 L_a_np2")
        for r in (148, 149, 150):
            e(f"s_sleep {PSLEEP}")
            e(f"buffer_load_dword v{r}, v3, s[{R_DBG}:{R_DBG+3}], s{sA1} offen offset:132 sc1")
        e("s_waitcnt vmcnt(0)")
        e("v_or3_b32 v147, v147, v148, v149")
        e("v_or_b32 v147, v147, v150")
        lab("L_a_np2")
    e("v_cmp_gt_u32 vcc, 2, v5")
    if TOUCH:
        e(f"s_cmp_lg_u32 s{sWAVE}, 6")
        e("s_cbranch_scc1 L_a_b1w")
        e(f"s_waitcnt vmcnt({NF+3}) lgkmcnt(0)")
        e("s_branch L_a_b1x")
        lab("L_a_b1w")
    e(f"s_waitcnt vmcnt({NF}) lgkmcnt(0)")
    if TOUCH:
        lab("L_a_b1x")
    barrier()
    for ks in range(5):
        e(f"ds_read_b64_tr_b16 v[{20+4*ks}:{21+4*ks}], v140 offset:{ks*8192}")
        e(f"ds_read_b64_tr_b16 v[{22+4*ks}:{23+4*ks}], v140 offset:{ks*8192 + 1024}")
        e(f"ds_read_b128 v[{40+4*ks}:{43+4*ks}], v141 offset:{ks*64}")
    for ks in range(5):
        e(f"s_waitcnt lgkmcnt({3*(4-ks)})")
        cc = "0" if ks == 0 else "v[60:63]"
        e(f"v_mfma_f32_16x16x32_bf16 v[60:63], v[{20+4*ks}:{23+4*ks}], v[{40+4*ks}:{43+4*ks}], {cc}")
    e("s_nop 7")
    e("v_cvt_pk_bf16_f32 v64, v60, v61")
    e("v_cvt_pk_bf16_f32 v65, v62, v63")
    exec_save_and()
    e("ds_write_b64 v142, v[64:65]")
    exec_restore()
    e("s_waitcnt lgkmcnt(0)")
    barrier()
    e(f"s_cmp_lg_u32 s{sWAVE}, 7")
    e("s_cbranch_scc1 L_a_notcomm")
    e("ds_read_b128 v[60:63], v143")
    spin_init()
    lab("L_a_poll")
    e("v_cmp_eq_u32 vcc, 0, v147")
    e("s_cbranch_vccz L_a_polld")
    e(f"s_add_u32 s{sSPIN}, s{sSPIN}, 1")
    e(f"s_cmp_ge_u32 s{sSPIN}, {SPIN_MAX}")
    e("s_cbranch_scc1 L_a_polld")
    e(f"buffer_load_dword v147, v3, s[{R_DBG}:{R_DBG+3}], s{sA1} offen offset:132 sc1")
    e("s_waitcnt vmcnt(0)")
    e("s_branch L_a_poll")
    lab("L_a_polld")
    e(f"v_cmp_gt_u32 vcc, 32, v{vL}")
    e("s_waitcnt lgkmcnt(0)")
    for i in range(4):
        e(f"v_min_u32 v{60+i}, -2, v{60+i}")
    exec_save_and()
    e(f"buffer_store_dwordx4 v[60:63], v144, s[{R_WS}:{R_WS+3}], s{sA0} offen sc1")
    exec_restore()
    lab("L_a_notcomm")
    barrier()
    if TS:
        ts(11)

for i in range(NF, GPOS):
    c_dma(i)
barrier()
e("v_lshlrev_b32 v240, 4, v0")
e(f"s_lshl_b32 s{sA0}, s{sB}, 15")
e(f"s_add_u32 s{sA0}, s{sA0}, {WS_QA}")
for i in range(1, 4):
    e(f"s_add_u32 s{sA0+i}, s{sA0}, {8192*i}")
def qa_gather():
    e(f"buffer_load_dword v7, v3, s[{R_DBG}:{R_DBG+3}], 0 offen offset:128 sc1")
    for i in range(4):
        e(f"buffer_load_dwordx4 v[{20+4*i}:{23+4*i}], v240, s[{R_WS}:{R_WS+3}], s{sA0+i} offen sc1")
qa_gather()
for i in range(GPOS, 16):
    c_dma(i)
e("v_and_b32 v8, 3, v5")
e("v_lshrrev_b32 v9, 2, v5")
e("v_lshl_or_b32 v8, v8, 2, v9")
e(f"v_lshrrev_b32 v9, 5, v{vL}")
e(f"v_and_b32 v17, 31, v{vL}")
e("v_lshlrev_b32 v10, 10, v17")
e(f"s_and_b32 s{sT0}, s{sWAVE}, 3")
e(f"s_lshl_b32 s{sT0}, s{sT0}, 15")
for kk in range(8):
    e(f"v_add_u32 v11, {2*kk}, v9")
    e("v_xor_b32 v11, v11, v8")
    e("v_lshl_add_u32 v11, v11, 4, v10")
    e(f"v_add_u32 v{200+kk}, s{sT0}, v11")
    e(f"v_add_u32 v{208+kk}, {LA_Q}, v11")
e(f"v_bfe_u32 v11, v{vL}, 2, 2")
e("v_lshrrev_b32 v12, 1, v4")
e("v_lshl_or_b32 v13, v11, 2, v12")
e("v_lshl_add_u32 v14, v12, 2, v11")
e("v_lshlrev_b32 v14, 10, v14")
e(f"s_lshr_b32 s{sT0}, s{sWAVE}, 1")
e(f"s_lshl_b32 s{sT0}, s{sT0}, 8")
e(f"v_add_u32 v14, s{sT0}, v14")
e(f"v_and_b32 v15, 1, v{vL}")
e("v_lshl_add_u32 v14, v15, 3, v14")
e("v_and_b32 v15, 1, v4")
e("v_lshlrev_b32 v15, 1, v15")
e(f"v_bfe_u32 v16, v{vL}, 1, 1")
e("v_or_b32 v15, v15, v16")
e(f"s_and_b32 s{sT0}, s{sWAVE}, 1")
e(f"s_lshl_b32 s{sT0}, s{sT0}, 3")
e(f"v_or_b32 v15, s{sT0}, v15")
e("v_xor_b32 v15, v15, v13")
for ct in range(2):
    for rd in range(2):
        x = (4 * ct) ^ (2 * rd)
        r = 216 + 4 * ct + 2 * rd
        e(f"v_xor_b32 v16, {x}, v15")
        e(f"v_lshl_add_u32 v{r}, v16, 4, v14")
        if rd:
            e(f"v_add_u32 v{r}, 8192, v{r}")
        e(f"v_add_u32 v{r+1}, 0x10000, v{r}")
e(f"s_and_b32 s{sT0}, s{sWAVE}, 3")
e(f"s_lshl_b32 s{sT0}, s{sT0}, 2")
e(f"s_lshr_b32 s{sT1}, s{sWAVE}, 2")
e(f"s_or_b32 s{sT0}, s{sT0}, s{sT1}")
e(f"v_xor_b32 v241, s{sT0}, v{vL}")
e("v_lshlrev_b32 v241, 4, v241")
e(f"s_lshl_b32 s{sT1}, s{sWAVE}, 10")
e(f"s_add_u32 s{sT1}, s{sT1}, {LA_Q}")
e(f"v_add_u32 v241, s{sT1}, v241")
e("v_xor_b32 v242, 32, v241")
e("v_lshlrev_b32 v243, 4, v17")
e(f"v_add_u32 v243, {LA_MX}, v243")
e(f"s_and_b32 s{sT0}, s{sWAVE}, 3")
e(f"s_lshl_b32 s{sT1}, s{sT0}, 2")
e(f"v_add_u32 v244, s{sT1}, v243")
e(f"v_add_u32 v246, {LA_P}, v6")
e(f"s_lshl_b32 s{sT1}, s{sT0}, 11")
e(f"v_add_u32 v245, s{sT1}, v246")
e("v_lshl_add_u32 v12, v9, 3, v10")
e(f"s_lshl_b32 s{sT0}, s{sWAVE}, 3")
e(f"v_xor_b32 v13, s{sT0}, v5")
for j in range(8):
    e(f"v_xor_b32 v14, {j}, v13")
    e(f"v_lshl_add_u32 v{160+j}, v14, 4, v12")
e(f"s_lshl_b32 s{sT0}, s{sWAVE}, 2")
for i in range(4):
    e(f"s_add_u32 s{sT2}, s{sT0}, {i}")
    e(f"s_and_b32 s{sT3}, s{sT2}, 15")
    e(f"v_xor_b32 v14, s{sT3}, v{vL}")
    e("v_lshlrev_b32 v14, 4, v14")
    e(f"s_lshl_b32 s{sT2}, s{sT2}, 10")
    e(f"v_add_u32 v{168+i}, s{sT2}, v14")
e("v_lshlrev_b32 v172, 14, v4")
e("v_lshl_add_u32 v172, v5, 4, v172")
e(f"s_lshl_b32 s{sCS}, s{sB}, 5")
e(f"s_add_u32 s{sCS}, s{sCS}, s{sT0}")
e(f"s_lshl_b32 s{sCS}, s{sCS}, 16")
e(f"s_lshl_b32 s{sT2}, s{sS}, 8")
e(f"s_add_u32 s{sCS}, s{sCS}, s{sT2}")
e(f"s_add_u32 s{sCS}, s{sCS}, {WS_OP}")
e("v_lshlrev_b32 v173, 3, v17")
e(f"s_lshl_b32 s{sKQ}, s{sIDX}, 8")
e(f"s_add_u32 s{sKQ}, s{sKQ}, {WS_ST}")
srd(R_B, P_WUV, 512 * 8192)
e("v_lshlrev_b32 v174, 4, v5")
e("v_lshlrev_b32 v14, 5, v4")
e("v_xor_b32 v174, v174, v14")
e("v_lshl_add_u32 v174, v4, 13, v174")
e("v_xor_b32 v175, 128, v174")
e(f"s_lshl_b32 s{sT0}, s{sWAVE}, 12")
e(f"s_add_u32 s{sT0}, s{sT0}, {LA_WUV}")
e(f"v_add_u32 v176, s{sT0}, v6")
e("v_and_b32 v14, 1, v4")
e("v_lshl_or_b32 v14, v14, 2, v11")
e(f"v_xor_b32 v14, s{sWAVE}, v14")
e("v_lshlrev_b32 v14, 5, v14")
e("v_lshl_add_u32 v177, v4, 3, v11")
e("v_lshl_add_u32 v177, v177, 8, v14")
e(f"v_and_b32 v14, 3, v{vL}")
e("v_lshl_add_u32 v177, v14, 3, v177")
e(f"v_add_u32 v177, {LA_WUV}, v177")
if AOPT:
    e(f"v_and_b32 v178, 3, v{vL}")
    e("v_lshl_add_u32 v178, v178, 2, v4")
    e("v_lshlrev_b32 v178, 8, v178")
else:
    e(f"v_lshlrev_b32 v178, 8, v{vL}")
e("v_lshlrev_b32 v179, 8, v4")
e("v_lshl_add_u32 v179, v5, 4, v179")
e(f"v_and_b32 v14, 3, v{vL}")
e("v_lshl_add_u32 v14, v4, 2, v14")
e("v_lshl_add_u32 v14, v14, 2, v11")
e("v_lshlrev_b32 v180, 2, v14")
e(f"s_lshr_b32 s{sT0}, s{sWAVE}, 2")
e(f"s_lshl_b32 s{sT0}, s{sT0}, 8")
e(f"s_add_u32 s{sT0}, s{sT0}, {LA_CF}")
e(f"v_add_u32 v180, s{sT0}, v180")
e(f"s_and_b32 s{sT1}, s{sWAVE}, 3")
e(f"s_lshl_b32 s{sT1}, s{sT1}, 6")
e(f"s_add_u32 s{sT0}, s{sT0}, s{sT1}")
e("v_lshlrev_b32 v181, 4, v4")
e(f"v_add_u32 v181, s{sT0}, v181")
e(f"s_lshl_b32 s{sT0}, s{sWAVE}, 2")
e(f"v_add_u32 v14, s{sT0}, v4")
e("v_and_b32 v15, 15, v14")
e("v_xor_b32 v15, v15, v5")
e("v_lshlrev_b32 v15, 4, v15")
e("v_lshl_add_u32 v182, v14, 8, v15")
e(f"v_add_u32 v182, {LA_CX}, v182")
e("v_lshlrev_b32 v14, 8, v5")
e(f"v_add_u32 v14, {LA_CX}, v14")
for ks in range(4):
    e(f"v_add_u32 v15, {4*ks}, v4")
    e("v_xor_b32 v15, v15, v5")
    e(f"v_lshl_add_u32 v{184+ks}, v15, 4, v14")
e("v_lshlrev_b32 v188, 8, v9")
e("v_lshl_add_u32 v188, v5, 1, v188")
e(f"s_lshl_b32 s{sT0}, s{sWAVE}, 5")
e(f"s_add_u32 s{sT0}, s{sT0}, {LA_STG}")
e(f"v_add_u32 v188, s{sT0}, v188")
e("v_and_b32 v189, 511, v6")
e(f"v_add_u32 v189, {LA_STG}, v189")
e("v_lshlrev_b32 v190, 13, v4")
e("v_lshl_add_u32 v190, v5, 4, v190")
spin_init()
e(f"s_waitcnt vmcnt({16-GPOS})")
e("s_branch L_a_h2c")
lab("L_a_h2")
e("s_waitcnt vmcnt(0)")
lab("L_a_h2c")
if TS == 4:
    e(f"s_cmp_lg_u32 s{sSPIN}, 0")
    e("s_cbranch_scc1 L_a_h2x")
    ts(13)
    lab("L_a_h2x")
umax_chain(11, range(20, 36))
e("v_cmp_eq_u32 vcc, -1, v11")
e(f"v_cmp_eq_u32 s[{sEX}:{sEX+1}], 0, v7")
e("s_nop 1")
e(f"s_or_b64 s[{sEX}:{sEX+1}], vcc, s[{sEX}:{sEX+1}]")
e("s_cbranch_scc0 L_a_h2d")
e("s_sleep 2")
e(f"s_add_u32 s{sSPIN}, s{sSPIN}, 1")
e(f"s_cmp_ge_u32 s{sSPIN}, {SPIN_MAX}")
e("s_cbranch_scc1 L_a_h2d")
qa_gather()
e("s_branch L_a_h2")
lab("L_a_h2d")
ts(2)
if TS == 4:
    e("s_waitcnt lgkmcnt(0)")
    e(f"v_mov_b32 v8, s{sTSB+24}")
    e(f"v_mov_b32 v9, s{sTSB+26}")
    e(f"v_mov_b32 v10, s{sSPIN}")
    e(f"v_mov_b32 v11, s{sTSB+4}")
    e(f"s_lshl_b32 s{sT0}, s{sIDX}, 3")
    e(f"s_add_u32 s{sT0}, s{sT0}, s{sWAVE}")
    e(f"s_lshl_b32 s{sT0}, s{sT0}, 4")
    e(f"s_add_u32 s{sT0}, s{sT0}, {WS_TS + 0x10000}")
    e(f"s_mov_b64 s[{sEX}:{sEX+1}], exec")
    e("s_mov_b64 exec, 1")
    e(f"buffer_store_dwordx4 v[8:11], v3, s[{R_WS}:{R_WS+3}], s{sT0} offen")
    exec_restore()
    e("s_waitcnt vmcnt(0)")
for i in range(4):
    a = "v241" if (i & 1) == 0 else "v242"
    e(f"ds_write_b128 {a}, v[{20+4*i}:{23+4*i}] offset:{8192*i}")
e(f"s_lshl_b32 s{sT5}, s{sJQ}, 7")
e(f"s_lshl_b32 s{sT1}, s{sWAVE}, 4")
e(f"s_add_u32 s{sT5}, s{sT5}, s{sT1}")
e(f"s_lshl_b32 s{sT5}, s{sT5}, 13")
e(f"s_lshl_b32 s{sT1}, s{sH}, 8")
e(f"s_add_u32 s{sT5}, s{sT5}, s{sT1}")
e("s_waitcnt vmcnt(0) lgkmcnt(0)")
barrier()
ts(3)
for i in range(4):
    a = "v174" if (i >> 1) == 0 else "v175"
    if i:
        e(f"s_add_u32 s{sT5}, s{sT5}, {4*8192}")
    e(f"buffer_load_dwordx4 v[{224+4*i}:{227+4*i}], {a}, s[{R_B}:{R_B+3}], s{sT5} offen nt")
def ld_marker():
    e(f"s_cmp_lg_u32 s{sWAVE}, 7")
    e("s_cbranch_scc1 L_a_nold")
    e(f"s_lshl_b32 s{sT0}, s{sIDX}, 5")
    e(f"s_add_u32 s{sT0}, s{sT0}, {WS_LD}")
    e(f"s_mov_b64 s[{sEX}:{sEX+1}], exec")
    e("s_mov_b64 exec, 1")
    e(f"buffer_store_dword v3, v3, s[{R_WS}:{R_WS+3}], s{sT0} offen sc1")
    exec_restore()
    lab("L_a_nold")
if USE_LD == 1:
    ld_marker()
e(f"s_cmp_ge_u32 s{sWAVE}, 4")
e("s_cbranch_scc1 L_a_s_done")
DEPTH = 6
def s_read(ks):
    slot = ks % 8
    j, kk = ks >> 3, ks & 7
    e(f"ds_read_b128 v[{20+8*slot}:{23+8*slot}], v{200+kk} offset:{256*j}")
    e(f"ds_read_b128 v[{24+8*slot}:{27+8*slot}], v{208+kk} offset:{256*j}")
for ks in range(DEPTH):
    s_read(ks)
for ks in range(32):
    outstanding = min(DEPTH, 32 - ks)
    e(f"s_waitcnt lgkmcnt({2*(outstanding-1)})")
    slot = ks % 8
    cc = "0" if ks == 0 else "v[100:115]"
    e(f"v_mfma_f32_32x32x16_bf16 v[100:115], v[{20+8*slot}:{23+8*slot}], v[{24+8*slot}:{27+8*slot}], {cc}")
    if ks + DEPTH < 32:
        s_read(ks + DEPTH)
lab("L_a_s_done")
barrier()
ts(4)
e(f"s_cmp_ge_u32 s{sWAVE}, 4")
e("s_cbranch_scc1 L_a_mx_done")
e("s_nop 9")
e("v_max3_f32 v20, v100, v101, v102")
e("v_max3_f32 v21, v103, v104, v105")
e("v_max3_f32 v22, v106, v107, v108")
e("v_max3_f32 v23, v109, v110, v111")
e("v_max3_f32 v24, v112, v113, v114")
e("v_max3_f32 v20, v20, v21, v115")
e("v_max3_f32 v22, v22, v23, v24")
e("v_max_f32 v20, v20, v22")
e("v_mov_b32 v21, v20")
e("s_nop 1")
e("v_permlane32_swap_b32 v21, v20")
e("s_nop 0")
e("v_max_f32 v20, v20, v21")
e("ds_write_b32 v244, v20")
e("s_waitcnt lgkmcnt(0)")
lab("L_a_mx_done")
if USE_LD == 2:
    ld_marker()
barrier()
e(f"s_cmp_ge_u32 s{sWAVE}, 4")
e("s_cbranch_scc1 L_a_p_done")
e("ds_read_b128 v[24:27], v243")
e("s_waitcnt lgkmcnt(0)")
e("v_max3_f32 v247, v24, v25, v26")
e("v_max_f32 v247, v247, v27")
for i in range(16):
    e(f"v_sub_f32 v{100+i}, v{100+i}, v247")
    if i >= 1:
        e(f"v_exp_f32 v{100+i-1}, v{100+i-1}")
e("v_exp_f32 v115, v115")
for i in range(4):
    e(f"v_cvt_pk_bf16_f32 v{28+i}, v{100+2*i}, v{101+2*i}")
e("ds_write_b128 v245, v[28:31]")
for i in range(4, 8):
    e(f"v_cvt_pk_bf16_f32 v{28+i}, v{100+2*i}, v{101+2*i}")
e("ds_write_b128 v245, v[32:35] offset:1024")
e("s_waitcnt lgkmcnt(0)")
lab("L_a_p_done")
barrier()
ts(5)
def pv_read(kk):
    base = 64 + 8 * (kk % 4)
    hi = kk >> 2
    off = (kk & 3) * 16384
    e(f"ds_read_b128 v[{32+4*kk}:{35+4*kk}], v246 offset:{1024*kk}")
    for ct in range(2):
        for rd in range(2):
            r = base + 4 * ct + 2 * rd
            e(f"ds_read_b64_tr_b16 v[{r}:{r+1}], v{216+4*ct+2*rd+hi} offset:{off}")
PD = 3
for kk in range(PD):
    pv_read(kk)
for i in range(8):
    e(f"v_add_f32 v{20+i}, v{100+2*i}, v{101+2*i}")
for i in range(4):
    e(f"v_add_f32 v{20+i}, v{20+2*i}, v{21+2*i}")
e("v_add_f32 v20, v20, v21")
e("v_add_f32 v22, v22, v23")
e("v_add_f32 v20, v20, v22")
e("v_mov_b32 v21, v20")
e("s_nop 1")
e("v_permlane32_swap_b32 v21, v20")
e("s_nop 0")
e("v_add_f32 v248, v20, v21")
for kk in range(8):
    outstanding = min(PD, 8 - kk)
    e(f"s_waitcnt lgkmcnt({5*(outstanding-1)})")
    base = 64 + 8 * (kk % 4)
    for ct in range(2):
        d = 100 + 16 * ct
        cc = "0" if kk == 0 else f"v[{d}:{d+15}]"
        e(f"v_mfma_f32_32x32x16_bf16 v[{d}:{d+15}], v[{base+4*ct}:{base+4*ct+3}], v[{32+4*kk}:{35+4*kk}], {cc}")
    if kk + PD < 8:
        pv_read(kk + PD)
e(f"s_cmp_ge_u32 s{sWAVE}, 4")
e("s_cbranch_scc1 L_a_ls_done")
e(f"ds_write_b32 v244, v248 offset:{LA_LS - LA_MX}")
lab("L_a_ls_done")
barrier()
ts(6)
e("s_nop 7")
for ct in range(2):
    for i4 in range(4):
        d = 100 + 16 * ct + 4 * i4
        t = 20 + 2 * (4 * ct + i4)
        e(f"v_cvt_pk_bf16_f32 v{t}, v{d}, v{d+1}")
        e(f"v_cvt_pk_bf16_f32 v{t+1}, v{d+2}, v{d+3}")
        e(f"ds_write_b64 v{160+4*ct+i4}, v[{t}:{t+1}] offset:{LA_O}")
e("s_waitcnt lgkmcnt(0)")
barrier()
for i in range(4):
    e(f"ds_read_b128 v[{40+4*i}:{43+4*i}], v{168+i} offset:{LA_O}")
e(f"ds_read_b128 v[24:27], v243 offset:{LA_LS - LA_MX}")
for i in range(4):
    e(f"s_waitcnt lgkmcnt({4-i})")
    if i:
        e(f"s_add_u32 s{sCS}, s{sCS}, 65536")
    e(f"buffer_store_dwordx4 v[{40+4*i}:{43+4*i}], v172, s[{R_WS}:{R_WS+3}], s{sCS} offen sc1")
ts(7)
e("s_waitcnt vmcnt(4)")
for i in range(4):
    e(f"ds_write_b128 v176, v[{224+4*i}:{227+4*i}] offset:{1024*i}")
e("v_add_f32 v24, v24, v25")
e("v_add_f32 v26, v26, v27")
e("v_add_f32 v25, v24, v26")
e("v_min_u32 v24, -2, v247")
e("v_min_u32 v25, -2, v25")
e(f"v_cmp_gt_u32 vcc, 32, v{vL}")
e("s_waitcnt vmcnt(0) lgkmcnt(0)")
barrier()
ts(8)
e(f"s_cmp_lg_u32 s{sWAVE}, 0")
e("s_cbranch_scc1 L_a_st_done")
exec_save_and()
e(f"buffer_store_dwordx2 v[24:25], v173, s[{R_WS}:{R_WS+3}], s{sKQ} offen sc1")
exec_restore()
lab("L_a_st_done")
for ks in range(4):
    e(f"ds_read_b64_tr_b16 v[{100+4*ks}:{101+4*ks}], v177 offset:{ks*8192}")
    e(f"ds_read_b64_tr_b16 v[{102+4*ks}:{103+4*ks}], v177 offset:{ks*8192 + 1024}")
e(f"s_lshr_b32 s{sT0}, s{sWAVE}, 2")
e(f"s_lshl_b32 s{sA0}, s{sT0}, 14")
e(f"s_lshl_b32 s{sT1}, s{sH}, 3")
e(f"s_add_u32 s{sA0}, s{sA0}, s{sT1}")
e(f"s_add_u32 s{sA0}, s{sA0}, {WS_ST}")
e(f"s_lshl_b32 s{sA1}, s{sT0}, 5")
e(f"s_add_u32 s{sA1}, s{sA1}, s{sH}")
e(f"s_lshl_b32 s{sA1}, s{sA1}, 2")
e(f"s_add_u32 s{sA1}, s{sA1}, s{sJQ}")
e(f"s_lshl_b32 s{sA1}, s{sA1}, 6")
e(f"s_and_b32 s{sT3}, s{sWAVE}, 3")
e(f"s_lshl_b32 s{sT1}, s{sT3}, 4")
e(f"s_add_u32 s{sA1}, s{sA1}, s{sT1}")
e(f"s_lshl_b32 s{sA1}, s{sA1}, 8")
e(f"s_add_u32 s{sA1}, s{sA1}, {WS_OP}")
e(f"s_lshl_b32 s{sA2}, s{sJQ}, 14")
e(f"s_lshl_b32 s{sT1}, s{sH}, 8")
e(f"s_add_u32 s{sA2}, s{sA2}, s{sT1}")
e(f"s_add_u32 s{sA2}, s{sA2}, {WS_CP}")
if AOPT:
    e(f"s_lshl_b32 s{sT1}, s{sT3}, 12")
    e(f"s_add_u32 s{sA0}, s{sA0}, s{sT1}")
    e(f"s_lshl_b32 s{sT1}, s{sWAVE}, 3")
    e(f"s_add_u32 s{sT1}, s{sT1}, {LA_CF}")
    e(f"v_mov_b32 v180, s{sT1}")
    e(f"s_lshr_b32 s{sT1}, s{sWAVE}, 2")
    e(f"s_lshl_b32 s{sT1}, s{sT1}, 5")
    e(f"s_add_u32 s{sT1}, s{sT1}, {LA_CF}")
    e(f"v_mov_b32 v181, s{sT1}")
    spin_init()
    lab("L_a_h3")
    e(f"buffer_load_dwordx2 v[14:15], v178, s[{R_WS}:{R_WS+3}], s{sA0} offen sc1")
    e("s_waitcnt vmcnt(0)")
    e("v_max_u32 v11, v14, v15")
    e("v_cmp_eq_u32 vcc, -1, v11")
    spin_retry_if_vcc("L_a_h3", "L_a_h3d", 1)
    lab("L_a_h3d")
    ts(9)
    for i in range(4):
        e(f"buffer_load_dwordx4 v[{20+4*i}:{23+4*i}], v179, s[{R_WS}:{R_WS+3}], s{sA1} offen offset:{1024*i} sc1")
    def red16(op, v, t):
        for pat in ("quad_perm:[1,0,3,2]", "quad_perm:[2,3,0,1]"):
            e("s_nop 1")
            e(f"v_{op}_f32_dpp v{v}, v{v}, v{v} {pat} row_mask:0xf bank_mask:0xf")
        e(f"v_mov_b32 v{t}, v{v}")
        e("s_nop 1")
        e(f"v_permlane16_swap_b32 v{t}, v{v}")
        e("s_nop 0")
        e(f"v_{op}_f32 v{v}, v{v}, v{t}")
        e(f"v_mov_b32 v{t}, v{v}")
        e("s_nop 1")
        e(f"v_permlane32_swap_b32 v{t}, v{v}")
        e("s_nop 0")
        e(f"v_{op}_f32 v{v}, v{v}, v{t}")
    e("v_mov_b32 v16, v14")
    red16("max", 16, 17)
    e("v_sub_f32 v18, v14, v16")
    e("v_exp_f32 v18, v18")
    e("s_nop 0")
    e("v_mul_f32 v17, v18, v15")
    red16("add", 17, 19)
    e("ds_write_b64 v180, v[16:17]")
    e("s_nop 0")
    for i in range(4):
        e(f"v_mov_b32_dpp v{40+i}, v18 quad_perm:[{i},{i},{i},{i}] row_mask:0xf bank_mask:0xf")
    for i in range(4):
        e(f"s_waitcnt vmcnt({3-i})")
        for j in range(4):
            src = 20 + 4 * i + j
            e(f"v_lshlrev_b32 v{44+2*j}, 16, v{src}")
            e(f"v_and_b32 v{45+2*j}, 0xffff0000, v{src}")
        for j in range(8):
            if i == 0:
                e(f"v_mul_f32 v{52+j}, v{40+i}, v{44+j}")
            else:
                e(f"v_fmac_f32 v{52+j}, v{40+i}, v{44+j}")
    e("s_waitcnt lgkmcnt(0)")
    barrier()
    e("ds_read_b128 v[40:43], v181")
    e("ds_read_b128 v[44:47], v181 offset:16")
    e("s_waitcnt lgkmcnt(0)")
    e("v_max3_f32 v18, v40, v42, v44")
    e("v_max_f32 v18, v18, v46")
    e("v_sub_f32 v40, v40, v18")
    e("v_sub_f32 v42, v42, v18")
    e("v_sub_f32 v44, v44, v18")
    e("v_sub_f32 v46, v46, v18")
    e("v_sub_f32 v16, v16, v18")
    e("v_exp_f32 v40, v40")
    e("v_exp_f32 v42, v42")
    e("v_exp_f32 v44, v44")
    e("v_exp_f32 v46, v46")
    e("v_exp_f32 v16, v16")
    e("v_mul_f32 v41, v40, v41")
    e("v_mul_f32 v45, v44, v45")
    e("v_fmac_f32 v41, v42, v43")
    e("v_fmac_f32 v45, v46, v47")
    e("v_add_f32 v41, v41, v45")
    e("v_rcp_f32 v41, v41")
    e("s_nop 0")
    e("v_mul_f32 v16, v16, v41")
    for j in range(8):
        e(f"v_mul_f32 v{52+j}, v16, v{52+j}")
else:
    e(f"s_cmp_lg_u32 s{sT3}, 1")
    e("s_cbranch_scc1 L_a_h3d")
    spin_init()
    lab("L_a_h3")
    e(f"buffer_load_dwordx2 v[14:15], v178, s[{R_WS}:{R_WS+3}], s{sA0} offen sc1")
    e("s_waitcnt vmcnt(0)")
    e("v_max_u32 v11, v14, v15")
    e("v_cmp_eq_u32 vcc, -1, v11")
    spin_retry_if_vcc("L_a_h3", "L_a_h3d", 1)
    lab("L_a_h3d")
    barrier()
    ts(9)
    for i in range(4):
        e(f"buffer_load_dwordx4 v[{20+4*i}:{23+4*i}], v179, s[{R_WS}:{R_WS+3}], s{sA1} offen offset:{1024*i} sc1")
    e(f"s_cmp_lg_u32 s{sT3}, 1")
    e("s_cbranch_scc1 L_a_cf_done")
    e("v_mov_b32 v16, v14")
    allreduce("max", 16, 17)
    e("v_sub_f32 v16, v14, v16")
    e("v_exp_f32 v16, v16")
    e("s_nop 0")
    e("v_mul_f32 v18, v16, v15")
    allreduce("add", 18, 17)
    e("v_rcp_f32 v18, v18")
    e("s_nop 0")
    e("v_mul_f32 v16, v16, v18")
    e("ds_write_b32 v180, v16")
    e("s_waitcnt lgkmcnt(0)")
    lab("L_a_cf_done")
    barrier()
    e("ds_read_b128 v[40:43], v181")
    e("s_waitcnt lgkmcnt(0)")
    for i in range(4):
        e(f"s_waitcnt vmcnt({3-i})")
        for j in range(4):
            src = 20 + 4 * i + j
            e(f"v_lshlrev_b32 v{44+2*j}, 16, v{src}")
            e(f"v_and_b32 v{45+2*j}, 0xffff0000, v{src}")
        for j in range(8):
            if i == 0:
                e(f"v_mul_f32 v{52+j}, v{40+i}, v{44+j}")
            else:
                e(f"v_fmac_f32 v{52+j}, v{40+i}, v{44+j}")

for j in range(4):
    e(f"v_cvt_pk_bf16_f32 v{60+j}, v{52+2*j}, v{53+2*j}")
e("ds_write_b128 v182, v[60:63]")
e("s_waitcnt lgkmcnt(0)")
barrier()
ts(10)
for ks in range(4):
    e(f"ds_read_b128 v[{20+8*ks}:{23+8*ks}], v{184+ks}")
    e(f"ds_read_b128 v[{24+8*ks}:{27+8*ks}], v{184+ks} offset:4096")
for ks in range(4):
    e(f"s_waitcnt lgkmcnt({2*(3-ks)})")
    c0 = "0" if ks == 0 else "v[60:63]"
    c1 = "0" if ks == 0 else "v[64:67]"
    e(f"v_mfma_f32_16x16x32_bf16 v[60:63], v[{20+8*ks}:{23+8*ks}], v[{100+4*ks}:{103+4*ks}], {c0}")
    e(f"v_mfma_f32_16x16x32_bf16 v[64:67], v[{24+8*ks}:{27+8*ks}], v[{100+4*ks}:{103+4*ks}], {c1}")
e(f"v_cmp_gt_u32 vcc, 32, v{vL}")
e("s_nop 6")
e("v_add_f32 v60, v60, v61")
e("v_add_f32 v62, v62, v63")
e("v_add_f32 v64, v64, v65")
e("v_add_f32 v66, v66, v67")
e("v_add_f32 v60, v60, v62")
e("v_add_f32 v64, v64, v66")
e("s_nop 1")
e("v_permlane32_swap_b32 v60, v64")
e("s_nop 0")
e("v_add_f32 v60, v60, v64")
e("v_mov_b32 v61, v60")
e("s_nop 1")
e("v_permlane16_swap_b32 v61, v60")
e("s_nop 0")
e("v_add_f32 v60, v60, v61")
e("v_cvt_pk_bf16_f32 v60, v60, v60")
e("ds_write_b16 v188, v60")
e("s_waitcnt lgkmcnt(0)")
barrier()
e(f"s_cmp_lg_u32 s{sWAVE}, 0")
e("s_cbranch_scc1 L_a_fin")
e("ds_read_b128 v[60:63], v189")
e("s_waitcnt lgkmcnt(0)")
for i in range(4):
    e(f"v_min_u32 v{60+i}, -2, v{60+i}")
exec_save_and()
e(f"buffer_store_dwordx4 v[60:63], v190, s[{R_WS}:{R_WS+3}], s{sA2} offen sc1")
exec_restore()
lab("L_a_fin")
ts_flush(12)
lab("L_end")
e("s_endpgm")
lab("L_code_end")

tail = [
    '.section .rodata,"a"',
    ".p2align 6",
    f".amdhsa_kernel {NAME}_kernel",
    "  .amdhsa_next_free_vgpr 256",
    "  .amdhsa_next_free_sgpr 102",
    "  .amdhsa_accum_offset 256",
    "  .amdhsa_group_segment_fixed_size 0",
    "  .amdhsa_kernarg_size 104",
    "  .amdhsa_user_sgpr_count 2",
    "  .amdhsa_user_sgpr_kernarg_segment_ptr 1",
    "  .amdhsa_system_sgpr_workgroup_id_x 1",
    ".end_amdhsa_kernel",
]
open(OUT, "w").write("\n".join(head + L + tail) + "\n")
print("wrote", OUT, len(L), "lines")
```

```python
import sys

NAME = "sequential_preLN__compressed_kv_cla__glu_gated_swiglu__decode"
TS = int(sys.argv[2]) if len(sys.argv) > 2 else 0
OUT = sys.argv[1] if len(sys.argv) > 1 else f"cdna_kernels/{NAME}.s"

WS_QP = 0x00000
WS_QA = 0x10000
WS_ST = 0x20000
WS_CP = 0x28000
WS_HP = 0x38000
WS_ACT = 0x3D000
GOPT = int(sys.argv[8]) if len(sys.argv) > 8 else 0
PSLEEP = 0
ROT = 0
OPTV = int(sys.argv[15]) if len(sys.argv) > 15 else 1
OPTA = int(sys.argv[13]) if len(sys.argv) > 13 else 1
OPTB = int(sys.argv[14]) if len(sys.argv) > 14 else 1
RMAP = int(sys.argv[12]) if len(sys.argv) > 12 else 1
TOUCH = int(sys.argv[11]) if len(sys.argv) > 11 else 1
GPOS = int(sys.argv[10]) if len(sys.argv) > 10 else 16
AOPT = int(sys.argv[9]) if len(sys.argv) > 9 else 1
DOUBLE = int(sys.argv[7]) if len(sys.argv) > 7 else 0
CODEPF = int(sys.argv[6]) if len(sys.argv) > 6 else 1
T5MAP = int(sys.argv[5]) if len(sys.argv) > 5 else 1
WS_LD = 0x3F000
NF = int(sys.argv[3]) if len(sys.argv) > 3 else 4
USE_LD = int(sys.argv[4]) if len(sys.argv) > 4 else 1
NCLR = 32
WS_OP = 0x100000
WS_TS = 0x800000
WS_SIZE = 0x10000000
SPIN_MAX = 40000

import struct
def fl(x):
    return '0x%08x' % struct.unpack('<I', struct.pack('<f', x))[0]
L = []
def e(s):
    L.append("    " + s)
def lab(s):
    L.append(s + ":")
def c(s):
    L.append("    ; " + s)

_uid = [0]
def uid(p):
    _uid[0] += 1
    return f"{p}_{_uid[0]}"

sWAVE = 3
sIDX = 4
sH = 5
sJQ = 6
sT0 = 7
P_X, P_CKV, P_WQ, P_WUK, P_WUV, P_WO, P_BX, P_W1, P_W3, P_W2, P_OUT, P_DBG, P_WS = [8 + 2 * i for i in range(13)]
sSPIN = 34
sT1 = 35
R_WS = 36
R_A = 40
R_B = 44
R_C = 48
R_DBG = 52
sT2, sT3, sT4, sT5 = 56, 57, 58, 59
sEX = 60
sB = 62
sS = 63
sCS = 64
sKQ = 65
sTSB = 70

def srd(r, p, nbytes):
    e(f"s_mov_b32 s{r}, s{p}")
    e(f"s_and_b32 s{r+1}, s{p+1}, 0xffff")
    e(f"s_mov_b32 s{r+2}, {nbytes:#x}")
    e(f"s_mov_b32 s{r+3}, 0x00020000")

_tsn = [0]
def ts(i):
    if TS:
        e(f"s_memrealtime s[{sTSB+2*i}:{sTSB+2*i+1}]")
    if DOUBLE and i == DOUBLE:
        e("s_memrealtime s[90:91]")

def ts_flush(nslots):
    if not TS:
        return
    if TS == 3:
        l1 = uid("L_tsf")
        e("s_waitcnt lgkmcnt(0)")
        e(f"s_cmp_lg_u32 s{sWAVE}, 0")
        e(f"s_cbranch_scc1 {l1}")
        l2 = uid("L_tsg")
        e("s_cmp_eq_u32 s2, 94")
        e(f"s_cbranch_scc1 {l2}")
        e("s_cmp_lg_u32 s2, 200")
        e(f"s_cbranch_scc1 {l1}")
        lab(l2)
        e("v_mov_b32 v250, 0")
        e("s_cmp_eq_u32 s2, 94")
        e(f"s_cselect_b32 s{sT1}, 4, 32")
        for k, (a, b) in enumerate(zip([1, 2, 4, 5, 6, 10, 11, 11], [1, 2, 3, 6, 8, 9, 10, 11])):
            e("s_cmp_eq_u32 s2, 94")
            e(f"s_cselect_b32 s{sT0}, s{sTSB+2*a}, s{sTSB+2*b}")
            e(f"s_sub_u32 s{sT0}, s{sT0}, s{sTSB}")
            e(f"v_mov_b32 v251, s{sT0}")
            e(f"s_mov_b64 s[{sEX}:{sEX+1}], exec")
            e("s_mov_b64 exec, 1")
            if k == 7:
                e("s_cmp_eq_u32 s2, 94")
                e(f"s_cselect_b32 s{sT1}, 28, s{sT1}")
            e(f"buffer_store_dword v251, v250, s[{R_DBG}:{R_DBG+3}], s{sT1} offen")
            e(f"s_mov_b64 exec, s[{sEX}:{sEX+1}]")
            e(f"s_add_u32 s{sT1}, s{sT1}, 4")
        lab(l1)
        return
    l1 = uid("L_tsf")
    e("s_waitcnt lgkmcnt(0)")
    e(f"s_cmp_lg_u32 s{sWAVE}, 0")
    e(f"s_cbranch_scc1 {l1}")
    e("v_mov_b32 v250, 0")
    for i in range(nslots):
        e(f"v_mov_b32 v251, s{sTSB+2*i}")
        e(f"s_lshl_b32 s{sT0}, s2, 6")
        e(f"s_add_u32 s{sT0}, s{sT0}, {WS_TS + 4*i:#x}")
        e(f"s_mov_b64 s[{sEX}:{sEX+1}], exec")
        e("s_mov_b64 exec, 1")
        e(f"buffer_store_dword v251, v250, s[{R_WS}:{R_WS+3}], s{sT0} offen")
        e(f"s_mov_b64 exec, s[{sEX}:{sEX+1}]")
        e("s_nop 1")
    lab(l1)

def allreduce(op, v, t):
    for pat in ("quad_perm:[1,0,3,2]", "quad_perm:[2,3,0,1]", "row_half_mirror", "row_mirror"):
        e("s_nop 1")
        e(f"v_{op}_f32_dpp v{v}, v{v}, v{v} {pat} row_mask:0xf bank_mask:0xf")
    e(f"v_mov_b32 v{t}, v{v}")
    e("s_nop 1")
    e(f"v_permlane16_swap_b32 v{t}, v{v}")
    e("s_nop 0")
    e(f"v_{op}_f32 v{v}, v{v}, v{t}")
    e(f"v_mov_b32 v{t}, v{v}")
    e("s_nop 1")
    e(f"v_permlane32_swap_b32 v{t}, v{v}")
    e("s_nop 0")
    e(f"v_{op}_f32 v{v}, v{v}, v{t}")

def umax_chain(dst, regs):
    regs = list(regs)
    e(f"v_max3_u32 v{dst}, v{regs[0]}, v{regs[1]}, v{regs[2]}")
    i = 3
    while i < len(regs):
        if i + 1 < len(regs):
            e(f"v_max3_u32 v{dst}, v{dst}, v{regs[i]}, v{regs[i+1]}")
            i += 2
        else:
            e(f"v_max_u32 v{dst}, v{dst}, v{regs[i]}")
            i += 1

def spin_init():
    e(f"s_mov_b32 s{sSPIN}, 0")

def spin_retry_if_vcc(top, done, sleep=0):
    e(f"s_cbranch_vccz {done}")
    if sleep:
        e(f"s_sleep {sleep}")
    e(f"s_add_u32 s{sSPIN}, s{sSPIN}, 1")
    e(f"s_cmp_lt_u32 s{sSPIN}, {SPIN_MAX}")
    e(f"s_cbranch_scc1 {top}")

def barrier():
    e("s_barrier")

vL = 2

hdr = open(f"cdna_kernels/{NAME}.s.ref").read().split("\n")
head = []
for line in hdr:
    if line.startswith("; @launch"):
        head.append("; @launch grid=(256,1,1) block=(512,1,1) lds=163840")
        break
    head.append(line)
head += [
    '.amdgcn_target "amdgcn-amd-amdhsa--gfx950"',
    ".text",
    f".globl {NAME}_kernel",
    ".p2align 8",
    f".type {NAME}_kernel,@function",
    f"{NAME}_kernel:",
]

e("s_cmp_ge_u32 s2, 256")
e("s_cbranch_scc1 L_end")
ts(0)
if DOUBLE:
    e("s_memrealtime s[96:97]")
e("s_load_dwordx16 s[8:23], s[0:1], 0")
e("s_load_dwordx8 s[24:31], s[0:1], 64")
e("s_load_dwordx2 s[32:33], s[0:1], 96")
e("v_lshrrev_b32 v1, 6, v0")
e(f"v_and_b32 v{vL}, 63, v0")
e(f"v_readfirstlane_b32 s{sWAVE}, v1")
e("v_mov_b32 v3, 0")
e("s_waitcnt lgkmcnt(0)")
e(f"s_load_dword s101, s[{P_DBG}:{P_DBG+1}], 64")
srd(R_WS, P_WS, WS_SIZE)
srd(R_DBG, P_DBG, 256)
if RMAP:
    e(f"s_lshr_b32 s{sT0}, s2, 6")
    e(f"s_lshl_b32 s{sT0}, s{sT0}, 5")
    e(f"s_and_b32 s{sT1}, s2, 31")
    e(f"s_or_b32 s{sT0}, s{sT0}, s{sT1}")
    e(f"s_not_b32 s{sT1}, s2")
    e(f"s_and_b32 s{sT1}, s{sT1}, 32")
    e(f"s_lshl_b32 s{sT1}, s{sT1}, 2")
    e(f"s_or_b32 s2, s{sT0}, s{sT1}")
e("s_cmp_ge_u32 s2, 128")
e("s_cbranch_scc1 L_arole")


LW_WQ = 0
LW_XN = 40960
LW_STG = 43520
LW_RED = 131072
LW_H = 135168
LW_STAT = 139264
sA0, sA1, sA2, sA3 = 66, 67, 68, 69

def exec_save_and(mask="vcc"):
    e(f"s_and_saveexec_b64 s[{sEX}:{sEX+1}], {mask}")
def exec_restore():
    e(f"s_mov_b64 exec, s[{sEX}:{sEX+1}]")

c("================= W role =================")
LW_WUK = 49152
LW_QPL = 81920
e(f"s_mov_b32 s{sIDX}, s2")
e(f"s_and_b32 s{sH}, s2, 31")
e(f"s_lshr_b32 s{sJQ}, s2, 5")
e(f"v_lshrrev_b32 v4, 4, v{vL}")
e(f"v_and_b32 v5, 15, v{vL}")
if CODEPF:
    e(f"s_sub_u32 s{sT0}, s{sIDX}, 32")
    e(f"s_cmp_ge_u32 s{sT0}, 16")
    e("s_cbranch_scc1 L_w_nopf")
    e(f"s_getpc_b64 s[{sT2}:{sT3}]")
    lab("L_pc_ref")
    e(f"s_sub_u32 s{sT2}, s{sT2}, L_pc_ref-{NAME}_kernel")
    e(f"s_subb_u32 s{sT3}, s{sT3}, 0")
    e("v_lshlrev_b32 v6, 4, v0")
    for j in range(3):
        if j:
            e("v_add_u32 v6, 0x2000, v6")
        e(f"v_min_u32 v7, L_code_end-{NAME}_kernel-16, v6")
        e(f"global_load_dwordx4 v[{232+4*j}:{235+4*j}], v7, s[{sT2}:{sT3}]")
    lab("L_w_nopf")
if TOUCH >= 2:
    e(f"s_sub_u32 s{sT0}, s{sIDX}, 32")
    e(f"s_cmp_ge_u32 s{sT0}, 16")
    e("s_cbranch_scc1 L_w_notouch")
    e(f"v_lshlrev_b32 v6, 18, v{vL}")
    tl = [[(P_CKV, 2*8192*1024)], [(P_WUV, 512*8192), (P_OUT, 2560)], [(P_WO, 4096*1280), (P_X, 2560)], [(P_W1, 640*3456)],
          [(P_W3, 640*3456)], [(P_W2, 1728*1280)], [(P_WS, 0x600000)], [(P_WQ, 640*8192)]]
    for wv, lst in enumerate(tl):
        l1 = uid("L_tw")
        e(f"s_cmp_lg_u32 s{sWAVE}, {wv}")
        e(f"s_cbranch_scc1 {l1}")
        for k, (p, n) in enumerate(lst):
            srd(R_A, p, n)
            e(f"buffer_load_dword v{232+k}, v6, s[{R_A}:{R_A+3}], 0 offen" + (" sc1" if p == P_WS else ""))
        lab(l1)
    lab("L_w_notouch")
e(f"s_cmp_ge_u32 s{sIDX}, {NCLR}")
e("s_cbranch_scc1 L_w_noclr")
e("v_lshlrev_b32 v6, 4, v0")
for j in range(4):
    e(f"v_mov_b32 v{8+j}, -1")
e(f"s_lshl_b32 s{sT0}, s{sIDX}, 13")
e(f"s_cmp_ge_u32 s{sIDX}, 8")
e("s_cbranch_scc1 L_w_clr_lin")
e("v_and_b32 v6, 0x7ff, v6")
e(f"s_lshr_b32 s{sT1}, s{sWAVE}, 1")
e(f"s_lshl_b32 s{sT1}, s{sT1}, 14")
e(f"s_lshl_b32 s{sT0}, s{sIDX}, 11")
e(f"s_add_u32 s{sT0}, s{sT0}, s{sT1}")
lab("L_w_clr_lin")
e(f"buffer_store_dwordx4 v[8:11], v6, s[{R_WS}:{R_WS+3}], s{sT0} offen sc1")
barrier()
lab("L_w_noclr")
srd(R_C, P_WUK, 512 * 8192)
e("v_xor_b32 v228, v5, v4")
e("v_lshlrev_b32 v228, 4, v228")
e("v_lshl_add_u32 v228, v4, 13, v228")
e(f"s_lshl_b32 s{sA1}, s{sJQ}, 7")
e(f"s_lshl_b32 s{sT1}, s{sWAVE}, 4")
e(f"s_add_u32 s{sA1}, s{sA1}, s{sT1}")
e(f"s_lshl_b32 s{sA1}, s{sA1}, 13")
e(f"s_lshl_b32 s{sT1}, s{sH}, 8")
e(f"s_add_u32 s{sA1}, s{sA1}, s{sT1}")
e(f"s_lshl_b32 s{sT1}, s{sWAVE}, 12")
for i in range(4):
    e(f"v_xor_b32 v18, {64*i}, v228")
    e(f"s_add_u32 m0, s{sT1}, {LW_WUK + 1024*i}")
    e(f"s_add_u32 s{sT4}, s{sA1}, {4*8192*i}")
    e(f"buffer_load_dwordx4 v18, s[{R_C}:{R_C+3}], s{sT4} offen nt lds")
ts(1)
e(f"s_cmp_ge_u32 s{sIDX}, {NCLR}")
e("s_cbranch_scc1 L_w_noclr2")
e("s_waitcnt vmcnt(4)")
ts(3)
barrier()
ts(8)
e(f"s_cmp_lg_u32 s{sWAVE}, 0")
e("s_cbranch_scc1 L_w_noclr2")
e(f"s_mov_b32 s{sT0}, 1")
e(f"s_cmp_ge_u32 s{sIDX}, 8")
e("s_cbranch_scc1 L_w_clr_b")
e(f"s_lshl_b32 s{sT1}, s{sIDX}, 2")
e(f"s_add_u32 s{sT1}, s{sT1}, 132")
e(f"s_atomic_add s{sT0}, s[{P_DBG}:{P_DBG+1}], s{sT1}")
e("s_branch L_w_noclr2")
lab("L_w_clr_b")
e(f"s_atomic_add s{sT0}, s[{P_DBG}:{P_DBG+1}], 4 glc")
e("s_waitcnt lgkmcnt(0)")
ts(9)
e(f"s_cmp_lg_u32 s{sT0}, {NCLR-9}")
e("s_cbranch_scc1 L_w_noclr2")
e(f"s_movk_i32 s{sT0}, 0x100")
e(f"s_atomic_add s{sT0}, s[{P_DBG}:{P_DBG+1}], 128")
lab("L_w_noclr2")
e(f"v_bfe_u32 v200, v{vL}, 2, 2")
e(f"v_and_b32 v201, 3, v{vL}")
e("v_lshl_add_u32 v202, v4, 3, v200")
e(f"v_lshlrev_b32 v204, 4, v{vL}")
e("v_and_b32 v208, 511, v204")
e(f"s_lshl_b32 s{sA2}, s{sH}, 11")
e("v_lshlrev_b32 v10, 1, v4")
e("v_xor_b32 v10, v10, v5")
e("v_lshlrev_b32 v10, 4, v10")
e("v_lshl_add_u32 v205, v4, 8, v10")
e(f"v_add_u32 v205, {LW_QPL}, v205")
e("v_xor_b32 v219, 128, v205")
e(f"v_bfe_u32 v11, v{vL}, 2, 1")
e("v_lshl_add_u32 v206, v201, 1, v11")
e("v_lshlrev_b32 v10, 1, v206")
e("v_lshlrev_b32 v11, 8, v206")
e(f"v_add_u32 v11, {LW_QPL}, v11")
for ks in range(4):
    e(f"v_add_u32 v12, {4*ks}, v4")
    e("v_xor_b32 v12, v12, v10")
    e(f"v_lshl_add_u32 v{220+ks}, v12, 4, v11")
e("v_lshlrev_b32 v11, 8, v5")
e(f"s_lshl_b32 s{sT1}, s{sWAVE}, 12")
e(f"s_add_u32 s{sT1}, s{sT1}, {LW_WUK}")
e(f"v_add_u32 v11, s{sT1}, v11")
for ks in range(4):
    e(f"v_add_u32 v12, {4*ks}, v4")
    e("v_xor_b32 v12, v12, v5")
    e(f"v_lshl_add_u32 v{224+ks}, v12, 4, v11")
e("v_lshlrev_b32 v207, 8, v4")
e("v_lshl_add_u32 v207, v5, 1, v207")
e(f"s_lshl_b32 s{sT0}, s{sWAVE}, 5")
e(f"v_add_u32 v207, s{sT0}, v207")
e("v_lshlrev_b32 v209, 15, v4")
e("v_lshl_add_u32 v209, v5, 4, v209")
e(f"s_lshl_b32 s{sA3}, s{sH}, 10")
e(f"s_lshl_b32 s{sT1}, s{sJQ}, 8")
e(f"s_add_u32 s{sA3}, s{sA3}, s{sT1}")
e(f"s_add_u32 s{sA3}, s{sA3}, {WS_QA}")
e("s_waitcnt vmcnt(0)")
ts(2)
for ks in range(4):
    e(f"ds_read_b128 v[{20+4*ks}:{23+4*ks}], v{224+ks}")
e(f"s_cmp_lg_u32 s{sWAVE}, 7")
e("s_cbranch_scc1 L_w_notcomm")
e(f"s_and_b32 s{sT0}, s{sH}, 7")
e(f"s_lshl_b32 s{sT0}, s{sT0}, 2")
spin_init()
lab("L_w_poll")
e(f"buffer_load_dword v10, v3, s[{R_DBG}:{R_DBG+3}], s{sT0} offen offset:132 sc1")
e("s_waitcnt vmcnt(0)")
e("v_cmp_eq_u32 vcc, 0, v10")
spin_retry_if_vcc("L_w_poll", "L_w_polld", 2)
lab("L_w_polld")
spin_init()
lab("L_w_h1")
e(f"buffer_load_dwordx4 v[40:43], v204, s[{R_WS}:{R_WS+3}], s{sA2} offen sc1")
e(f"buffer_load_dwordx4 v[44:47], v204, s[{R_WS}:{R_WS+3}], s{sA2} offen offset:1024 sc1")
e(f"buffer_load_dword v10, v3, s[{R_DBG}:{R_DBG+3}], 0 offen offset:128 sc1")
e("s_waitcnt vmcnt(0)")
umax_chain(11, range(40, 48))
e("v_add_u32 v10, -1, v10")
e("v_max_u32 v11, v11, v10")
e("v_cmp_eq_u32 vcc, -1, v11")
spin_retry_if_vcc("L_w_h1", "L_w_h1d", 0)
lab("L_w_h1d")
e("ds_write_b128 v205, v[40:43]")
e("ds_write_b128 v219, v[44:47] offset:1024")
lab("L_w_notcomm")
e(f"v_cmp_gt_u32 vcc, 32, v{vL}")
e("s_waitcnt lgkmcnt(0)")
barrier()
ts(4)
for ks in range(4):
    e(f"ds_read_b128 v[{40+4*ks}:{43+4*ks}], v{220+ks}")
SCALE = (128 ** -0.5) * 1.4426950408889634
e(f"s_mov_b32 s{sT1}, {fl(SCALE)}")
for ks in range(4):
    e(f"s_waitcnt lgkmcnt({3-ks})")
    cc = "0" if ks == 0 else "v[60:63]"
    e(f"v_mfma_f32_16x16x32_bf16 v[60:63], v[{40+4*ks}:{43+4*ks}], v[{20+4*ks}:{23+4*ks}], {cc}")
e("s_nop 7")
e("v_add_f32 v60, v60, v61")
e("v_add_f32 v62, v62, v63")
e("v_add_f32 v60, v60, v62")
e(f"v_mul_f32 v60, s{sT1}, v60")
e("v_cvt_pk_bf16_f32 v60, v60, v60")
exec_save_and()
e(f"ds_write_b16 v207, v60 offset:{LW_STG}")
exec_restore()
e("s_waitcnt lgkmcnt(0)")
barrier()
e(f"s_cmp_lg_u32 s{sWAVE}, 0")
e("s_cbranch_scc1 L_w_qa_done")
e(f"ds_read_b128 v[60:63], v208 offset:{LW_STG}")
e("s_waitcnt lgkmcnt(0)")
for i in range(4):
    e(f"v_min_u32 v{60+i}, -2, v{60+i}")
exec_save_and()
e(f"buffer_store_dwordx4 v[60:63], v209, s[{R_WS}:{R_WS+3}], s{sA3} offen sc1")
exec_restore()
lab("L_w_qa_done")
ts(5)
e(f"s_cmp_ge_u32 s{sIDX}, 114")
e("s_cbranch_scc1 L_w_fin")
if USE_LD:
    e(f"s_cmp_lg_u32 s{sWAVE}, 0")
    e("s_cbranch_scc1 L_w_ldd")
    e(f"s_lshl_b32 s{sT0}, s{sIDX}, 5")
    e(f"s_add_u32 s{sT0}, s{sT0}, {WS_LD}")
    spin_init()
    lab("L_w_ld")
    e(f"buffer_load_dword v10, v3, s[{R_WS}:{R_WS+3}], s{sT0} offen sc1")
    e("s_waitcnt vmcnt(0)")
    e("v_cmp_eq_u32 vcc, -1, v10")
    spin_retry_if_vcc("L_w_ld", "L_w_ldd", 2)
    lab("L_w_ldd")
barrier()
ts(7)
e(f"s_cmp_ge_u32 s{sIDX}, 94")
e("s_cbranch_scc1 L_t7")
e(f"s_cmp_ge_u32 s{sIDX}, 40")
e("s_cbranch_scc1 L_t6")
c("---- T5 ----")
if T5MAP:
    e(f"s_bfe_u32 s{sKQ}, s{sIDX}, 0x20001")
    e(f"s_and_b32 s{sT0}, s{sIDX}, 1")
    e(f"s_mul_i32 s{sT0}, s{sT0}, 5")
    e(f"s_lshr_b32 s{sCS}, s{sIDX}, 3")
    e(f"s_add_u32 s{sCS}, s{sCS}, s{sT0}")
else:
    e(f"s_mul_i32 s{sKQ}, s{sIDX}, 26")
    e(f"s_lshr_b32 s{sKQ}, s{sKQ}, 8")
    e(f"s_mul_i32 s{sT0}, s{sKQ}, 10")
    e(f"s_sub_u32 s{sCS}, s{sIDX}, s{sT0}")
srd(R_B, P_WO, 4096 * 1280)
e(f"v_lshrrev_b32 v9, 3, v{vL}")
e("v_mul_u32_u24 v9, 1280, v9")
e(f"v_and_b32 v10, 7, v{vL}")
e("v_lshl_add_u32 v9, v10, 4, v9")
e(f"s_lshl_b32 s{sT0}, s{sKQ}, 10")
e(f"s_lshl_b32 s{sT1}, s{sWAVE}, 7")
e(f"s_add_u32 s{sT0}, s{sT0}, s{sT1}")
e(f"s_mul_i32 s{sT0}, s{sT0}, 1280")
e(f"s_lshl_b32 s{sT1}, s{sCS}, 7")
e(f"s_add_u32 s{sT0}, s{sT0}, s{sT1}")
e(f"s_lshl_b32 s{sT1}, s{sWAVE}, 14")
for i in range(16):
    e(f"s_add_u32 m0, s{sT1}, {1024*i}")
    e(f"s_add_u32 s{sT2}, s{sT0}, {8*1280*i}")
    e(f"buffer_load_dwordx4 v9, s[{R_B}:{R_B+3}], s{sT2} offen nt lds")
e("v_lshlrev_b32 v9, 7, v202")
e("v_lshl_add_u32 v9, v201, 3, v9")
e(f"v_add_u32 v9, s{sT1}, v9")
e("v_lshlrev_b32 v10, 13, v206")
e("v_lshl_add_u32 v10, v4, 4, v10")
e(f"v_bfe_u32 v11, v{vL}, 3, 1")
e("v_lshl_add_u32 v10, v11, 6, v10")
e(f"s_lshl_b32 s{sA0}, s{sKQ}, 11")
e(f"s_lshl_b32 s{sT1}, s{sWAVE}, 8")
e(f"s_add_u32 s{sA0}, s{sA0}, s{sT1}")
e(f"s_add_u32 s{sA0}, s{sA0}, {WS_CP}")
e("v_and_b32 v12, 1, v4")
e("v_lshlrev_b32 v12, 8, v12")
e("v_lshl_add_u32 v12, v5, 2, v12")
e(f"v_lshrrev_b32 v11, 5, v{vL}")
e("v_lshl_add_u32 v12, v11, 6, v12")
e(f"s_lshl_b32 s{sT0}, s{sWAVE}, 9")
e(f"s_add_u32 s{sT0}, s{sT0}, {LW_RED}")
e(f"v_add_u32 v12, s{sT0}, v12")
e(f"v_lshlrev_b32 v14, 2, v{vL}")
e(f"s_and_b32 s{sT0}, s{sWAVE}, 1")
e(f"s_lshl_b32 s{sT1}, s{sT0}, 8")
e(f"s_add_u32 s{sT1}, s{sT1}, {LW_RED}")
e(f"v_add_u32 v13, s{sT1}, v14")
e(f"s_lshl_b32 s{sA1}, s{sKQ}, 1")
e(f"s_add_u32 s{sA1}, s{sA1}, s{sT0}")
e(f"s_mul_i32 s{sA1}, s{sA1}, 2560")
e(f"s_lshl_b32 s{sT1}, s{sCS}, 8")
e(f"s_add_u32 s{sA1}, s{sA1}, s{sT1}")
e(f"s_add_u32 s{sA1}, s{sA1}, {WS_HP}")
e("s_waitcnt vmcnt(0)")
ts(6)
for ks in range(4):
    for ct in range(4):
        r = 100 + 16 * ks + 4 * ct
        e(f"ds_read_b64_tr_b16 v[{r}:{r+1}], v9 offset:{ks*4096 + ct*32}")
        e(f"ds_read_b64_tr_b16 v[{r+2}:{r+3}], v9 offset:{ks*4096 + ct*32 + 512}")
    e("s_waitcnt lgkmcnt(0)")
e(f"v_cmp_gt_u32 s[{sA2}:{sA3}], 32, v{vL}")
spin_init()
lab("L_w_h4")
for j in range(2):
    e(f"buffer_load_dwordx4 v[{20+4*j}:{23+4*j}], v10, s[{R_WS}:{R_WS+3}], s{sA0} offen offset:{128*j} sc1")
e("s_waitcnt vmcnt(0)")
umax_chain(11, range(20, 28))
e("v_cmp_eq_u32 vcc, -1, v11")
spin_retry_if_vcc("L_w_h4", "L_w_h4d", 0)
lab("L_w_h4d")
ts(10)
for j in range(2):
    for par in range(2):
        for ct in range(4):
            d = 60 + 16 * par + 4 * ct
            cc = "0" if j == 0 else f"v[{d}:{d+3}]"
            r = 100 + 16 * (2 * j + par) + 4 * ct
            e(f"v_mfma_f32_16x16x32_bf16 v[{d}:{d+3}], v[{20+4*j}:{23+4*j}], v[{r}:{r+3}], {cc}")
e("s_nop 0")
for q in range(8):
    d = 60 + 4 * q
    e(f"v_add_f32 v{d}, v{d}, v{d+1}")
    e(f"v_add_f32 v{d+2}, v{d+2}, v{d+3}")
for q in range(8):
    d = 60 + 4 * q
    e(f"v_add_f32 v{d}, v{d}, v{d+2}")
e("s_nop 1")
e("v_permlane32_swap_b32 v76, v64")
e("v_permlane32_swap_b32 v84, v72")
e("s_nop 0")
e("v_add_f32 v60, v60, v64")
e("v_add_f32 v80, v80, v76")
e("v_add_f32 v68, v68, v72")
e("v_add_f32 v88, v88, v84")
e(f"v_cndmask_b32 v60, v80, v60, s[{sA2}:{sA3}]")
e(f"v_cndmask_b32 v68, v88, v68, s[{sA2}:{sA3}]")
e("ds_write_b32 v12, v60")
e("ds_write_b32 v12, v68 offset:128")
e("s_waitcnt lgkmcnt(0)")
barrier()
e(f"s_cmp_ge_u32 s{sWAVE}, 2")
e("s_cbranch_scc1 L_w_fin")
for i in range(8):
    e(f"ds_read_b32 v{20+i}, v13 offset:{512*i}")
e("s_waitcnt lgkmcnt(0)")
e("v_add_f32 v20, v20, v21")
e("v_add_f32 v22, v22, v23")
e("v_add_f32 v24, v24, v25")
e("v_add_f32 v26, v26, v27")
e("v_add_f32 v20, v20, v22")
e("v_add_f32 v24, v24, v26")
e("v_add_f32 v20, v20, v24")
e("v_min_u32 v20, -2, v20")
e(f"buffer_store_dword v20, v14, s[{R_WS}:{R_WS+3}], s{sA1} offen sc1")
ts(11)
e("s_branch L_w_fin")
lab("L_t6")
c("---- T6 ----")
e(f"s_sub_u32 s{sCS}, s{sIDX}, 40")
e(f"s_and_b32 s{sT0}, s{sWAVE}, 1")
e(f"s_cmp_eq_u32 s{sT0}, 0")
e(f"s_cselect_b32 s{R_B}, s{P_W1}, s{P_W3}")
e(f"s_cselect_b32 s{R_B+1}, s{P_W1+1}, s{P_W3+1}")
e(f"s_and_b32 s{R_B+1}, s{R_B+1}, 0xffff")
e(f"s_mov_b32 s{R_B+2}, {640*3456}")
e(f"s_mov_b32 s{R_B+3}, 0x00020000")
e(f"v_lshrrev_b32 v9, 2, v{vL}")
e("v_mul_u32_u24 v9, 3456, v9")
e("v_lshl_add_u32 v9, v201, 4, v9")
e(f"s_lshr_b32 s{sKQ}, s{sWAVE}, 1")
e(f"s_mul_i32 s{sT0}, s{sKQ}, {160*3456}")
e(f"s_lshl_b32 s{sT1}, s{sCS}, 6")
e(f"s_add_u32 s{sT0}, s{sT0}, s{sT1}")
e(f"s_mul_i32 s{sT1}, s{sWAVE}, 10240")
for i in range(10):
    e(f"s_add_u32 m0, s{sT1}, {1024*i}")
    e(f"s_add_u32 s{sT2}, s{sT0}, {16*3456*i}")
    e(f"buffer_load_dwordx4 v9, s[{R_B}:{R_B+3}], s{sT2} offen nt lds")
srd(R_A, P_X, 2560)
e(f"s_lshr_b32 s{sB}, s{sWAVE}, 2")
e(f"s_and_b32 s{sS}, s{sWAVE}, 3")
e(f"v_min_u32 v12, 39, v{vL}")
e("v_lshlrev_b32 v13, 3, v12")
e(f"s_mul_i32 s{sT2}, s{sB}, 1280")
e(f"s_mul_i32 s{sT3}, s{sS}, 320")
e(f"s_add_u32 s{sT2}, s{sT2}, s{sT3}")
e(f"buffer_load_dwordx2 v[14:15], v13, s[{R_A}:{R_A+3}], s{sT2} offen")
e("v_lshlrev_b32 v16, 2, v0")
e("v_mov_b32 v17, 0x3f803f80")
e("v_cmp_gt_u32 vcc, 320, v0")
e(f"v_add_u32 v16, {LW_H + 2560}, v16")
exec_save_and()
e("ds_write_b32 v16, v17")
exec_restore()
e("v_lshlrev_b32 v9, 6, v202")
e("v_lshl_add_u32 v9, v201, 3, v9")
e(f"v_add_u32 v9, s{sT1}, v9")
e("v_lshlrev_b32 v210, 4, v12")
e(f"s_lshl_b32 s{sA0}, s{sT2}, 1")
e(f"s_add_u32 s{sA0}, s{sA0}, {WS_HP}")
for kq in range(1, 4):
    e(f"s_add_u32 s{sA0+kq}, s{sA0}, {5120*kq}")
e(f"s_add_u32 s{sT2}, s{sT2}, {LW_H}")
e(f"v_add_u32 v211, s{sT2}, v13")
e(f"s_lshl_b32 s{sT0}, s{sWAVE}, 3")
e(f"s_add_u32 s{sT0}, s{sT0}, {LW_STAT}")
e(f"v_mov_b32 v212, s{sT0}")
e("v_min_u32 v213, 2, v5")
e("v_mul_u32_u24 v213, 1280, v213")
e("v_lshl_add_u32 v213, v4, 4, v213")
e(f"s_mul_i32 s{sT0}, s{sKQ}, 320")
e(f"s_add_u32 s{sT0}, s{sT0}, {LW_H}")
e(f"v_add_u32 v213, s{sT0}, v213")
e("v_lshlrev_b32 v214, 2, v5")
e(f"s_mul_i32 s{sT0}, s{sWAVE}, 384")
e(f"s_add_u32 s{sT0}, s{sT0}, {LW_RED}")
e(f"v_add_u32 v214, s{sT0}, v214")
e(f"v_lshrrev_b32 v16, 5, v{vL}")
e(f"v_and_b32 v17, 31, v{vL}")
e("v_lshlrev_b32 v215, 7, v16")
e("v_lshl_add_u32 v215, v17, 2, v215")
e(f"v_add_u32 v215, {LW_RED}, v215")
e("v_lshlrev_b32 v216, 2, v17")
e(f"v_add_u32 v216, {LW_RED + 256}, v216")
e("v_lshlrev_b32 v217, 5, v16")
e(f"v_add_u32 v217, {LW_STAT}, v217")
e("v_mul_u32_u24 v218, 3456, v16")
e("v_lshl_add_u32 v218, v17, 1, v218")
e(f"s_lshl_b32 s{sCS}, s{sCS}, 6")
e(f"s_add_u32 s{sCS}, s{sCS}, {WS_ACT}")
e("s_waitcnt vmcnt(0)")
ts(6)
for ks in range(5):
    for ct in range(2):
        r = 100 + 8 * ks + 4 * ct
        e(f"ds_read_b64_tr_b16 v[{r}:{r+1}], v9 offset:{ks*2048 + ct*32}")
        e(f"ds_read_b64_tr_b16 v[{r+2}:{r+3}], v9 offset:{ks*2048 + ct*32 + 256}")
    e("s_waitcnt lgkmcnt(4)")
e("v_lshlrev_b32 v40, 16, v14")
e("v_and_b32 v41, 0xffff0000, v14")
e("v_lshlrev_b32 v42, 16, v15")
e("v_and_b32 v43, 0xffff0000, v15")
e("s_waitcnt lgkmcnt(0)")
spin_init()
lab("L_w_h5")
for kq in range(4):
    e(f"buffer_load_dwordx4 v[{20+4*kq}:{23+4*kq}], v210, s[{R_WS}:{R_WS+3}], s{sA0+kq} offen sc1")
e("s_waitcnt vmcnt(0)")
umax_chain(11, range(20, 36))
e("v_cmp_eq_u32 vcc, -1, v11")
spin_retry_if_vcc("L_w_h5", "L_w_h5d", 0)
lab("L_w_h5d")
ts(10)
for j in range(4):
    e(f"v_add_f32 v{20+j}, v{20+j}, v{24+j}")
    e(f"v_add_f32 v{28+j}, v{28+j}, v{32+j}")
for j in range(4):
    e(f"v_add_f32 v{40+j}, v{40+j}, v{20+j}")
for j in range(4):
    e(f"v_add_f32 v{40+j}, v{40+j}, v{28+j}")
e("v_cvt_pk_bf16_f32 v44, v40, v41")
e("v_cvt_pk_bf16_f32 v45, v42, v43")
e("ds_write_b64 v211, v[44:45]")
e("v_lshlrev_b32 v40, 16, v44")
e("v_and_b32 v41, 0xffff0000, v44")
e("v_lshlrev_b32 v42, 16, v45")
e("v_and_b32 v43, 0xffff0000, v45")
e(f"v_cmp_gt_u32 vcc, 40, v{vL}")
e("v_add_f32 v46, v40, v41")
e("v_add_f32 v47, v42, v43")
e("v_add_f32 v46, v46, v47")
e("v_cndmask_b32 v46, 0, v46, vcc")
e("s_waitcnt lgkmcnt(0)")
barrier()
for ks in range(5):
    e(f"ds_read_b128 v[{20+4*ks}:{23+4*ks}], v213 offset:{64*ks}")
allreduce("add", 46, 47)
e(f"v_mul_f32 v46, {fl(1.0/160.0)}, v46")
for ks in range(5):
    e(f"s_waitcnt lgkmcnt({4-ks})")
    for ct in range(2):
        d = 60 + 4 * ct
        cc = "0" if ks == 0 else f"v[{d}:{d+3}]"
        r = 100 + 8 * ks + 4 * ct
        e(f"v_mfma_f32_16x16x32_bf16 v[{d}:{d+3}], v[{20+4*ks}:{23+4*ks}], v[{r}:{r+3}], {cc}")
for j in range(4):
    e(f"v_sub_f32 v{40+j}, v{40+j}, v46")
e("v_mul_f32 v48, v40, v40")
for j in range(1, 4):
    e(f"v_fmac_f32 v48, v{40+j}, v{40+j}")
e("v_cndmask_b32 v48, 0, v48, vcc")
allreduce("add", 48, 47)
e("v_mov_b32 v47, v48")
e("ds_write_b64 v212, v[46:47]")
e(f"v_cmp_gt_u32 vcc, 16, v{vL}")
exec_save_and()
for ct in range(2):
    for r in range(3):
        e(f"ds_write_b32 v214, v{60+4*ct+r} offset:{128*r + 64*ct}")
exec_restore()
e("s_waitcnt lgkmcnt(0)")
barrier()
e(f"s_cmp_lg_u32 s{sWAVE}, 0")
e("s_cbranch_scc1 L_w_fin")
e("ds_read_b128 v[40:43], v217")
e("ds_read_b128 v[44:47], v217 offset:16")
for w in range(8):
    e(f"ds_read_b32 v{20+w}, v215 offset:{384*w}")
e("s_waitcnt lgkmcnt(8)")
for w in range(8):
    e(f"ds_read_b32 v{28+w}, v216 offset:{384*w}")
e("v_add_f32 v48, v40, v42")
e("v_add_f32 v49, v44, v46")
e("v_add_f32 v50, v41, v43")
e("v_add_f32 v51, v45, v47")
e("v_add_f32 v48, v48, v49")
e("v_add_f32 v49, v50, v51")
e("v_mul_f32 v48, 0.25, v48")
e("v_sub_f32 v40, v40, v48")
e("v_sub_f32 v42, v42, v48")
e("v_sub_f32 v44, v44, v48")
e("v_sub_f32 v46, v46, v48")
e("v_mul_f32 v50, v40, v40")
e("v_mul_f32 v51, v42, v42")
e("v_fmac_f32 v50, v44, v44")
e("v_fmac_f32 v51, v46, v46")
e("v_add_f32 v50, v50, v51")
e("v_fmac_f32 v49, 0x43200000, v50")
e(f"v_mov_b32 v51, {fl(1e-5)}")
e(f"v_fmac_f32 v51, {fl(1.0/640.0)}, v49")
e("v_rsq_f32 v51, v51")
e("s_waitcnt lgkmcnt(8)")
e("v_add_f32 v20, v20, v22")
e("v_add_f32 v24, v24, v26")
e("v_add_f32 v21, v21, v23")
e("v_add_f32 v25, v25, v27")
e("v_add_f32 v20, v20, v24")
e("v_add_f32 v21, v21, v25")
e("s_waitcnt lgkmcnt(0)")
e("v_add_f32 v28, v28, v30")
e("v_add_f32 v32, v32, v34")
e("v_add_f32 v29, v29, v31")
e("v_add_f32 v33, v33, v35")
e("v_add_f32 v28, v28, v32")
e("v_add_f32 v29, v29, v33")
e("v_fma_f32 v20, -v48, v28, v20")
e("v_fma_f32 v21, -v48, v29, v21")
e("v_mul_f32 v20, v20, v51")
e("v_mul_f32 v21, v21, v51")
e("v_mul_f32 v22, 0xbfb8aa3b, v20")
e("v_exp_f32 v22, v22")
e("v_mul_f32 v20, v20, v21")
e("v_add_f32 v22, 1.0, v22")
e("v_rcp_f32 v22, v22")
e("s_nop 0")
e("v_mul_f32 v20, v20, v22")
e("s_nop 1")
e("v_mov_b32_dpp v21, v20 quad_perm:[1,1,3,3] row_mask:0xf bank_mask:0xf")
e("s_nop 0")
e("v_cvt_pk_bf16_f32 v20, v20, v21")
e("v_min_u32 v20, -2, v20")
e(f"s_mov_b64 s[{sEX}:{sEX+1}], exec")
e("s_mov_b32 exec_lo, 0x55555555")
e("s_mov_b32 exec_hi, 0x55555555")
e(f"buffer_store_dword v20, v218, s[{R_WS}:{R_WS+3}], s{sCS} offen sc1")
exec_restore()
ts(11)
e("s_branch L_w_fin")
lab("L_t7")
c("---- T7 ----")
e(f"s_sub_u32 s{sCS}, s{sIDX}, 94")
srd(R_B, P_W2, 1728 * 1280)
e(f"v_lshrrev_b32 v9, 2, v{vL}")
e("v_mul_u32_u24 v9, 1280, v9")
e("v_lshl_add_u32 v9, v201, 4, v9")
e(f"s_mul_i32 s{sT0}, s{sWAVE}, {64*1280}")
e(f"s_lshl_b32 s{sT1}, s{sCS}, 6")
e(f"s_add_u32 s{sT0}, s{sT0}, s{sT1}")
e(f"s_lshl_b32 s{sT1}, s{sWAVE}, 12")
for i in range(4):
    if i == 3:
        e(f"s_cmp_ge_u32 s{sWAVE}, 3")
        e("s_cbranch_scc1 L_t7_dma_done")
    for j in range(4):
        e(f"s_add_u32 m0, s{sT1}, {32768*i + 1024*j}")
        e(f"s_add_u32 s{sT2}, s{sT0}, {(8*64*i + 16*j)*1280}")
        e(f"buffer_load_dwordx4 v9, s[{R_B}:{R_B+3}], s{sT2} offen nt lds")
lab("L_t7_dma_done")
srd(R_A, P_X, 2560)
srd(R_C, P_OUT, 2560)
e(f"v_lshrrev_b32 v16, 5, v{vL}")
e(f"v_and_b32 v17, 31, v{vL}")
e("v_mul_u32_u24 v210, 2560, v16")
e("v_lshl_add_u32 v210, v17, 2, v210")
e("v_mul_u32_u24 v211, 1280, v16")
e("v_lshl_add_u32 v211, v17, 1, v211")
e(f"s_lshl_b32 s{sKQ}, s{sCS}, 6")
e(f"buffer_load_ushort v70, v211, s[{R_A}:{R_A+3}], s{sKQ} offen")
if TOUCH:
    e(f"buffer_load_ushort v71, v211, s[{R_C}:{R_C+3}], s{sKQ} offen")
e(f"s_lshl_b32 s{sA0}, s{sCS}, 7")
e(f"s_add_u32 s{sA0}, s{sA0}, {WS_HP}")
for kq in range(1, 4):
    e(f"s_add_u32 s{sA0+kq}, s{sA0}, {5120*kq}")
e("v_lshlrev_b32 v9, 6, v202")
e("v_lshl_add_u32 v9, v201, 3, v9")
e(f"v_add_u32 v9, s{sT1}, v9")
e("v_add_u32 v10, 0x10000, v9")
if OPTB:
    e(f"v_and_b32 v212, 1, v{vL}")
    e("v_mul_u32_u24 v212, 3456, v212")
    e("v_lshl_add_u32 v212, v4, 4, v212")
    e(f"v_bfe_u32 v11, v{vL}, 1, 1")
    e("v_lshl_add_u32 v212, v11, 6, v212")
    e(f"v_bfe_u32 v11, v{vL}, 2, 2")
    e(f"s_cmp_ge_u32 s{sWAVE}, 3")
    e(f"s_cselect_b32 s{sT0}, 2, 3")
    e(f"v_cmp_ge_u32 vcc, s{sT0}, v11")
    e("s_nop 1")
    e("v_cndmask_b32 v11, 0, v11, vcc")
    e("v_lshl_add_u32 v212, v11, 10, v212")
    e(f"s_lshl_b32 s{sB}, s{sWAVE}, 7")
    e(f"s_add_u32 s{sB}, s{sB}, {WS_ACT}")
else:
    e(f"v_and_b32 v212, 1, v{vL}")
    e("v_mul_u32_u24 v212, 3456, v212")
    e("v_lshl_add_u32 v212, v4, 4, v212")
    e(f"v_bfe_u32 v11, v{vL}, 1, 1")
    e("v_lshl_add_u32 v212, v11, 6, v212")
    e(f"s_lshl_b32 s{sB}, s{sWAVE}, 7")
    e(f"s_add_u32 s{sB}, s{sB}, {WS_ACT}")

e("v_lshlrev_b32 v213, 2, v5")
e(f"s_lshl_b32 s{sT0}, s{sWAVE}, 8")
e(f"s_add_u32 s{sT0}, s{sT0}, {LW_RED}")
e(f"v_add_u32 v213, s{sT0}, v213")
e(f"v_lshlrev_b32 v214, 2, v{vL}")
e(f"v_add_u32 v214, {LW_RED}, v214")
if OPTB:
    e("v_and_b32 v11, 1, v4")
    e("v_lshl_add_u32 v215, v11, 7, v213")
    e("v_lshrrev_b32 v11, 1, v4")
    e("v_lshl_add_u32 v215, v11, 6, v215")
for j in range(4):
    e(f"v_mov_b32 v{32+j}, 0")
for j in range(16):
    e(f"v_mov_b32 v{148+j}, 0")
e("s_waitcnt vmcnt(0)")
ts(6)
for i in range(4):
    if i == 3:
        e(f"s_cmp_ge_u32 s{sWAVE}, 3")
        e("s_cbranch_scc1 L_t7_frag_done")
    a_ = "v9" if i < 2 else "v10"
    off = (i & 1) * 32768
    for par in range(2):
        for ct in range(2):
            r = 100 + 16 * i + 8 * par + 4 * ct
            e(f"ds_read_b64_tr_b16 v[{r}:{r+1}], {a_} offset:{off + par*2048 + ct*32}")
            e(f"ds_read_b64_tr_b16 v[{r+2}:{r+3}], {a_} offset:{off + par*2048 + ct*32 + 256}")
    e("s_waitcnt lgkmcnt(0)")
lab("L_t7_frag_done")
e(f"s_cmp_lg_u32 s{sWAVE}, 0")
e("s_cbranch_scc1 L_w_s7_noh")
spin_init()
lab("L_w_h5b")
for kq in range(4):
    e(f"buffer_load_dword v{72+kq}, v210, s[{R_WS}:{R_WS+3}], s{sA0+kq} offen sc1")
e("s_waitcnt vmcnt(0)")
umax_chain(11, range(72, 76))
e("v_cmp_eq_u32 vcc, -1, v11")
spin_retry_if_vcc("L_w_h5b", "L_w_h5bd", 1)
lab("L_w_h5bd")
e("v_lshlrev_b32 v70, 16, v70")
e("v_add_f32 v72, v72, v73")
e("v_add_f32 v74, v74, v75")
e("v_add_f32 v70, v70, v72")
e("v_add_f32 v70, v70, v74")
e("v_cvt_pk_bf16_f32 v70, v70, v70")
e("v_and_b32 v70, 0xffff0000, v70")
lab("L_w_s7_noh")
if OPTB:
    for i in range(4):
        e(f"v_cmp_eq_u32 s[{R_B+0 if i==0 else (R_B+2 if i==1 else (sA0 if i==2 else sA2))}:{(R_B+1) if i==0 else ((R_B+3) if i==1 else (sA1 if i==2 else sA3))}], {i}, v4")
    spin_init()
    lab("L_w_h6")
    e(f"buffer_load_dwordx4 v[20:23], v212, s[{R_WS}:{R_WS+3}], s{sB} offen sc1")
    e("s_waitcnt vmcnt(0)")
    umax_chain(11, range(20, 24))
    e("v_cmp_eq_u32 vcc, -1, v11")
    spin_retry_if_vcc("L_w_h6", "L_w_h6d", 0)
    lab("L_w_h6d")
    ts(10)
    for i in range(4):
        for par in range(2):
            for ct in range(2):
                d = 24 + 16 * i + 8 * par + 4 * ct
                if d >= 68:
                    d += 12
                r = 100 + 16 * i + 8 * par + 4 * ct
                e(f"v_mfma_f32_16x16x32_bf16 v[{d}:{d+3}], v[20:23], v[{r}:{r+3}], 0")
    def D(i, par, ct):
        d = 24 + 16 * i + 8 * par + 4 * ct
        return d + 12 if d >= 68 else d
    e("s_nop 1")
    for i in range(4):
        for ct in range(2):
            for bb in range(2):
                e(f"v_add_f32 v{D(i,0,ct)+bb}, v{D(i,0,ct)+bb}, v{D(i,1,ct)+2+bb}")
    masks = [f"s[{R_B}:{R_B+1}]", f"s[{R_B+2}:{R_B+3}]", f"s[{sA0}:{sA1}]", f"s[{sA2}:{sA3}]"]
    for ct in range(2):
        for bb in range(2):
            dst = D(0, 0, ct) + bb
            for i in range(1, 4):
                e(f"v_cndmask_b32 v{dst}, v{dst}, v{D(i,0,ct)+bb}, {masks[i]}")
    e("s_nop 1")
    e("v_permlane32_swap_b32 v24, v28")
    e("v_permlane32_swap_b32 v25, v29")
    e("s_nop 0")
    e("v_add_f32 v24, v24, v28")
    e("v_add_f32 v25, v25, v29")
    e("s_nop 1")
    e("v_permlane16_swap_b32 v24, v25")
    e("s_nop 0")
    e("v_add_f32 v24, v24, v25")
    e("ds_write_b32 v215, v24")
else:
    spin_init()
    lab("L_w_h6")
    for i in range(3):
        e(f"buffer_load_dwordx4 v[{20+4*i}:{23+4*i}], v212, s[{R_WS}:{R_WS+3}], s{sB} offen offset:{1024*i} sc1")
    e(f"s_cmp_ge_u32 s{sWAVE}, 3")
    e("s_cbranch_scc1 L_w_h6_skip")
    e(f"buffer_load_dwordx4 v[32:35], v212, s[{R_WS}:{R_WS+3}], s{sB} offen offset:{1024*3} sc1")
    lab("L_w_h6_skip")
    e("s_waitcnt vmcnt(0)")
    umax_chain(11, range(20, 36))
    e("v_cmp_eq_u32 vcc, -1, v11")
    spin_retry_if_vcc("L_w_h6", "L_w_h6d", 0)
    lab("L_w_h6d")
    ts(10)
    for i in range(4):
        for par in range(2):
            for ct in range(2):
                d = 40 + 8 * par + 4 * ct
                cc = "0" if i == 0 else f"v[{d}:{d+3}]"
                r = 100 + 16 * i + 8 * par + 4 * ct
                e(f"v_mfma_f32_16x16x32_bf16 v[{d}:{d+3}], v[{20+4*i}:{23+4*i}], v[{r}:{r+3}], {cc}")
    e(f"v_cmp_gt_u32 vcc, 16, v{vL}")
    e("s_nop 6")
    e("v_add_f32 v40, v40, v50")
    e("v_add_f32 v41, v41, v51")
    e("v_add_f32 v44, v44, v54")
    e("v_add_f32 v45, v45, v55")
    exec_save_and()
    e("ds_write_b32 v213, v40")
    e("ds_write_b32 v213, v41 offset:128")
    e("ds_write_b32 v213, v44 offset:64")
    e("ds_write_b32 v213, v45 offset:192")
    exec_restore()

e("s_waitcnt lgkmcnt(0)")
barrier()
e(f"s_cmp_lg_u32 s{sWAVE}, 0")
e("s_cbranch_scc1 L_w_fin")
for i in range(8):
    e(f"ds_read_b32 v{20+i}, v214 offset:{256*i}")
e("s_waitcnt lgkmcnt(0)")
e("v_add_f32 v20, v20, v21")
e("v_add_f32 v22, v22, v23")
e("v_add_f32 v24, v24, v25")
e("v_add_f32 v26, v26, v27")
e("v_add_f32 v20, v20, v22")
e("v_add_f32 v24, v24, v26")
e("v_add_f32 v20, v20, v70")
e("v_add_f32 v20, v20, v24")
e("v_cvt_pk_bf16_f32 v20, v20, v20")
e(f"buffer_store_short v20, v211, s[{R_C}:{R_C+3}], s{sKQ} offen")
ts(11)
if DOUBLE:
    e("s_memrealtime s[98:99]")
    e("s_waitcnt lgkmcnt(0)")
    e("s_sub_u32 s94, s90, s96")
    e("s_min_u32 s94, s94, 10000")
    lab("L_dbl")
    e("s_memrealtime s[92:93]")
    e("s_waitcnt lgkmcnt(0)")
    e("s_sub_u32 s95, s92, s98")
    e("s_cmp_lt_u32 s95, s94")
    e("s_cbranch_scc1 L_dbl")
lab("L_w_fin")
ts_flush(12)
e("s_endpgm")

LA_C = 0
LA_Q = 131072
LA_P = LA_Q
LA_MX = LA_Q + 8192
LA_LS = LA_Q + 8704
LA_O = 0
LA_WUV = 32768
LA_CX = 65536
LA_CF = 73728
LA_STG = 74752

lab("L_arole")
c("================= A role =================")
LA_WQ = 90112
LA_XN = LA_Q
LA_SQ = LA_Q + 4096
e(f"s_sub_u32 s{sIDX}, s2, 128")
e(f"s_lshr_b32 s{sB}, s{sIDX}, 6")
e(f"s_and_b32 s{sS}, s{sIDX}, 63")
e(f"s_and_b32 s{sH}, s{sIDX}, 31")
e(f"s_lshr_b32 s{sJQ}, s{sIDX}, 5")
srd(R_C, P_X, 2560)
srd(R_B, P_WQ, 640 * 8192)
srd(R_A, P_CKV, 2 * 8192 * 1024)
e(f"v_lshrrev_b32 v4, 4, v{vL}")
e(f"v_and_b32 v5, 15, v{vL}")
e(f"v_lshlrev_b32 v6, 4, v{vL}")
e(f"v_lshlrev_b32 v19, 2, v{vL}")
e(f"s_cmp_ge_u32 s{sWAVE}, 2")
e("s_cbranch_scc1 L_a_nox")
e(f"s_mul_i32 s{sT0}, s{sWAVE}, 1280")
for i in range(5):
    e(f"buffer_load_dword v{12+i}, v19, s[{R_C}:{R_C+3}], s{sT0} offen offset:{256*i}")
lab("L_a_nox")
e("v_lshlrev_b32 v7, 4, v5")
e("v_lshlrev_b32 v18, 5, v4")
e("v_xor_b32 v7, v7, v18")
e("v_lshl_add_u32 v7, v4, 13, v7")
e(f"s_mul_i32 s{sT2}, s{sJQ}, {160*8192}")
e(f"s_lshl_b32 s{sT0}, s{sH}, 8")
e(f"s_add_u32 s{sT2}, s{sT2}, s{sT0}")
e(f"s_mul_i32 s{sT3}, s{sWAVE}, 20")
for i in range(5):
    e(f"s_add_u32 s{sT4}, s{sT3}, {4*i}")
    e(f"s_lshl_b32 s{sT5}, s{sT4}, 4")
    e(f"s_and_b32 s{sT5}, s{sT5}, 128")
    e(f"v_xor_b32 v18, s{sT5}, v7")
    e(f"s_lshl_b32 s{sT5}, s{sT4}, 8")
    e(f"s_add_u32 m0, s{sT5}, {LA_WQ}")
    e(f"s_lshl_b32 s{sT4}, s{sT4}, 13")
    e(f"s_add_u32 s{sT4}, s{sT4}, s{sT2}")
    e(f"buffer_load_dwordx4 v18, s[{R_B}:{R_B+3}], s{sT4} offen nt lds")
e(f"s_and_b32 s{sT0}, s{sWAVE}, 3")
e(f"s_lshl_b32 s{sT0}, s{sT0}, 2")
e(f"s_lshr_b32 s{sT1}, s{sWAVE}, 2")
e(f"s_or_b32 s{sT0}, s{sT0}, s{sT1}")
e(f"v_xor_b32 v145, s{sT0}, v{vL}")
e("v_lshlrev_b32 v145, 4, v145")
e("v_xor_b32 v146, 32, v145")
e(f"s_lshl_b32 s{sCS}, s{sIDX}, 7")
e(f"s_add_u32 s{sCS}, s{sCS}, s{sWAVE}")
e(f"s_lshl_b32 s{sCS}, s{sCS}, 10")
e(f"s_lshl_b32 s{sKQ}, s{sWAVE}, 10")
if ROT:
    e(f"s_lshr_b32 s{sT0}, s{sIDX}, 3")
    e(f"s_xor_b32 s{sT0}, s{sT0}, s{sIDX}")
    e(f"s_lshr_b32 s{sT1}, s{sIDX}, 6")
    e(f"s_xor_b32 s{sT0}, s{sT0}, s{sT1}")
    e(f"s_and_b32 s{sT0}, s{sT0}, 7")
    e(f"s_lshl_b32 s100, s{sT0}, 14")
def c_dma(i):
    if ROT:
        e(f"s_add_u32 s{sT3}, s100, {8192*i}")
        e(f"s_and_b32 s{sT3}, s{sT3}, 0x1ffff")
        e(f"s_add_u32 m0, s{sKQ}, s{sT3}")
        e(f"s_add_u32 s{sT2}, s{sCS}, s{sT3}")
    else:
        e(f"s_add_u32 m0, s{sKQ}, {8192*i + LA_C}")
        e(f"s_add_u32 s{sT2}, s{sCS}, {8192*i}")
    e(f"buffer_load_dwordx4 v{145 + (i & 1)}, s[{R_A}:{R_A+3}], s{sT2} offen nt lds")
e(f"s_cmp_lg_u32 s{sWAVE}, 7")
e("s_cbranch_scc1 L_a_np1")
e(f"s_and_b32 s{sA1}, s{sH}, 7")
e(f"s_lshl_b32 s{sA1}, s{sA1}, 2")
e(f"buffer_load_dword v147, v3, s[{R_DBG}:{R_DBG+3}], s{sA1} offen offset:132 sc1")
lab("L_a_np1")
for i in range(NF):
    c_dma(i)
if TOUCH:
    e(f"s_cmp_lg_u32 s{sWAVE}, 6")
    e("s_cbranch_scc1 L_a_notouch")
    e(f"buffer_load_dword v150, v3, s[{R_A}:{R_A+3}], s{sCS} offen")
    e(f"v_and_b32 v151, 3, v{vL}")
    e("v_lshlrev_b32 v151, 20, v151")
    e(f"s_lshl_b32 s{sT0}, s{sH}, 15")
    e(f"s_add_u32 s{sT0}, s{sT0}, {WS_OP}")
    e(f"buffer_load_dword v152, v151, s[{R_WS}:{R_WS+3}], s{sT0} offen sc1")
    srd(R_C, P_WUV, 512 * 8192)
    e(f"s_lshl_b32 s{sT0}, s{sJQ}, 20")
    e(f"buffer_load_dword v153, v3, s[{R_C}:{R_C+3}], s{sT0} offen")
    lab("L_a_notouch")
ts(1)
e(f"s_cmp_ge_u32 s{sWAVE}, 2")
e("s_cbranch_scc1 L_a_noln")
e(f"s_waitcnt vmcnt({5+NF})")
for i in range(5):
    e(f"v_lshlrev_b32 v{20+2*i}, 16, v{12+i}")
    e(f"v_and_b32 v{21+2*i}, 0xffff0000, v{12+i}")
e("v_add_f32 v30, v20, v21")
for i in range(2, 10):
    e(f"v_add_f32 v30, v30, v{20+i}")
allreduce("add", 30, 31)
e(f"v_mul_f32 v30, {fl(1.0/640.0)}, v30")
for i in range(10):
    e(f"v_sub_f32 v{20+i}, v{20+i}, v30")
e("v_mul_f32 v32, v20, v20")
for i in range(1, 10):
    e(f"v_fmac_f32 v32, v{20+i}, v{20+i}")
allreduce("add", 32, 31)
e(f"v_mov_b32 v33, {fl(1e-5)}")
e(f"v_fmac_f32 v33, {fl(1.0/640.0)}, v32")
e("v_rsq_f32 v33, v33")
e("s_nop 0")
for i in range(10):
    e(f"v_mul_f32 v{20+i}, v{20+i}, v33")
for i in range(5):
    e(f"v_cvt_pk_bf16_f32 v{12+i}, v{20+2*i}, v{21+2*i}")
e(f"s_mul_i32 s{sT0}, s{sWAVE}, 1280")
e(f"s_add_u32 s{sT0}, s{sT0}, {LA_XN}")
e(f"v_add_u32 v19, s{sT0}, v19")
for i in range(5):
    e(f"ds_write_b32 v19, v{12+i} offset:{256*i}")
lab("L_a_noln")
e(f"v_bfe_u32 v11, v{vL}, 2, 2")
e("v_and_b32 v10, 1, v4")
e("v_lshl_or_b32 v10, v10, 2, v11")
e(f"v_xor_b32 v10, s{sWAVE}, v10")
e("v_lshlrev_b32 v10, 5, v10")
e("v_lshl_add_u32 v140, v4, 3, v11")
e("v_lshl_add_u32 v140, v140, 8, v10")
e(f"v_and_b32 v10, 3, v{vL}")
e("v_lshl_add_u32 v140, v10, 3, v140")
e(f"v_add_u32 v140, {LA_WQ}, v140")
e(f"v_and_b32 v10, 1, v{vL}")
e("v_mul_u32_u24 v141, 1280, v10")
e("v_lshl_add_u32 v141, v4, 4, v141")
e(f"s_mul_i32 s{sT0}, s{sJQ}, 320")
e(f"s_add_u32 s{sT0}, s{sT0}, {LA_XN}")
e(f"v_add_u32 v141, s{sT0}, v141")
e("v_lshlrev_b32 v142, 8, v10")
e("v_lshl_add_u32 v142, v4, 3, v142")
e(f"s_lshl_b32 s{sT1}, s{sWAVE}, 5")
e(f"s_add_u32 s{sT1}, s{sT1}, {LA_SQ}")
e(f"v_add_u32 v142, s{sT1}, v142")
e("v_and_b32 v144, 511, v6")
e(f"v_add_u32 v143, {LA_SQ}, v144")
e(f"s_lshl_b32 s{sA0}, s{sH}, 2")
e(f"s_add_u32 s{sA0}, s{sA0}, s{sJQ}")
e(f"s_lshl_b32 s{sA0}, s{sA0}, 9")
if GOPT:
    e(f"v_and_b32 v10, 1, v{vL}")
    e("v_lshlrev_b32 v142, 8, v10")
    e("v_lshl_add_u32 v142, v4, 3, v142")
    e(f"s_lshl_b32 s{sT1}, s{sWAVE}, 5")
    e(f"s_add_u32 s{sA0}, s{sA0}, s{sT1}")
    e(f"s_waitcnt vmcnt({NF}) lgkmcnt(0)")
    e(f"s_cmp_lg_u32 s{sWAVE}, 7")
    e("s_cbranch_scc1 L_a_polld")
    spin_init()
    lab("L_a_poll")
    e("v_cmp_eq_u32 vcc, 0, v147")
    e("s_cbranch_vccz L_a_polld")
    e(f"s_add_u32 s{sSPIN}, s{sSPIN}, 1")
    e(f"s_cmp_ge_u32 s{sSPIN}, {SPIN_MAX}")
    e("s_cbranch_scc1 L_a_polld")
    e(f"buffer_load_dword v147, v3, s[{R_DBG}:{R_DBG+3}], s{sA1} offen offset:132 sc1")
    e("s_waitcnt vmcnt(0)")
    e("s_branch L_a_poll")
    lab("L_a_polld")
    e("v_cmp_gt_u32 vcc, 2, v5")
    barrier()
    for ks in range(5):
        e(f"ds_read_b64_tr_b16 v[{20+4*ks}:{21+4*ks}], v140 offset:{ks*8192}")
        e(f"ds_read_b64_tr_b16 v[{22+4*ks}:{23+4*ks}], v140 offset:{ks*8192 + 1024}")
        e(f"ds_read_b128 v[{40+4*ks}:{43+4*ks}], v141 offset:{ks*64}")
    for ks in range(5):
        e(f"s_waitcnt lgkmcnt({3*(4-ks)})")
        cc = "0" if ks == 0 else "v[60:63]"
        e(f"v_mfma_f32_16x16x32_bf16 v[60:63], v[{20+4*ks}:{23+4*ks}], v[{40+4*ks}:{43+4*ks}], {cc}")
    e("s_nop 7")
    e("v_cvt_pk_bf16_f32 v64, v60, v61")
    e("v_cvt_pk_bf16_f32 v65, v62, v63")
    e("v_min_u32 v64, -2, v64")
    e("v_min_u32 v65, -2, v65")
    exec_save_and()
    e(f"buffer_store_dwordx2 v[64:65], v142, s[{R_WS}:{R_WS+3}], s{sA0} offen sc1")
    exec_restore()
    barrier()
    if TS:
        ts(11)
else:
    if PSLEEP:
        e(f"s_cmp_lg_u32 s{sWAVE}, 7")
        e("s_cbranch_scc1 L_a_np2")
        for r in (148, 149, 150):
            e(f"s_sleep {PSLEEP}")
            e(f"buffer_load_dword v{r}, v3, s[{R_DBG}:{R_DBG+3}], s{sA1} offen offset:132 sc1")
        e("s_waitcnt vmcnt(0)")
        e("v_or3_b32 v147, v147, v148, v149")
        e("v_or_b32 v147, v147, v150")
        lab("L_a_np2")
    e("v_cmp_gt_u32 vcc, 2, v5")
    if TOUCH:
        e(f"s_cmp_lg_u32 s{sWAVE}, 6")
        e("s_cbranch_scc1 L_a_b1w")
        e(f"s_waitcnt vmcnt({NF+3}) lgkmcnt(0)")
        e("s_branch L_a_b1x")
        lab("L_a_b1w")
    e(f"s_waitcnt vmcnt({NF}) lgkmcnt(0)")
    if TOUCH:
        lab("L_a_b1x")
    barrier()
    for ks in range(5):
        e(f"ds_read_b64_tr_b16 v[{20+4*ks}:{21+4*ks}], v140 offset:{ks*8192}")
        e(f"ds_read_b64_tr_b16 v[{22+4*ks}:{23+4*ks}], v140 offset:{ks*8192 + 1024}")
        e(f"ds_read_b128 v[{40+4*ks}:{43+4*ks}], v141 offset:{ks*64}")
    for ks in range(5):
        e(f"s_waitcnt lgkmcnt({3*(4-ks)})")
        cc = "0" if ks == 0 else "v[60:63]"
        e(f"v_mfma_f32_16x16x32_bf16 v[60:63], v[{20+4*ks}:{23+4*ks}], v[{40+4*ks}:{43+4*ks}], {cc}")
    e("s_nop 7")
    e("v_cvt_pk_bf16_f32 v64, v60, v61")
    e("v_cvt_pk_bf16_f32 v65, v62, v63")
    exec_save_and()
    e("ds_write_b64 v142, v[64:65]")
    exec_restore()
    e("s_waitcnt lgkmcnt(0)")
    barrier()
    e(f"s_cmp_lg_u32 s{sWAVE}, 7")
    e("s_cbranch_scc1 L_a_notcomm")
    e("ds_read_b128 v[60:63], v143")
    spin_init()
    lab("L_a_poll")
    e("v_cmp_eq_u32 vcc, 0, v147")
    e("s_cbranch_vccz L_a_polld")
    e(f"s_add_u32 s{sSPIN}, s{sSPIN}, 1")
    e(f"s_cmp_ge_u32 s{sSPIN}, {SPIN_MAX}")
    e("s_cbranch_scc1 L_a_polld")
    e(f"buffer_load_dword v147, v3, s[{R_DBG}:{R_DBG+3}], s{sA1} offen offset:132 sc1")
    e("s_waitcnt vmcnt(0)")
    e("s_branch L_a_poll")
    lab("L_a_polld")
    e(f"v_cmp_gt_u32 vcc, 32, v{vL}")
    e("s_waitcnt lgkmcnt(0)")
    for i in range(4):
        e(f"v_min_u32 v{60+i}, -2, v{60+i}")
    exec_save_and()
    e(f"buffer_store_dwordx4 v[60:63], v144, s[{R_WS}:{R_WS+3}], s{sA0} offen sc1")
    exec_restore()
    lab("L_a_notcomm")
    barrier()
    if TS:
        ts(11)

F2POS = 6
for i in range(NF, GPOS):
    if i == F2POS:
        e(f"buffer_load_dword v7, v3, s[{R_DBG}:{R_DBG+3}], 0 offen offset:128 sc1")
    c_dma(i)
e(f"s_waitcnt vmcnt({GPOS-F2POS})")
spin_init()
lab("L_a_f2")
e("v_cmp_eq_u32 vcc, 0, v7")
e("s_cbranch_vccz L_a_f2d")
e(f"s_add_u32 s{sSPIN}, s{sSPIN}, 1")
e(f"s_cmp_ge_u32 s{sSPIN}, {SPIN_MAX}")
e("s_cbranch_scc1 L_a_f2d")
e(f"buffer_load_dword v7, v3, s[{R_DBG}:{R_DBG+3}], 0 offen offset:128 sc1")
e("s_waitcnt vmcnt(0)")
e("s_branch L_a_f2")
lab("L_a_f2d")
barrier()
e("v_lshlrev_b32 v240, 4, v0")
e(f"s_lshl_b32 s{sA0}, s{sB}, 15")
e(f"s_add_u32 s{sA0}, s{sA0}, {WS_QA}")
for i in range(1, 4):
    e(f"s_add_u32 s{sA0+i}, s{sA0}, {8192*i}")
def qa_gather():
    for i in range(4):
        e(f"buffer_load_dwordx4 v[{20+4*i}:{23+4*i}], v240, s[{R_WS}:{R_WS+3}], s{sA0+i} offen sc1")
qa_gather()
for i in range(GPOS, 16):
    c_dma(i)
e("v_and_b32 v8, 3, v5")
e("v_lshrrev_b32 v9, 2, v5")
e("v_lshl_or_b32 v8, v8, 2, v9")
e(f"v_lshrrev_b32 v9, 5, v{vL}")
e(f"v_and_b32 v17, 31, v{vL}")
e("v_lshlrev_b32 v10, 10, v17")
e(f"s_and_b32 s{sT0}, s{sWAVE}, 3")
e(f"s_lshl_b32 s{sT0}, s{sT0}, 15")
for kk in range(8):
    e(f"v_add_u32 v11, {2*kk}, v9")
    e("v_xor_b32 v11, v11, v8")
    e("v_lshl_add_u32 v11, v11, 4, v10")
    e(f"v_add_u32 v{200+kk}, s{sT0}, v11")
    e(f"v_add_u32 v{208+kk}, {LA_Q}, v11")
e(f"v_bfe_u32 v11, v{vL}, 2, 2")
e("v_lshrrev_b32 v12, 1, v4")
e("v_lshl_or_b32 v13, v11, 2, v12")
e("v_lshl_add_u32 v14, v12, 2, v11")
e("v_lshlrev_b32 v14, 10, v14")
e(f"s_lshr_b32 s{sT0}, s{sWAVE}, 1")
e(f"s_lshl_b32 s{sT0}, s{sT0}, 8")
e(f"v_add_u32 v14, s{sT0}, v14")
e(f"v_and_b32 v15, 1, v{vL}")
e("v_lshl_add_u32 v14, v15, 3, v14")
e("v_and_b32 v15, 1, v4")
e("v_lshlrev_b32 v15, 1, v15")
e(f"v_bfe_u32 v16, v{vL}, 1, 1")
e("v_or_b32 v15, v15, v16")
e(f"s_and_b32 s{sT0}, s{sWAVE}, 1")
e(f"s_lshl_b32 s{sT0}, s{sT0}, 3")
e(f"v_or_b32 v15, s{sT0}, v15")
e("v_xor_b32 v15, v15, v13")
for ct in range(2):
    for rd in range(2):
        x = (4 * ct) ^ (2 * rd)
        r = 216 + 4 * ct + 2 * rd
        e(f"v_xor_b32 v16, {x}, v15")
        e(f"v_lshl_add_u32 v{r}, v16, 4, v14")
        if rd:
            e(f"v_add_u32 v{r}, 8192, v{r}")
        e(f"v_add_u32 v{r+1}, 0x10000, v{r}")
e(f"s_and_b32 s{sT0}, s{sWAVE}, 3")
e(f"s_lshl_b32 s{sT0}, s{sT0}, 2")
e(f"s_lshr_b32 s{sT1}, s{sWAVE}, 2")
e(f"s_or_b32 s{sT0}, s{sT0}, s{sT1}")
e(f"v_xor_b32 v241, s{sT0}, v{vL}")
e("v_lshlrev_b32 v241, 4, v241")
e(f"s_lshl_b32 s{sT1}, s{sWAVE}, 10")
e(f"s_add_u32 s{sT1}, s{sT1}, {LA_Q}")
e(f"v_add_u32 v241, s{sT1}, v241")
e("v_xor_b32 v242, 32, v241")
e("v_lshlrev_b32 v243, 4, v17")
e(f"v_add_u32 v243, {LA_MX}, v243")
e(f"s_and_b32 s{sT0}, s{sWAVE}, 3")
e(f"s_lshl_b32 s{sT1}, s{sT0}, 2")
e(f"v_add_u32 v244, s{sT1}, v243")
e(f"v_add_u32 v246, {LA_P}, v6")
e(f"s_lshl_b32 s{sT1}, s{sT0}, 11")
e(f"v_add_u32 v245, s{sT1}, v246")
e("v_lshl_add_u32 v12, v9, 3, v10")
e(f"s_lshl_b32 s{sT0}, s{sWAVE}, 3")
e(f"v_xor_b32 v13, s{sT0}, v5")
for j in range(8):
    e(f"v_xor_b32 v14, {j}, v13")
    e(f"v_lshl_add_u32 v{160+j}, v14, 4, v12")
e(f"s_lshl_b32 s{sT0}, s{sWAVE}, 2")
for i in range(4):
    e(f"s_add_u32 s{sT2}, s{sT0}, {i}")
    e(f"s_and_b32 s{sT3}, s{sT2}, 15")
    e(f"v_xor_b32 v14, s{sT3}, v{vL}")
    e("v_lshlrev_b32 v14, 4, v14")
    e(f"s_lshl_b32 s{sT2}, s{sT2}, 10")
    e(f"v_add_u32 v{168+i}, s{sT2}, v14")
e("v_lshlrev_b32 v172, 14, v4")
e("v_lshl_add_u32 v172, v5, 4, v172")
e(f"s_lshl_b32 s{sCS}, s{sB}, 5")
e(f"s_add_u32 s{sCS}, s{sCS}, s{sT0}")
e(f"s_lshl_b32 s{sCS}, s{sCS}, 16")
e(f"s_lshl_b32 s{sT2}, s{sS}, 8")
e(f"s_add_u32 s{sCS}, s{sCS}, s{sT2}")
e(f"s_add_u32 s{sCS}, s{sCS}, {WS_OP}")
e("v_lshlrev_b32 v173, 3, v17")
e(f"s_lshl_b32 s{sKQ}, s{sIDX}, 8")
e(f"s_add_u32 s{sKQ}, s{sKQ}, {WS_ST}")
srd(R_B, P_WUV, 512 * 8192)
e("v_lshlrev_b32 v174, 4, v5")
e("v_lshlrev_b32 v14, 5, v4")
e("v_xor_b32 v174, v174, v14")
e("v_lshl_add_u32 v174, v4, 13, v174")
e("v_xor_b32 v175, 128, v174")
e(f"s_lshl_b32 s{sT0}, s{sWAVE}, 12")
e(f"s_add_u32 s{sT0}, s{sT0}, {LA_WUV}")
e(f"v_add_u32 v176, s{sT0}, v6")
e("v_and_b32 v14, 1, v4")
e("v_lshl_or_b32 v14, v14, 2, v11")
e(f"v_xor_b32 v14, s{sWAVE}, v14")
e("v_lshlrev_b32 v14, 5, v14")
e("v_lshl_add_u32 v177, v4, 3, v11")
e("v_lshl_add_u32 v177, v177, 8, v14")
e(f"v_and_b32 v14, 3, v{vL}")
e("v_lshl_add_u32 v177, v14, 3, v177")
e(f"v_add_u32 v177, {LA_WUV}, v177")
if AOPT:
    e(f"v_and_b32 v178, 3, v{vL}")
    e("v_lshl_add_u32 v178, v178, 2, v4")
    e("v_lshlrev_b32 v178, 8, v178")
else:
    e(f"v_lshlrev_b32 v178, 8, v{vL}")
e("v_lshlrev_b32 v179, 8, v4")
e("v_lshl_add_u32 v179, v5, 4, v179")
e(f"v_and_b32 v14, 3, v{vL}")
e("v_lshl_add_u32 v14, v4, 2, v14")
e("v_lshl_add_u32 v14, v14, 2, v11")
e("v_lshlrev_b32 v180, 2, v14")
e(f"s_lshr_b32 s{sT0}, s{sWAVE}, 2")
e(f"s_lshl_b32 s{sT0}, s{sT0}, 8")
e(f"s_add_u32 s{sT0}, s{sT0}, {LA_CF}")
e(f"v_add_u32 v180, s{sT0}, v180")
e(f"s_and_b32 s{sT1}, s{sWAVE}, 3")
e(f"s_lshl_b32 s{sT1}, s{sT1}, 6")
e(f"s_add_u32 s{sT0}, s{sT0}, s{sT1}")
e("v_lshlrev_b32 v181, 4, v4")
e(f"v_add_u32 v181, s{sT0}, v181")
e(f"s_lshl_b32 s{sT0}, s{sWAVE}, 2")
e(f"v_add_u32 v14, s{sT0}, v4")
e("v_and_b32 v15, 15, v14")
e("v_xor_b32 v15, v15, v5")
e("v_lshlrev_b32 v15, 4, v15")
e("v_lshl_add_u32 v182, v14, 8, v15")
e(f"v_add_u32 v182, {LA_CX}, v182")
e("v_lshlrev_b32 v14, 8, v5")
e(f"v_add_u32 v14, {LA_CX}, v14")
for ks in range(4):
    e(f"v_add_u32 v15, {4*ks}, v4")
    e("v_xor_b32 v15, v15, v5")
    e(f"v_lshl_add_u32 v{184+ks}, v15, 4, v14")
e("v_lshlrev_b32 v188, 8, v9")
e("v_lshl_add_u32 v188, v5, 1, v188")
e(f"s_lshl_b32 s{sT0}, s{sWAVE}, 5")
e(f"s_add_u32 s{sT0}, s{sT0}, {LA_STG}")
e(f"v_add_u32 v188, s{sT0}, v188")
e("v_and_b32 v189, 511, v6")
e(f"v_add_u32 v189, {LA_STG}, v189")
e("v_lshlrev_b32 v190, 13, v4")
e("v_lshl_add_u32 v190, v5, 4, v190")
spin_init()
e(f"s_waitcnt vmcnt({16-GPOS})")
e("s_branch L_a_h2c")
lab("L_a_h2")
e("s_waitcnt vmcnt(0)")
lab("L_a_h2c")
if TS == 4:
    e(f"s_cmp_lg_u32 s{sSPIN}, 0")
    e("s_cbranch_scc1 L_a_h2x")
    ts(13)
    lab("L_a_h2x")
umax_chain(11, range(20, 36))
e("v_cmp_eq_u32 vcc, -1, v11")
e("s_cbranch_vccz L_a_h2d")
e("s_sleep 2")
e(f"s_add_u32 s{sSPIN}, s{sSPIN}, 1")
e(f"s_cmp_ge_u32 s{sSPIN}, {SPIN_MAX}")
e("s_cbranch_scc1 L_a_h2d")
qa_gather()
e("s_branch L_a_h2")
lab("L_a_h2d")
ts(2)
if TS == 4:
    e("s_waitcnt lgkmcnt(0)")
    e(f"v_mov_b32 v8, s{sTSB+24}")
    e(f"v_mov_b32 v9, s{sTSB+26}")
    e(f"v_mov_b32 v10, s{sSPIN}")
    e(f"v_mov_b32 v11, s{sTSB+4}")
    e(f"s_lshl_b32 s{sT0}, s{sIDX}, 3")
    e(f"s_add_u32 s{sT0}, s{sT0}, s{sWAVE}")
    e(f"s_lshl_b32 s{sT0}, s{sT0}, 4")
    e(f"s_add_u32 s{sT0}, s{sT0}, {WS_TS + 0x10000}")
    e(f"s_mov_b64 s[{sEX}:{sEX+1}], exec")
    e("s_mov_b64 exec, 1")
    e(f"buffer_store_dwordx4 v[8:11], v3, s[{R_WS}:{R_WS+3}], s{sT0} offen")
    exec_restore()
    e("s_waitcnt vmcnt(0)")
for i in range(4):
    a = "v241" if (i & 1) == 0 else "v242"
    e(f"ds_write_b128 {a}, v[{20+4*i}:{23+4*i}] offset:{8192*i}")
e(f"s_lshl_b32 s{sT5}, s{sJQ}, 7")
e(f"s_lshl_b32 s{sT1}, s{sWAVE}, 4")
e(f"s_add_u32 s{sT5}, s{sT5}, s{sT1}")
e(f"s_lshl_b32 s{sT5}, s{sT5}, 13")
e(f"s_lshl_b32 s{sT1}, s{sH}, 8")
e(f"s_add_u32 s{sT5}, s{sT5}, s{sT1}")
e("s_waitcnt vmcnt(0) lgkmcnt(0)")
barrier()
ts(3)
for i in range(4):
    a = "v174" if (i >> 1) == 0 else "v175"
    if i:
        e(f"s_add_u32 s{sT5}, s{sT5}, {4*8192}")
    e(f"buffer_load_dwordx4 v[{224+4*i}:{227+4*i}], {a}, s[{R_B}:{R_B+3}], s{sT5} offen nt")
def ld_marker():
    e(f"s_cmp_lg_u32 s{sWAVE}, 7")
    e("s_cbranch_scc1 L_a_nold")
    e(f"s_lshl_b32 s{sT0}, s{sIDX}, 5")
    e(f"s_add_u32 s{sT0}, s{sT0}, {WS_LD}")
    e(f"s_mov_b64 s[{sEX}:{sEX+1}], exec")
    e("s_mov_b64 exec, 1")
    e(f"buffer_store_dword v3, v3, s[{R_WS}:{R_WS+3}], s{sT0} offen sc1")
    exec_restore()
    lab("L_a_nold")
if USE_LD == 1:
    ld_marker()
e(f"s_cmp_ge_u32 s{sWAVE}, 4")
e("s_cbranch_scc1 L_a_s_done")
DEPTH = 6
def s_read(ks):
    slot = ks % 8
    j, kk = ks >> 3, ks & 7
    e(f"ds_read_b128 v[{20+8*slot}:{23+8*slot}], v{200+kk} offset:{256*j}")
    e(f"ds_read_b128 v[{24+8*slot}:{27+8*slot}], v{208+kk} offset:{256*j}")
for ks in range(DEPTH):
    s_read(ks)
for ks in range(32):
    outstanding = min(DEPTH, 32 - ks)
    e(f"s_waitcnt lgkmcnt({2*(outstanding-1)})")
    slot = ks % 8
    cc = "0" if ks == 0 else "v[100:115]"
    e(f"v_mfma_f32_32x32x16_bf16 v[100:115], v[{20+8*slot}:{23+8*slot}], v[{24+8*slot}:{27+8*slot}], {cc}")
    if ks + DEPTH < 32:
        s_read(ks + DEPTH)
lab("L_a_s_done")
barrier()
ts(4)
e(f"s_cmp_ge_u32 s{sWAVE}, 4")
e("s_cbranch_scc1 L_a_mx_done")
e("s_nop 9")
e("v_max3_f32 v20, v100, v101, v102")
e("v_max3_f32 v21, v103, v104, v105")
e("v_max3_f32 v22, v106, v107, v108")
e("v_max3_f32 v23, v109, v110, v111")
e("v_max3_f32 v24, v112, v113, v114")
e("v_max3_f32 v20, v20, v21, v115")
e("v_max3_f32 v22, v22, v23, v24")
e("v_max_f32 v20, v20, v22")
e("v_mov_b32 v21, v20")
e("s_nop 1")
e("v_permlane32_swap_b32 v21, v20")
e("s_nop 0")
e("v_max_f32 v20, v20, v21")
e("ds_write_b32 v244, v20")
e("s_waitcnt lgkmcnt(0)")
lab("L_a_mx_done")
if USE_LD == 2:
    ld_marker()
barrier()
e(f"s_cmp_ge_u32 s{sWAVE}, 4")
e("s_cbranch_scc1 L_a_p_done")
e("ds_read_b128 v[24:27], v243")
e("s_waitcnt lgkmcnt(0)")
e("v_max3_f32 v247, v24, v25, v26")
e("v_max_f32 v247, v247, v27")
for i in range(16):
    e(f"v_sub_f32 v{100+i}, v{100+i}, v247")
    if i >= 1:
        e(f"v_exp_f32 v{100+i-1}, v{100+i-1}")
e("v_exp_f32 v115, v115")
for i in range(4):
    e(f"v_cvt_pk_bf16_f32 v{28+i}, v{100+2*i}, v{101+2*i}")
e("ds_write_b128 v245, v[28:31]")
for i in range(4, 8):
    e(f"v_cvt_pk_bf16_f32 v{28+i}, v{100+2*i}, v{101+2*i}")
e("ds_write_b128 v245, v[32:35] offset:1024")
e("s_waitcnt lgkmcnt(0)")
if OPTV:
    lab("L_a_p_done")
    def pv_c(kk):
        base = 64 + 8 * (kk % 4)
        hi = kk >> 2
        off = (kk & 3) * 16384
        for ct in range(2):
            for rd in range(2):
                r = base + 4 * ct + 2 * rd
                e(f"ds_read_b64_tr_b16 v[{r}:{r+1}], v{216+4*ct+2*rd+hi} offset:{off}")
    for kk in range(3):
        pv_c(kk)
    barrier()
    ts(5)
    for kk in range(3):
        e(f"ds_read_b128 v[{32+4*kk}:{35+4*kk}], v246 offset:{1024*kk}")
    for i in range(8):
        e(f"v_add_f32 v{20+i}, v{100+2*i}, v{101+2*i}")
    for i in range(4):
        e(f"v_add_f32 v{20+i}, v{20+2*i}, v{21+2*i}")
    e("v_add_f32 v20, v20, v21")
    e("v_add_f32 v22, v22, v23")
    e("v_add_f32 v20, v20, v22")
    e("v_mov_b32 v21, v20")
    e("s_nop 1")
    e("v_permlane32_swap_b32 v21, v20")
    e("s_nop 0")
    e("v_add_f32 v248, v20, v21")
    pend = [("P", 0), ("P", 1), ("P", 2)]
    for kk in range(8):
        idx = max(i for i, o in enumerate(pend) if o[1] <= kk) if any(o[1] <= kk for o in pend) else -1
        e(f"s_waitcnt lgkmcnt({len(pend) - 1 - idx})")
        pend = pend[idx+1:]
        base = 64 + 8 * (kk % 4)
        for ct in range(2):
            d = 100 + 16 * ct
            cc = "0" if kk == 0 else f"v[{d}:{d+15}]"
            e(f"v_mfma_f32_32x32x16_bf16 v[{d}:{d+15}], v[{base+4*ct}:{base+4*ct+3}], v[{32+4*kk}:{35+4*kk}], {cc}")
        if kk + 3 < 8:
            k2 = kk + 3
            e(f"ds_read_b128 v[{32+4*k2}:{35+4*k2}], v246 offset:{1024*k2}")
            pv_c(k2)
            pend += [("P", k2)] + [("C", k2)] * 4
else:
    lab("L_a_p_done")
    barrier()
    ts(5)
    def pv_read(kk):
        base = 64 + 8 * (kk % 4)
        hi = kk >> 2
        off = (kk & 3) * 16384
        e(f"ds_read_b128 v[{32+4*kk}:{35+4*kk}], v246 offset:{1024*kk}")
        for ct in range(2):
            for rd in range(2):
                r = base + 4 * ct + 2 * rd
                e(f"ds_read_b64_tr_b16 v[{r}:{r+1}], v{216+4*ct+2*rd+hi} offset:{off}")
    PD = 3
    for kk in range(PD):
        pv_read(kk)
    for i in range(8):
        e(f"v_add_f32 v{20+i}, v{100+2*i}, v{101+2*i}")
    for i in range(4):
        e(f"v_add_f32 v{20+i}, v{20+2*i}, v{21+2*i}")
    e("v_add_f32 v20, v20, v21")
    e("v_add_f32 v22, v22, v23")
    e("v_add_f32 v20, v20, v22")
    e("v_mov_b32 v21, v20")
    e("s_nop 1")
    e("v_permlane32_swap_b32 v21, v20")
    e("s_nop 0")
    e("v_add_f32 v248, v20, v21")
    for kk in range(8):
        outstanding = min(PD, 8 - kk)
        e(f"s_waitcnt lgkmcnt({5*(outstanding-1)})")
        base = 64 + 8 * (kk % 4)
        for ct in range(2):
            d = 100 + 16 * ct
            cc = "0" if kk == 0 else f"v[{d}:{d+15}]"
            e(f"v_mfma_f32_32x32x16_bf16 v[{d}:{d+15}], v[{base+4*ct}:{base+4*ct+3}], v[{32+4*kk}:{35+4*kk}], {cc}")
        if kk + PD < 8:
            pv_read(kk + PD)

e(f"s_cmp_ge_u32 s{sWAVE}, 4")
e("s_cbranch_scc1 L_a_ls_done")
e(f"ds_write_b32 v244, v248 offset:{LA_LS - LA_MX}")
lab("L_a_ls_done")
barrier()
ts(6)
e("s_nop 7")
for ct in range(2):
    for i4 in range(4):
        d = 100 + 16 * ct + 4 * i4
        t = 20 + 2 * (4 * ct + i4)
        e(f"v_cvt_pk_bf16_f32 v{t}, v{d}, v{d+1}")
        e(f"v_cvt_pk_bf16_f32 v{t+1}, v{d+2}, v{d+3}")
        e(f"ds_write_b64 v{160+4*ct+i4}, v[{t}:{t+1}] offset:{LA_O}")
e("s_waitcnt lgkmcnt(0)")
barrier()
for i in range(4):
    e(f"ds_read_b128 v[{40+4*i}:{43+4*i}], v{168+i} offset:{LA_O}")
e(f"ds_read_b128 v[24:27], v243 offset:{LA_LS - LA_MX}")
for i in range(4):
    e(f"s_waitcnt lgkmcnt({4-i})")
    if i:
        e(f"s_add_u32 s{sCS}, s{sCS}, 65536")
    e(f"buffer_store_dwordx4 v[{40+4*i}:{43+4*i}], v172, s[{R_WS}:{R_WS+3}], s{sCS} offen sc1")
ts(7)
e("s_waitcnt vmcnt(4)")
for i in range(4):
    e(f"ds_write_b128 v176, v[{224+4*i}:{227+4*i}] offset:{1024*i}")
e("v_add_f32 v24, v24, v25")
e("v_add_f32 v26, v26, v27")
e("v_add_f32 v25, v24, v26")
e("v_min_u32 v24, -2, v247")
e("v_min_u32 v25, -2, v25")
e(f"v_cmp_gt_u32 vcc, 32, v{vL}")
e("s_waitcnt vmcnt(0) lgkmcnt(0)")
barrier()
ts(8)
e(f"s_cmp_lg_u32 s{sWAVE}, 0")
e("s_cbranch_scc1 L_a_st_done")
exec_save_and()
e(f"buffer_store_dwordx2 v[24:25], v173, s[{R_WS}:{R_WS+3}], s{sKQ} offen sc1")
exec_restore()
lab("L_a_st_done")
for ks in range(4):
    e(f"ds_read_b64_tr_b16 v[{100+4*ks}:{101+4*ks}], v177 offset:{ks*8192}")
    e(f"ds_read_b64_tr_b16 v[{102+4*ks}:{103+4*ks}], v177 offset:{ks*8192 + 1024}")
e(f"s_lshr_b32 s{sT0}, s{sWAVE}, 2")
e(f"s_lshl_b32 s{sA0}, s{sT0}, 14")
e(f"s_lshl_b32 s{sT1}, s{sH}, 3")
e(f"s_add_u32 s{sA0}, s{sA0}, s{sT1}")
e(f"s_add_u32 s{sA0}, s{sA0}, {WS_ST}")
e(f"s_lshl_b32 s{sA1}, s{sT0}, 5")
e(f"s_add_u32 s{sA1}, s{sA1}, s{sH}")
e(f"s_lshl_b32 s{sA1}, s{sA1}, 2")
e(f"s_add_u32 s{sA1}, s{sA1}, s{sJQ}")
e(f"s_lshl_b32 s{sA1}, s{sA1}, 6")
e(f"s_and_b32 s{sT3}, s{sWAVE}, 3")
e(f"s_lshl_b32 s{sT1}, s{sT3}, 4")
e(f"s_add_u32 s{sA1}, s{sA1}, s{sT1}")
e(f"s_lshl_b32 s{sA1}, s{sA1}, 8")
e(f"s_add_u32 s{sA1}, s{sA1}, {WS_OP}")
e(f"s_lshl_b32 s{sA2}, s{sJQ}, 14")
e(f"s_lshl_b32 s{sT1}, s{sH}, 8")
e(f"s_add_u32 s{sA2}, s{sA2}, s{sT1}")
e(f"s_add_u32 s{sA2}, s{sA2}, {WS_CP}")
if AOPT:
    e(f"s_lshl_b32 s{sT1}, s{sT3}, 12")
    e(f"s_add_u32 s{sA0}, s{sA0}, s{sT1}")
    e(f"s_lshl_b32 s{sT1}, s{sWAVE}, 3")
    e(f"s_add_u32 s{sT1}, s{sT1}, {LA_CF}")
    e(f"v_mov_b32 v180, s{sT1}")
    e(f"s_lshr_b32 s{sT1}, s{sWAVE}, 2")
    e(f"s_lshl_b32 s{sT1}, s{sT1}, 5")
    e(f"s_add_u32 s{sT1}, s{sT1}, {LA_CF}")
    e(f"v_mov_b32 v181, s{sT1}")
    e("v_lshlrev_b32 v193, 3, v4")
    e(f"v_add_u32 v193, {LA_CF}, v193")
    spin_init()
    lab("L_a_h3")
    e(f"buffer_load_dwordx2 v[14:15], v178, s[{R_WS}:{R_WS+3}], s{sA0} offen sc1")
    e("s_waitcnt vmcnt(0)")
    e("v_max_u32 v11, v14, v15")
    e("v_cmp_eq_u32 vcc, -1, v11")
    spin_retry_if_vcc("L_a_h3", "L_a_h3d", 1)
    lab("L_a_h3d")
    ts(9)
    for i in range(4):
        e(f"buffer_load_dwordx4 v[{20+4*i}:{23+4*i}], v179, s[{R_WS}:{R_WS+3}], s{sA1} offen offset:{1024*i} sc1")
    def red16(op, v, t):
        for pat in ("quad_perm:[1,0,3,2]", "quad_perm:[2,3,0,1]"):
            e("s_nop 1")
            e(f"v_{op}_f32_dpp v{v}, v{v}, v{v} {pat} row_mask:0xf bank_mask:0xf")
        e(f"v_mov_b32 v{t}, v{v}")
        e("s_nop 1")
        e(f"v_permlane16_swap_b32 v{t}, v{v}")
        e("s_nop 0")
        e(f"v_{op}_f32 v{v}, v{v}, v{t}")
        e(f"v_mov_b32 v{t}, v{v}")
        e("s_nop 1")
        e(f"v_permlane32_swap_b32 v{t}, v{v}")
        e("s_nop 0")
        e(f"v_{op}_f32 v{v}, v{v}, v{t}")
    e("v_mov_b32 v16, v14")
    red16("max", 16, 17)
    e("v_sub_f32 v18, v14, v16")
    e("v_exp_f32 v18, v18")
    e("s_nop 0")
    e("v_mul_f32 v17, v18, v15")
    red16("add", 17, 19)
    e("ds_write_b64 v180, v[16:17]")
    e("s_nop 0")
    for i in range(4):
        e(f"v_mov_b32_dpp v{40+i}, v18 quad_perm:[{i},{i},{i},{i}] row_mask:0xf bank_mask:0xf")
    for i in range(4):
        e(f"s_waitcnt vmcnt({3-i})")
        for j in range(4):
            src = 20 + 4 * i + j
            e(f"v_lshlrev_b32 v{44+2*j}, 16, v{src}")
            e(f"v_and_b32 v{45+2*j}, 0xffff0000, v{src}")
        for j in range(8):
            if i == 0:
                e(f"v_mul_f32 v{52+j}, v{40+i}, v{44+j}")
            else:
                e(f"v_fmac_f32 v{52+j}, v{40+i}, v{44+j}")
    if not OPTA:
        e("s_waitcnt lgkmcnt(0)")
        barrier()
        e("ds_read_b128 v[40:43], v181")
        e("ds_read_b128 v[44:47], v181 offset:16")
        e("s_waitcnt lgkmcnt(0)")
        e("v_max3_f32 v18, v40, v42, v44")
        e("v_max_f32 v18, v18, v46")
        e("v_sub_f32 v40, v40, v18")
        e("v_sub_f32 v42, v42, v18")
        e("v_sub_f32 v44, v44, v18")
        e("v_sub_f32 v46, v46, v18")
        e("v_sub_f32 v16, v16, v18")
        e("v_exp_f32 v40, v40")
        e("v_exp_f32 v42, v42")
        e("v_exp_f32 v44, v44")
        e("v_exp_f32 v46, v46")
        e("v_exp_f32 v16, v16")
        e("v_mul_f32 v41, v40, v41")
        e("v_mul_f32 v45, v44, v45")
        e("v_fmac_f32 v41, v42, v43")
        e("v_fmac_f32 v45, v46, v47")
        e("v_add_f32 v41, v41, v45")
        e("v_rcp_f32 v41, v41")
        e("s_nop 0")
        e("v_mul_f32 v16, v16, v41")
        for j in range(8):
            e(f"v_mul_f32 v{52+j}, v16, v{52+j}")

else:
    e(f"s_cmp_lg_u32 s{sT3}, 1")
    e("s_cbranch_scc1 L_a_h3d")
    spin_init()
    lab("L_a_h3")
    e(f"buffer_load_dwordx2 v[14:15], v178, s[{R_WS}:{R_WS+3}], s{sA0} offen sc1")
    e("s_waitcnt vmcnt(0)")
    e("v_max_u32 v11, v14, v15")
    e("v_cmp_eq_u32 vcc, -1, v11")
    spin_retry_if_vcc("L_a_h3", "L_a_h3d", 1)
    lab("L_a_h3d")
    barrier()
    ts(9)
    for i in range(4):
        e(f"buffer_load_dwordx4 v[{20+4*i}:{23+4*i}], v179, s[{R_WS}:{R_WS+3}], s{sA1} offen offset:{1024*i} sc1")
    e(f"s_cmp_lg_u32 s{sT3}, 1")
    e("s_cbranch_scc1 L_a_cf_done")
    e("v_mov_b32 v16, v14")
    allreduce("max", 16, 17)
    e("v_sub_f32 v16, v14, v16")
    e("v_exp_f32 v16, v16")
    e("s_nop 0")
    e("v_mul_f32 v18, v16, v15")
    allreduce("add", 18, 17)
    e("v_rcp_f32 v18, v18")
    e("s_nop 0")
    e("v_mul_f32 v16, v16, v18")
    e("ds_write_b32 v180, v16")
    e("s_waitcnt lgkmcnt(0)")
    lab("L_a_cf_done")
    barrier()
    e("ds_read_b128 v[40:43], v181")
    e("s_waitcnt lgkmcnt(0)")
    for i in range(4):
        e(f"s_waitcnt vmcnt({3-i})")
        for j in range(4):
            src = 20 + 4 * i + j
            e(f"v_lshlrev_b32 v{44+2*j}, 16, v{src}")
            e(f"v_and_b32 v{45+2*j}, 0xffff0000, v{src}")
        for j in range(8):
            if i == 0:
                e(f"v_mul_f32 v{52+j}, v{40+i}, v{44+j}")
            else:
                e(f"v_fmac_f32 v{52+j}, v{40+i}, v{44+j}")

for j in range(4):
    e(f"v_cvt_pk_bf16_f32 v{60+j}, v{52+2*j}, v{53+2*j}")
e("ds_write_b128 v182, v[60:63]")
e("s_waitcnt lgkmcnt(0)")
barrier()
if OPTA:
    ts(10)
    e(f"v_mov_b32 v70, {LA_CF}")
    e("ds_read_b128 v[72:75], v70")
    e("ds_read_b128 v[76:79], v70 offset:16")
    e("ds_read_b128 v[80:83], v70 offset:32")
    e("ds_read_b128 v[84:87], v70 offset:48")
    e("ds_read_b32 v88, v193")
    e("ds_read_b32 v89, v193 offset:32")
    for ks in range(4):
        e(f"ds_read_b128 v[{20+8*ks}:{23+8*ks}], v{184+ks}")
        e(f"ds_read_b128 v[{24+8*ks}:{27+8*ks}], v{184+ks} offset:4096")
    e("s_waitcnt lgkmcnt(8)")
    e("v_max3_f32 v90, v72, v74, v76")
    e("v_max3_f32 v91, v80, v82, v84")
    e("v_max_f32 v90, v90, v78")
    e("v_max_f32 v91, v91, v86")
    for r in (72, 74, 76, 78, 88):
        e(f"v_sub_f32 v{r}, v{r}, v90")
    for r in (80, 82, 84, 86, 89):
        e(f"v_sub_f32 v{r}, v{r}, v91")
    k = 0
    exps = [72, 74, 76, 78, 80, 82, 84, 86, 88, 89]
    for ks in range(4):
        e(f"s_waitcnt lgkmcnt({2*(3-ks)})")
        c0 = "0" if ks == 0 else "v[60:63]"
        c1 = "0" if ks == 0 else "v[64:67]"
        e(f"v_mfma_f32_16x16x32_bf16 v[60:63], v[{20+8*ks}:{23+8*ks}], v[{100+4*ks}:{103+4*ks}], {c0}")
        e(f"v_mfma_f32_16x16x32_bf16 v[64:67], v[{24+8*ks}:{27+8*ks}], v[{100+4*ks}:{103+4*ks}], {c1}")
        for r in exps[3*ks:3*ks+3]:
            e(f"v_exp_f32 v{r}, v{r}")
    e(f"v_cmp_gt_u32 vcc, 32, v{vL}")
    e("v_mul_f32 v73, v72, v73")
    e("v_mul_f32 v81, v80, v81")
    e("v_fmac_f32 v73, v74, v75")
    e("v_fmac_f32 v81, v82, v83")
    e("v_fmac_f32 v73, v76, v77")
    e("v_fmac_f32 v81, v84, v85")
    e("v_fmac_f32 v73, v78, v79")
    e("v_fmac_f32 v81, v86, v87")
    e("v_rcp_f32 v73, v73")
    e("v_rcp_f32 v81, v81")
    e("v_add_f32 v60, v60, v61")
    e("v_add_f32 v62, v62, v63")
    e("v_add_f32 v64, v64, v65")
    e("v_add_f32 v66, v66, v67")
    e("v_mul_f32 v88, v88, v73")
    e("v_mul_f32 v89, v89, v81")
    e("v_add_f32 v60, v60, v62")
    e("v_add_f32 v64, v64, v66")
    e("v_mul_f32 v60, v60, v88")
    e("v_mul_f32 v64, v64, v89")
else:
    ts(10)
    for ks in range(4):
        e(f"ds_read_b128 v[{20+8*ks}:{23+8*ks}], v{184+ks}")
        e(f"ds_read_b128 v[{24+8*ks}:{27+8*ks}], v{184+ks} offset:4096")
    for ks in range(4):
        e(f"s_waitcnt lgkmcnt({2*(3-ks)})")
        c0 = "0" if ks == 0 else "v[60:63]"
        c1 = "0" if ks == 0 else "v[64:67]"
        e(f"v_mfma_f32_16x16x32_bf16 v[60:63], v[{20+8*ks}:{23+8*ks}], v[{100+4*ks}:{103+4*ks}], {c0}")
        e(f"v_mfma_f32_16x16x32_bf16 v[64:67], v[{24+8*ks}:{27+8*ks}], v[{100+4*ks}:{103+4*ks}], {c1}")
    e(f"v_cmp_gt_u32 vcc, 32, v{vL}")
    e("s_nop 6")
    e("v_add_f32 v60, v60, v61")
    e("v_add_f32 v62, v62, v63")
    e("v_add_f32 v64, v64, v65")
    e("v_add_f32 v66, v66, v67")
    e("v_add_f32 v60, v60, v62")
    e("v_add_f32 v64, v64, v66")

e("s_nop 1")
e("v_permlane32_swap_b32 v60, v64")
e("s_nop 0")
e("v_add_f32 v60, v60, v64")
e("v_mov_b32 v61, v60")
e("s_nop 1")
e("v_permlane16_swap_b32 v61, v60")
e("s_nop 0")
e("v_add_f32 v60, v60, v61")
e("v_cvt_pk_bf16_f32 v60, v60, v60")
e("ds_write_b16 v188, v60")
e("s_waitcnt lgkmcnt(0)")
barrier()
e(f"s_cmp_lg_u32 s{sWAVE}, 0")
e("s_cbranch_scc1 L_a_fin")
e("ds_read_b128 v[60:63], v189")
e("s_waitcnt lgkmcnt(0)")
for i in range(4):
    e(f"v_min_u32 v{60+i}, -2, v{60+i}")
exec_save_and()
e(f"buffer_store_dwordx4 v[60:63], v190, s[{R_WS}:{R_WS+3}], s{sA2} offen sc1")
exec_restore()
lab("L_a_fin")
ts_flush(12)
lab("L_end")
e("s_endpgm")
lab("L_code_end")

tail = [
    '.section .rodata,"a"',
    ".p2align 6",
    f".amdhsa_kernel {NAME}_kernel",
    "  .amdhsa_next_free_vgpr 256",
    "  .amdhsa_next_free_sgpr 102",
    "  .amdhsa_accum_offset 256",
    "  .amdhsa_group_segment_fixed_size 0",
    "  .amdhsa_kernarg_size 104",
    "  .amdhsa_user_sgpr_count 2",
    "  .amdhsa_user_sgpr_kernarg_segment_ptr 1",
    "  .amdhsa_system_sgpr_workgroup_id_x 1",
    ".end_amdhsa_kernel",
]
open(OUT, "w").write("\n".join(head + L + tail) + "\n")
print("wrote", OUT, len(L), "lines")
```

```python
import sys

NAME = "sequential_preLN__compressed_kv_cla__glu_gated_swiglu__decode"
TS = int(sys.argv[2]) if len(sys.argv) > 2 else 0
OUT = sys.argv[1] if len(sys.argv) > 1 else f"cdna_kernels/{NAME}.s"

WS_QP = 0x00000
WS_QA = 0x10000
WS_ST = 0x20000
WS_CP = 0x28000
WS_HP = 0x38000
WS_ACT = 0x3D000
GOPT = int(sys.argv[8]) if len(sys.argv) > 8 else 0
PSLEEP = 0
ROT = 0
OPTV = int(sys.argv[15]) if len(sys.argv) > 15 else 1
OPTA = int(sys.argv[13]) if len(sys.argv) > 13 else 1
OPTB = int(sys.argv[14]) if len(sys.argv) > 14 else 1
RMAP = int(sys.argv[12]) if len(sys.argv) > 12 else 1
TOUCH = int(sys.argv[11]) if len(sys.argv) > 11 else 1
GPOS = int(sys.argv[10]) if len(sys.argv) > 10 else 16
AOPT = int(sys.argv[9]) if len(sys.argv) > 9 else 1
DOUBLE = int(sys.argv[7]) if len(sys.argv) > 7 else 0
CODEPF = int(sys.argv[6]) if len(sys.argv) > 6 else 1
T5MAP = int(sys.argv[5]) if len(sys.argv) > 5 else 1
WS_LD = 0x3F000
NF = int(sys.argv[3]) if len(sys.argv) > 3 else 4
USE_LD = int(sys.argv[4]) if len(sys.argv) > 4 else 1
NCLR = 32
WS_OP = 0x100000
WS_TS = 0x800000
WS_SIZE = 0x10000000
SPIN_MAX = 40000

import struct
def fl(x):
    return '0x%08x' % struct.unpack('<I', struct.pack('<f', x))[0]
L = []
def e(s):
    L.append("    " + s)
def lab(s):
    L.append(s + ":")
def c(s):
    L.append("    ; " + s)

_uid = [0]
def uid(p):
    _uid[0] += 1
    return f"{p}_{_uid[0]}"

sWAVE = 3
sIDX = 4
sH = 5
sJQ = 6
sT0 = 7
P_X, P_CKV, P_WQ, P_WUK, P_WUV, P_WO, P_BX, P_W1, P_W3, P_W2, P_OUT, P_DBG, P_WS = [8 + 2 * i for i in range(13)]
sSPIN = 34
sT1 = 35
R_WS = 36
R_A = 40
R_B = 44
R_C = 48
R_DBG = 52
sT2, sT3, sT4, sT5 = 56, 57, 58, 59
sEX = 60
sB = 62
sS = 63
sCS = 64
sKQ = 65
sTSB = 70

def srd(r, p, nbytes):
    e(f"s_mov_b32 s{r}, s{p}")
    e(f"s_and_b32 s{r+1}, s{p+1}, 0xffff")
    e(f"s_mov_b32 s{r+2}, {nbytes:#x}")
    e(f"s_mov_b32 s{r+3}, 0x00020000")

_tsn = [0]
def ts(i):
    if TS:
        e(f"s_memrealtime s[{sTSB+2*i}:{sTSB+2*i+1}]")
    if DOUBLE and i == DOUBLE:
        e("s_memrealtime s[90:91]")

def ts_flush(nslots):
    if not TS:
        return
    if TS == 3:
        l1 = uid("L_tsf")
        e("s_waitcnt lgkmcnt(0)")
        e(f"s_cmp_lg_u32 s{sWAVE}, 0")
        e(f"s_cbranch_scc1 {l1}")
        l2 = uid("L_tsg")
        e("s_cmp_eq_u32 s2, 94")
        e(f"s_cbranch_scc1 {l2}")
        e("s_cmp_lg_u32 s2, 200")
        e(f"s_cbranch_scc1 {l1}")
        lab(l2)
        e("v_mov_b32 v250, 0")
        e("s_cmp_eq_u32 s2, 94")
        e(f"s_cselect_b32 s{sT1}, 4, 32")
        for k, (a, b) in enumerate(zip([1, 2, 4, 5, 6, 10, 11, 11], [1, 2, 3, 6, 8, 9, 10, 11])):
            e("s_cmp_eq_u32 s2, 94")
            e(f"s_cselect_b32 s{sT0}, s{sTSB+2*a}, s{sTSB+2*b}")
            e(f"s_sub_u32 s{sT0}, s{sT0}, s{sTSB}")
            e(f"v_mov_b32 v251, s{sT0}")
            e(f"s_mov_b64 s[{sEX}:{sEX+1}], exec")
            e("s_mov_b64 exec, 1")
            if k == 7:
                e("s_cmp_eq_u32 s2, 94")
                e(f"s_cselect_b32 s{sT1}, 28, s{sT1}")
            e(f"buffer_store_dword v251, v250, s[{R_DBG}:{R_DBG+3}], s{sT1} offen")
            e(f"s_mov_b64 exec, s[{sEX}:{sEX+1}]")
            e(f"s_add_u32 s{sT1}, s{sT1}, 4")
        lab(l1)
        return
    l1 = uid("L_tsf")
    e("s_waitcnt lgkmcnt(0)")
    e(f"s_cmp_lg_u32 s{sWAVE}, 0")
    e(f"s_cbranch_scc1 {l1}")
    e("v_mov_b32 v250, 0")
    for i in range(nslots):
        e(f"v_mov_b32 v251, s{sTSB+2*i}")
        e(f"s_lshl_b32 s{sT0}, s2, 6")
        e(f"s_add_u32 s{sT0}, s{sT0}, {WS_TS + 4*i:#x}")
        e(f"s_mov_b64 s[{sEX}:{sEX+1}], exec")
        e("s_mov_b64 exec, 1")
        e(f"buffer_store_dword v251, v250, s[{R_WS}:{R_WS+3}], s{sT0} offen")
        e(f"s_mov_b64 exec, s[{sEX}:{sEX+1}]")
        e("s_nop 1")
    lab(l1)

def allreduce(op, v, t):
    for pat in ("quad_perm:[1,0,3,2]", "quad_perm:[2,3,0,1]", "row_half_mirror", "row_mirror"):
        e("s_nop 1")
        e(f"v_{op}_f32_dpp v{v}, v{v}, v{v} {pat} row_mask:0xf bank_mask:0xf")
    e(f"v_mov_b32 v{t}, v{v}")
    e("s_nop 1")
    e(f"v_permlane16_swap_b32 v{t}, v{v}")
    e("s_nop 0")
    e(f"v_{op}_f32 v{v}, v{v}, v{t}")
    e(f"v_mov_b32 v{t}, v{v}")
    e("s_nop 1")
    e(f"v_permlane32_swap_b32 v{t}, v{v}")
    e("s_nop 0")
    e(f"v_{op}_f32 v{v}, v{v}, v{t}")

def umax_chain(dst, regs):
    regs = list(regs)
    e(f"v_max3_u32 v{dst}, v{regs[0]}, v{regs[1]}, v{regs[2]}")
    i = 3
    while i < len(regs):
        if i + 1 < len(regs):
            e(f"v_max3_u32 v{dst}, v{dst}, v{regs[i]}, v{regs[i+1]}")
            i += 2
        else:
            e(f"v_max_u32 v{dst}, v{dst}, v{regs[i]}")
            i += 1

def spin_init():
    e(f"s_mov_b32 s{sSPIN}, 0")

def spin_retry_if_vcc(top, done, sleep=0):
    e(f"s_cbranch_vccz {done}")
    if sleep:
        e(f"s_sleep {sleep}")
    e(f"s_add_u32 s{sSPIN}, s{sSPIN}, 1")
    e(f"s_cmp_lt_u32 s{sSPIN}, {SPIN_MAX}")
    e(f"s_cbranch_scc1 {top}")

def barrier():
    e("s_barrier")

vL = 2

hdr = open(f"cdna_kernels/{NAME}.s.ref").read().split("\n")
head = []
for line in hdr:
    if line.startswith("; @launch"):
        head.append("; @launch grid=(256,1,1) block=(512,1,1) lds=163840")
        break
    head.append(line)
head += [
    '.amdgcn_target "amdgcn-amd-amdhsa--gfx950"',
    ".text",
    f".globl {NAME}_kernel",
    ".p2align 8",
    f".type {NAME}_kernel,@function",
    f"{NAME}_kernel:",
]

e("s_cmp_ge_u32 s2, 256")
e("s_cbranch_scc1 L_end")
ts(0)
if DOUBLE:
    e("s_memrealtime s[96:97]")
e("s_load_dwordx16 s[8:23], s[0:1], 0")
e("s_load_dwordx8 s[24:31], s[0:1], 64")
e("s_load_dwordx2 s[32:33], s[0:1], 96")
e("v_lshrrev_b32 v1, 6, v0")
e(f"v_and_b32 v{vL}, 63, v0")
e(f"v_readfirstlane_b32 s{sWAVE}, v1")
e("v_mov_b32 v3, 0")
e("s_waitcnt lgkmcnt(0)")
e(f"s_load_dword s101, s[{P_DBG}:{P_DBG+1}], 64")
srd(R_WS, P_WS, WS_SIZE)
srd(R_DBG, P_DBG, 256)
if RMAP:
    e(f"s_lshr_b32 s{sT0}, s2, 6")
    e(f"s_lshl_b32 s{sT0}, s{sT0}, 5")
    e(f"s_and_b32 s{sT1}, s2, 31")
    e(f"s_or_b32 s{sT0}, s{sT0}, s{sT1}")
    e(f"s_not_b32 s{sT1}, s2")
    e(f"s_and_b32 s{sT1}, s{sT1}, 32")
    e(f"s_lshl_b32 s{sT1}, s{sT1}, 2")
    e(f"s_or_b32 s2, s{sT0}, s{sT1}")
e("s_cmp_ge_u32 s2, 128")
e("s_cbranch_scc1 L_arole")


LW_WQ = 0
LW_XN = 40960
LW_STG = 43520
LW_RED = 131072
LW_H = 135168
LW_STAT = 139264
sA0, sA1, sA2, sA3 = 66, 67, 68, 69

def exec_save_and(mask="vcc"):
    e(f"s_and_saveexec_b64 s[{sEX}:{sEX+1}], {mask}")
def exec_restore():
    e(f"s_mov_b64 exec, s[{sEX}:{sEX+1}]")

c("================= W role =================")
LW_WUK = 49152
LW_QPL = 81920
e(f"s_mov_b32 s{sIDX}, s2")
e(f"s_and_b32 s{sH}, s2, 31")
e(f"s_lshr_b32 s{sJQ}, s2, 5")
e(f"v_lshrrev_b32 v4, 4, v{vL}")
e(f"v_and_b32 v5, 15, v{vL}")
if CODEPF:
    e(f"s_sub_u32 s{sT0}, s{sIDX}, 32")
    e(f"s_cmp_ge_u32 s{sT0}, 16")
    e("s_cbranch_scc1 L_w_nopf")
    e(f"s_getpc_b64 s[{sT2}:{sT3}]")
    lab("L_pc_ref")
    e(f"s_sub_u32 s{sT2}, s{sT2}, L_pc_ref-{NAME}_kernel")
    e(f"s_subb_u32 s{sT3}, s{sT3}, 0")
    e("v_lshlrev_b32 v6, 4, v0")
    for j in range(3):
        if j:
            e("v_add_u32 v6, 0x2000, v6")
        e(f"v_min_u32 v7, L_code_end-{NAME}_kernel-16, v6")
        e(f"global_load_dwordx4 v[{232+4*j}:{235+4*j}], v7, s[{sT2}:{sT3}]")
    lab("L_w_nopf")
if TOUCH >= 2:
    e(f"s_sub_u32 s{sT0}, s{sIDX}, 32")
    e(f"s_cmp_ge_u32 s{sT0}, 16")
    e("s_cbranch_scc1 L_w_notouch")
    e(f"v_lshlrev_b32 v6, 18, v{vL}")
    tl = [[(P_CKV, 2*8192*1024)], [(P_WUV, 512*8192), (P_OUT, 2560)], [(P_WO, 4096*1280), (P_X, 2560)], [(P_W1, 640*3456)],
          [(P_W3, 640*3456)], [(P_W2, 1728*1280)], [(P_WS, 0x600000)], [(P_WQ, 640*8192)]]
    for wv, lst in enumerate(tl):
        l1 = uid("L_tw")
        e(f"s_cmp_lg_u32 s{sWAVE}, {wv}")
        e(f"s_cbranch_scc1 {l1}")
        for k, (p, n) in enumerate(lst):
            srd(R_A, p, n)
            e(f"buffer_load_dword v{232+k}, v6, s[{R_A}:{R_A+3}], 0 offen" + (" sc1" if p == P_WS else ""))
        lab(l1)
    lab("L_w_notouch")
e(f"s_cmp_ge_u32 s{sIDX}, {NCLR}")
e("s_cbranch_scc1 L_w_noclr")
e("v_lshlrev_b32 v6, 4, v0")
for j in range(4):
    e(f"v_mov_b32 v{8+j}, -1")
e(f"s_lshl_b32 s{sT0}, s{sIDX}, 13")
e(f"s_cmp_ge_u32 s{sIDX}, 8")
e("s_cbranch_scc1 L_w_clr_lin")
e("v_and_b32 v6, 0x7ff, v6")
e(f"s_lshr_b32 s{sT1}, s{sWAVE}, 1")
e(f"s_lshl_b32 s{sT1}, s{sT1}, 14")
e(f"s_lshl_b32 s{sT0}, s{sIDX}, 11")
e(f"s_add_u32 s{sT0}, s{sT0}, s{sT1}")
lab("L_w_clr_lin")
e(f"buffer_store_dwordx4 v[8:11], v6, s[{R_WS}:{R_WS+3}], s{sT0} offen sc1")
barrier()
lab("L_w_noclr")
srd(R_C, P_WUK, 512 * 8192)
e("v_xor_b32 v228, v5, v4")
e("v_lshlrev_b32 v228, 4, v228")
e("v_lshl_add_u32 v228, v4, 13, v228")
e(f"s_lshl_b32 s{sA1}, s{sJQ}, 7")
e(f"s_lshl_b32 s{sT1}, s{sWAVE}, 4")
e(f"s_add_u32 s{sA1}, s{sA1}, s{sT1}")
e(f"s_lshl_b32 s{sA1}, s{sA1}, 13")
e(f"s_lshl_b32 s{sT1}, s{sH}, 8")
e(f"s_add_u32 s{sA1}, s{sA1}, s{sT1}")
e(f"s_lshl_b32 s{sT1}, s{sWAVE}, 12")
for i in range(4):
    e(f"v_xor_b32 v18, {64*i}, v228")
    e(f"s_add_u32 m0, s{sT1}, {LW_WUK + 1024*i}")
    e(f"s_add_u32 s{sT4}, s{sA1}, {4*8192*i}")
    e(f"buffer_load_dwordx4 v18, s[{R_C}:{R_C+3}], s{sT4} offen nt lds")
ts(1)
e(f"s_cmp_ge_u32 s{sIDX}, {NCLR}")
e("s_cbranch_scc1 L_w_noclr2")
e("s_waitcnt vmcnt(4)")
ts(3)
barrier()
ts(8)
e(f"s_cmp_lg_u32 s{sWAVE}, 0")
e("s_cbranch_scc1 L_w_noclr2")
e(f"s_mov_b32 s{sT0}, 1")
e(f"s_cmp_ge_u32 s{sIDX}, 8")
e("s_cbranch_scc1 L_w_clr_b")
e(f"s_lshl_b32 s{sT1}, s{sIDX}, 2")
e(f"s_add_u32 s{sT1}, s{sT1}, 132")
e(f"s_atomic_add s{sT0}, s[{P_DBG}:{P_DBG+1}], s{sT1}")
e("s_branch L_w_noclr2")
lab("L_w_clr_b")
e(f"s_atomic_add s{sT0}, s[{P_DBG}:{P_DBG+1}], 4 glc")
e("s_waitcnt lgkmcnt(0)")
ts(9)
e(f"s_cmp_lg_u32 s{sT0}, {NCLR-9}")
e("s_cbranch_scc1 L_w_noclr2")
e(f"s_movk_i32 s{sT0}, 0x100")
e(f"s_atomic_add s{sT0}, s[{P_DBG}:{P_DBG+1}], 128")
lab("L_w_noclr2")
e(f"v_bfe_u32 v200, v{vL}, 2, 2")
e(f"v_and_b32 v201, 3, v{vL}")
e("v_lshl_add_u32 v202, v4, 3, v200")
e(f"v_lshlrev_b32 v204, 4, v{vL}")
e("v_and_b32 v208, 511, v204")
e(f"s_lshl_b32 s{sA2}, s{sH}, 11")
e("v_lshlrev_b32 v10, 1, v4")
e("v_xor_b32 v10, v10, v5")
e("v_lshlrev_b32 v10, 4, v10")
e("v_lshl_add_u32 v205, v4, 8, v10")
e(f"v_add_u32 v205, {LW_QPL}, v205")
e("v_xor_b32 v219, 128, v205")
e(f"v_bfe_u32 v11, v{vL}, 2, 1")
e("v_lshl_add_u32 v206, v201, 1, v11")
e("v_lshlrev_b32 v10, 1, v206")
e("v_lshlrev_b32 v11, 8, v206")
e(f"v_add_u32 v11, {LW_QPL}, v11")
for ks in range(4):
    e(f"v_add_u32 v12, {4*ks}, v4")
    e("v_xor_b32 v12, v12, v10")
    e(f"v_lshl_add_u32 v{220+ks}, v12, 4, v11")
e("v_lshlrev_b32 v11, 8, v5")
e(f"s_lshl_b32 s{sT1}, s{sWAVE}, 12")
e(f"s_add_u32 s{sT1}, s{sT1}, {LW_WUK}")
e(f"v_add_u32 v11, s{sT1}, v11")
for ks in range(4):
    e(f"v_add_u32 v12, {4*ks}, v4")
    e("v_xor_b32 v12, v12, v5")
    e(f"v_lshl_add_u32 v{224+ks}, v12, 4, v11")
e("v_lshlrev_b32 v207, 8, v4")
e("v_lshl_add_u32 v207, v5, 1, v207")
e(f"s_lshl_b32 s{sT0}, s{sWAVE}, 5")
e(f"v_add_u32 v207, s{sT0}, v207")
e("v_lshlrev_b32 v209, 15, v4")
e("v_lshl_add_u32 v209, v5, 4, v209")
e(f"s_lshl_b32 s{sA3}, s{sH}, 10")
e(f"s_lshl_b32 s{sT1}, s{sJQ}, 8")
e(f"s_add_u32 s{sA3}, s{sA3}, s{sT1}")
e(f"s_add_u32 s{sA3}, s{sA3}, {WS_QA}")
e("s_waitcnt vmcnt(0)")
ts(2)
for ks in range(4):
    e(f"ds_read_b128 v[{20+4*ks}:{23+4*ks}], v{224+ks}")
e(f"s_cmp_lg_u32 s{sWAVE}, 7")
e("s_cbranch_scc1 L_w_notcomm")
e(f"s_and_b32 s{sT0}, s{sH}, 7")
e(f"s_lshl_b32 s{sT0}, s{sT0}, 2")
spin_init()
lab("L_w_poll")
e(f"buffer_load_dword v10, v3, s[{R_DBG}:{R_DBG+3}], s{sT0} offen offset:132 sc1")
e("s_waitcnt vmcnt(0)")
e("v_cmp_eq_u32 vcc, 0, v10")
spin_retry_if_vcc("L_w_poll", "L_w_polld", 2)
lab("L_w_polld")
spin_init()
lab("L_w_h1")
e(f"buffer_load_dwordx4 v[40:43], v204, s[{R_WS}:{R_WS+3}], s{sA2} offen sc1")
e(f"buffer_load_dwordx4 v[44:47], v204, s[{R_WS}:{R_WS+3}], s{sA2} offen offset:1024 sc1")
e(f"buffer_load_dword v10, v3, s[{R_DBG}:{R_DBG+3}], 0 offen offset:128 sc1")
e("s_waitcnt vmcnt(0)")
umax_chain(11, range(40, 48))
e("v_add_u32 v10, -1, v10")
e("v_max_u32 v11, v11, v10")
e("v_cmp_eq_u32 vcc, -1, v11")
spin_retry_if_vcc("L_w_h1", "L_w_h1d", 0)
lab("L_w_h1d")
e("ds_write_b128 v205, v[40:43]")
e("ds_write_b128 v219, v[44:47] offset:1024")
lab("L_w_notcomm")
e(f"v_cmp_gt_u32 vcc, 32, v{vL}")
e("s_waitcnt lgkmcnt(0)")
barrier()
ts(4)
for ks in range(4):
    e(f"ds_read_b128 v[{40+4*ks}:{43+4*ks}], v{220+ks}")
SCALE = (128 ** -0.5) * 1.4426950408889634
e(f"s_mov_b32 s{sT1}, {fl(SCALE)}")
for ks in range(4):
    e(f"s_waitcnt lgkmcnt({3-ks})")
    cc = "0" if ks == 0 else "v[60:63]"
    e(f"v_mfma_f32_16x16x32_bf16 v[60:63], v[{40+4*ks}:{43+4*ks}], v[{20+4*ks}:{23+4*ks}], {cc}")
e("s_nop 7")
e("v_add_f32 v60, v60, v61")
e("v_add_f32 v62, v62, v63")
e("v_add_f32 v60, v60, v62")
e(f"v_mul_f32 v60, s{sT1}, v60")
e("v_cvt_pk_bf16_f32 v60, v60, v60")
exec_save_and()
e(f"ds_write_b16 v207, v60 offset:{LW_STG}")
exec_restore()
e("s_waitcnt lgkmcnt(0)")
barrier()
e(f"s_cmp_lg_u32 s{sWAVE}, 0")
e("s_cbranch_scc1 L_w_qa_done")
e(f"ds_read_b128 v[60:63], v208 offset:{LW_STG}")
e("s_waitcnt lgkmcnt(0)")
for i in range(4):
    e(f"v_min_u32 v{60+i}, -2, v{60+i}")
exec_save_and()
e(f"buffer_store_dwordx4 v[60:63], v209, s[{R_WS}:{R_WS+3}], s{sA3} offen sc1")
exec_restore()
lab("L_w_qa_done")
ts(5)
e(f"s_cmp_ge_u32 s{sIDX}, 114")
e("s_cbranch_scc1 L_w_fin")
if USE_LD:
    e(f"s_cmp_lg_u32 s{sWAVE}, 0")
    e("s_cbranch_scc1 L_w_ldd")
    e(f"s_lshl_b32 s{sT0}, s{sIDX}, 5")
    e(f"s_add_u32 s{sT0}, s{sT0}, {WS_LD}")
    spin_init()
    lab("L_w_ld")
    e(f"buffer_load_dword v10, v3, s[{R_WS}:{R_WS+3}], s{sT0} offen sc1")
    e("s_waitcnt vmcnt(0)")
    e("v_cmp_eq_u32 vcc, -1, v10")
    spin_retry_if_vcc("L_w_ld", "L_w_ldd", 2)
    lab("L_w_ldd")
barrier()
ts(7)
e(f"s_cmp_ge_u32 s{sIDX}, 94")
e("s_cbranch_scc1 L_t7")
e(f"s_cmp_ge_u32 s{sIDX}, 40")
e("s_cbranch_scc1 L_t6")
c("---- T5 ----")
if T5MAP:
    e(f"s_bfe_u32 s{sKQ}, s{sIDX}, 0x20001")
    e(f"s_and_b32 s{sT0}, s{sIDX}, 1")
    e(f"s_mul_i32 s{sT0}, s{sT0}, 5")
    e(f"s_lshr_b32 s{sCS}, s{sIDX}, 3")
    e(f"s_add_u32 s{sCS}, s{sCS}, s{sT0}")
else:
    e(f"s_mul_i32 s{sKQ}, s{sIDX}, 26")
    e(f"s_lshr_b32 s{sKQ}, s{sKQ}, 8")
    e(f"s_mul_i32 s{sT0}, s{sKQ}, 10")
    e(f"s_sub_u32 s{sCS}, s{sIDX}, s{sT0}")
srd(R_B, P_WO, 4096 * 1280)
e(f"v_lshrrev_b32 v9, 3, v{vL}")
e("v_mul_u32_u24 v9, 1280, v9")
e(f"v_and_b32 v10, 7, v{vL}")
e("v_lshl_add_u32 v9, v10, 4, v9")
e(f"s_lshl_b32 s{sT0}, s{sKQ}, 10")
e(f"s_lshl_b32 s{sT1}, s{sWAVE}, 7")
e(f"s_add_u32 s{sT0}, s{sT0}, s{sT1}")
e(f"s_mul_i32 s{sT0}, s{sT0}, 1280")
e(f"s_lshl_b32 s{sT1}, s{sCS}, 7")
e(f"s_add_u32 s{sT0}, s{sT0}, s{sT1}")
e(f"s_lshl_b32 s{sT1}, s{sWAVE}, 14")
for i in range(16):
    e(f"s_add_u32 m0, s{sT1}, {1024*i}")
    e(f"s_add_u32 s{sT2}, s{sT0}, {8*1280*i}")
    e(f"buffer_load_dwordx4 v9, s[{R_B}:{R_B+3}], s{sT2} offen nt lds")
e("v_lshlrev_b32 v9, 7, v202")
e("v_lshl_add_u32 v9, v201, 3, v9")
e(f"v_add_u32 v9, s{sT1}, v9")
e("v_lshlrev_b32 v10, 13, v206")
e("v_lshl_add_u32 v10, v4, 4, v10")
e(f"v_bfe_u32 v11, v{vL}, 3, 1")
e("v_lshl_add_u32 v10, v11, 6, v10")
e(f"s_lshl_b32 s{sA0}, s{sKQ}, 11")
e(f"s_lshl_b32 s{sT1}, s{sWAVE}, 8")
e(f"s_add_u32 s{sA0}, s{sA0}, s{sT1}")
e(f"s_add_u32 s{sA0}, s{sA0}, {WS_CP}")
e("v_and_b32 v12, 1, v4")
e("v_lshlrev_b32 v12, 8, v12")
e("v_lshl_add_u32 v12, v5, 2, v12")
e(f"v_lshrrev_b32 v11, 5, v{vL}")
e("v_lshl_add_u32 v12, v11, 6, v12")
e(f"s_lshl_b32 s{sT0}, s{sWAVE}, 9")
e(f"s_add_u32 s{sT0}, s{sT0}, {LW_RED}")
e(f"v_add_u32 v12, s{sT0}, v12")
e(f"v_lshlrev_b32 v14, 2, v{vL}")
e(f"s_and_b32 s{sT0}, s{sWAVE}, 1")
e(f"s_lshl_b32 s{sT1}, s{sT0}, 8")
e(f"s_add_u32 s{sT1}, s{sT1}, {LW_RED}")
e(f"v_add_u32 v13, s{sT1}, v14")
e(f"s_lshl_b32 s{sA1}, s{sKQ}, 1")
e(f"s_add_u32 s{sA1}, s{sA1}, s{sT0}")
e(f"s_mul_i32 s{sA1}, s{sA1}, 2560")
e(f"s_lshl_b32 s{sT1}, s{sCS}, 8")
e(f"s_add_u32 s{sA1}, s{sA1}, s{sT1}")
e(f"s_add_u32 s{sA1}, s{sA1}, {WS_HP}")
e("s_waitcnt vmcnt(0)")
ts(6)
for ks in range(4):
    for ct in range(4):
        r = 100 + 16 * ks + 4 * ct
        e(f"ds_read_b64_tr_b16 v[{r}:{r+1}], v9 offset:{ks*4096 + ct*32}")
        e(f"ds_read_b64_tr_b16 v[{r+2}:{r+3}], v9 offset:{ks*4096 + ct*32 + 512}")
    e("s_waitcnt lgkmcnt(0)")
e(f"v_cmp_gt_u32 s[{sA2}:{sA3}], 32, v{vL}")
spin_init()
lab("L_w_h4")
for j in range(2):
    e(f"buffer_load_dwordx4 v[{20+4*j}:{23+4*j}], v10, s[{R_WS}:{R_WS+3}], s{sA0} offen offset:{128*j} sc1")
e("s_waitcnt vmcnt(0)")
umax_chain(11, range(20, 28))
e("v_cmp_eq_u32 vcc, -1, v11")
spin_retry_if_vcc("L_w_h4", "L_w_h4d", 0)
lab("L_w_h4d")
ts(10)
for j in range(2):
    for par in range(2):
        for ct in range(4):
            d = 60 + 16 * par + 4 * ct
            cc = "0" if j == 0 else f"v[{d}:{d+3}]"
            r = 100 + 16 * (2 * j + par) + 4 * ct
            e(f"v_mfma_f32_16x16x32_bf16 v[{d}:{d+3}], v[{20+4*j}:{23+4*j}], v[{r}:{r+3}], {cc}")
e("s_nop 0")
for q in range(8):
    d = 60 + 4 * q
    e(f"v_add_f32 v{d}, v{d}, v{d+1}")
    e(f"v_add_f32 v{d+2}, v{d+2}, v{d+3}")
for q in range(8):
    d = 60 + 4 * q
    e(f"v_add_f32 v{d}, v{d}, v{d+2}")
e("s_nop 1")
e("v_permlane32_swap_b32 v76, v64")
e("v_permlane32_swap_b32 v84, v72")
e("s_nop 0")
e("v_add_f32 v60, v60, v64")
e("v_add_f32 v80, v80, v76")
e("v_add_f32 v68, v68, v72")
e("v_add_f32 v88, v88, v84")
e(f"v_cndmask_b32 v60, v80, v60, s[{sA2}:{sA3}]")
e(f"v_cndmask_b32 v68, v88, v68, s[{sA2}:{sA3}]")
e("ds_write_b32 v12, v60")
e("ds_write_b32 v12, v68 offset:128")
e("s_waitcnt lgkmcnt(0)")
barrier()
e(f"s_cmp_ge_u32 s{sWAVE}, 2")
e("s_cbranch_scc1 L_w_fin")
for i in range(8):
    e(f"ds_read_b32 v{20+i}, v13 offset:{512*i}")
e("s_waitcnt lgkmcnt(0)")
e("v_add_f32 v20, v20, v21")
e("v_add_f32 v22, v22, v23")
e("v_add_f32 v24, v24, v25")
e("v_add_f32 v26, v26, v27")
e("v_add_f32 v20, v20, v22")
e("v_add_f32 v24, v24, v26")
e("v_add_f32 v20, v20, v24")
e("v_min_u32 v20, -2, v20")
e(f"buffer_store_dword v20, v14, s[{R_WS}:{R_WS+3}], s{sA1} offen sc1")
ts(11)
e("s_branch L_w_fin")
lab("L_t6")
c("---- T6 ----")
e(f"s_sub_u32 s{sCS}, s{sIDX}, 40")
e(f"s_and_b32 s{sT0}, s{sWAVE}, 1")
e(f"s_cmp_eq_u32 s{sT0}, 0")
e(f"s_cselect_b32 s{R_B}, s{P_W1}, s{P_W3}")
e(f"s_cselect_b32 s{R_B+1}, s{P_W1+1}, s{P_W3+1}")
e(f"s_and_b32 s{R_B+1}, s{R_B+1}, 0xffff")
e(f"s_mov_b32 s{R_B+2}, {640*3456}")
e(f"s_mov_b32 s{R_B+3}, 0x00020000")
e(f"v_lshrrev_b32 v9, 2, v{vL}")
e("v_mul_u32_u24 v9, 3456, v9")
e("v_lshl_add_u32 v9, v201, 4, v9")
e(f"s_lshr_b32 s{sKQ}, s{sWAVE}, 1")
e(f"s_mul_i32 s{sT0}, s{sKQ}, {160*3456}")
e(f"s_lshl_b32 s{sT1}, s{sCS}, 6")
e(f"s_add_u32 s{sT0}, s{sT0}, s{sT1}")
e(f"s_mul_i32 s{sT1}, s{sWAVE}, 10240")
for i in range(10):
    e(f"s_add_u32 m0, s{sT1}, {1024*i}")
    e(f"s_add_u32 s{sT2}, s{sT0}, {16*3456*i}")
    e(f"buffer_load_dwordx4 v9, s[{R_B}:{R_B+3}], s{sT2} offen nt lds")
srd(R_A, P_X, 2560)
e(f"s_lshr_b32 s{sB}, s{sWAVE}, 2")
e(f"s_and_b32 s{sS}, s{sWAVE}, 3")
e(f"v_min_u32 v12, 39, v{vL}")
e("v_lshlrev_b32 v13, 3, v12")
e(f"s_mul_i32 s{sT2}, s{sB}, 1280")
e(f"s_mul_i32 s{sT3}, s{sS}, 320")
e(f"s_add_u32 s{sT2}, s{sT2}, s{sT3}")
e(f"buffer_load_dwordx2 v[14:15], v13, s[{R_A}:{R_A+3}], s{sT2} offen")
e("v_lshlrev_b32 v16, 2, v0")
e("v_mov_b32 v17, 0x3f803f80")
e("v_cmp_gt_u32 vcc, 320, v0")
e(f"v_add_u32 v16, {LW_H + 2560}, v16")
exec_save_and()
e("ds_write_b32 v16, v17")
exec_restore()
e("v_lshlrev_b32 v9, 6, v202")
e("v_lshl_add_u32 v9, v201, 3, v9")
e(f"v_add_u32 v9, s{sT1}, v9")
e("v_lshlrev_b32 v210, 4, v12")
e(f"s_lshl_b32 s{sA0}, s{sT2}, 1")
e(f"s_add_u32 s{sA0}, s{sA0}, {WS_HP}")
for kq in range(1, 4):
    e(f"s_add_u32 s{sA0+kq}, s{sA0}, {5120*kq}")
e(f"s_add_u32 s{sT2}, s{sT2}, {LW_H}")
e(f"v_add_u32 v211, s{sT2}, v13")
e(f"s_lshl_b32 s{sT0}, s{sWAVE}, 3")
e(f"s_add_u32 s{sT0}, s{sT0}, {LW_STAT}")
e(f"v_mov_b32 v212, s{sT0}")
e("v_min_u32 v213, 2, v5")
e("v_mul_u32_u24 v213, 1280, v213")
e("v_lshl_add_u32 v213, v4, 4, v213")
e(f"s_mul_i32 s{sT0}, s{sKQ}, 320")
e(f"s_add_u32 s{sT0}, s{sT0}, {LW_H}")
e(f"v_add_u32 v213, s{sT0}, v213")
e("v_lshlrev_b32 v214, 2, v5")
e(f"s_mul_i32 s{sT0}, s{sWAVE}, 384")
e(f"s_add_u32 s{sT0}, s{sT0}, {LW_RED}")
e(f"v_add_u32 v214, s{sT0}, v214")
e(f"v_lshrrev_b32 v16, 5, v{vL}")
e(f"v_and_b32 v17, 31, v{vL}")
e("v_lshlrev_b32 v215, 7, v16")
e("v_lshl_add_u32 v215, v17, 2, v215")
e(f"v_add_u32 v215, {LW_RED}, v215")
e("v_lshlrev_b32 v216, 2, v17")
e(f"v_add_u32 v216, {LW_RED + 256}, v216")
e("v_lshlrev_b32 v217, 5, v16")
e(f"v_add_u32 v217, {LW_STAT}, v217")
e("v_mul_u32_u24 v218, 3456, v16")
e("v_lshl_add_u32 v218, v17, 1, v218")
e(f"s_lshl_b32 s{sCS}, s{sCS}, 6")
e(f"s_add_u32 s{sCS}, s{sCS}, {WS_ACT}")
e("s_waitcnt vmcnt(0)")
ts(6)
for ks in range(5):
    for ct in range(2):
        r = 100 + 8 * ks + 4 * ct
        e(f"ds_read_b64_tr_b16 v[{r}:{r+1}], v9 offset:{ks*2048 + ct*32}")
        e(f"ds_read_b64_tr_b16 v[{r+2}:{r+3}], v9 offset:{ks*2048 + ct*32 + 256}")
    e("s_waitcnt lgkmcnt(4)")
e("v_lshlrev_b32 v40, 16, v14")
e("v_and_b32 v41, 0xffff0000, v14")
e("v_lshlrev_b32 v42, 16, v15")
e("v_and_b32 v43, 0xffff0000, v15")
e("s_waitcnt lgkmcnt(0)")
spin_init()
lab("L_w_h5")
for kq in range(4):
    e(f"buffer_load_dwordx4 v[{20+4*kq}:{23+4*kq}], v210, s[{R_WS}:{R_WS+3}], s{sA0+kq} offen sc1")
e("s_waitcnt vmcnt(0)")
umax_chain(11, range(20, 36))
e("v_cmp_eq_u32 vcc, -1, v11")
spin_retry_if_vcc("L_w_h5", "L_w_h5d", 0)
lab("L_w_h5d")
ts(10)
for j in range(4):
    e(f"v_add_f32 v{20+j}, v{20+j}, v{24+j}")
    e(f"v_add_f32 v{28+j}, v{28+j}, v{32+j}")
for j in range(4):
    e(f"v_add_f32 v{40+j}, v{40+j}, v{20+j}")
for j in range(4):
    e(f"v_add_f32 v{40+j}, v{40+j}, v{28+j}")
e("v_cvt_pk_bf16_f32 v44, v40, v41")
e("v_cvt_pk_bf16_f32 v45, v42, v43")
e("ds_write_b64 v211, v[44:45]")
e("v_lshlrev_b32 v40, 16, v44")
e("v_and_b32 v41, 0xffff0000, v44")
e("v_lshlrev_b32 v42, 16, v45")
e("v_and_b32 v43, 0xffff0000, v45")
e(f"v_cmp_gt_u32 vcc, 40, v{vL}")
e("v_add_f32 v46, v40, v41")
e("v_add_f32 v47, v42, v43")
e("v_add_f32 v46, v46, v47")
e("v_cndmask_b32 v46, 0, v46, vcc")
e("s_waitcnt lgkmcnt(0)")
barrier()
for ks in range(5):
    e(f"ds_read_b128 v[{20+4*ks}:{23+4*ks}], v213 offset:{64*ks}")
allreduce("add", 46, 47)
e(f"v_mul_f32 v46, {fl(1.0/160.0)}, v46")
for ks in range(5):
    e(f"s_waitcnt lgkmcnt({4-ks})")
    for ct in range(2):
        d = 60 + 4 * ct
        cc = "0" if ks == 0 else f"v[{d}:{d+3}]"
        r = 100 + 8 * ks + 4 * ct
        e(f"v_mfma_f32_16x16x32_bf16 v[{d}:{d+3}], v[{20+4*ks}:{23+4*ks}], v[{r}:{r+3}], {cc}")
for j in range(4):
    e(f"v_sub_f32 v{40+j}, v{40+j}, v46")
e("v_mul_f32 v48, v40, v40")
for j in range(1, 4):
    e(f"v_fmac_f32 v48, v{40+j}, v{40+j}")
e("v_cndmask_b32 v48, 0, v48, vcc")
allreduce("add", 48, 47)
e("v_mov_b32 v47, v48")
e("ds_write_b64 v212, v[46:47]")
e(f"v_cmp_gt_u32 vcc, 16, v{vL}")
exec_save_and()
for ct in range(2):
    for r in range(3):
        e(f"ds_write_b32 v214, v{60+4*ct+r} offset:{128*r + 64*ct}")
exec_restore()
e("s_waitcnt lgkmcnt(0)")
barrier()
e(f"s_cmp_lg_u32 s{sWAVE}, 0")
e("s_cbranch_scc1 L_w_fin")
e("ds_read_b128 v[40:43], v217")
e("ds_read_b128 v[44:47], v217 offset:16")
for w in range(8):
    e(f"ds_read_b32 v{20+w}, v215 offset:{384*w}")
e("s_waitcnt lgkmcnt(8)")
for w in range(8):
    e(f"ds_read_b32 v{28+w}, v216 offset:{384*w}")
e("v_add_f32 v48, v40, v42")
e("v_add_f32 v49, v44, v46")
e("v_add_f32 v50, v41, v43")
e("v_add_f32 v51, v45, v47")
e("v_add_f32 v48, v48, v49")
e("v_add_f32 v49, v50, v51")
e("v_mul_f32 v48, 0.25, v48")
e("v_sub_f32 v40, v40, v48")
e("v_sub_f32 v42, v42, v48")
e("v_sub_f32 v44, v44, v48")
e("v_sub_f32 v46, v46, v48")
e("v_mul_f32 v50, v40, v40")
e("v_mul_f32 v51, v42, v42")
e("v_fmac_f32 v50, v44, v44")
e("v_fmac_f32 v51, v46, v46")
e("v_add_f32 v50, v50, v51")
e("v_fmac_f32 v49, 0x43200000, v50")
e(f"v_mov_b32 v51, {fl(1e-5)}")
e(f"v_fmac_f32 v51, {fl(1.0/640.0)}, v49")
e("v_rsq_f32 v51, v51")
e("s_waitcnt lgkmcnt(8)")
e("v_add_f32 v20, v20, v22")
e("v_add_f32 v24, v24, v26")
e("v_add_f32 v21, v21, v23")
e("v_add_f32 v25, v25, v27")
e("v_add_f32 v20, v20, v24")
e("v_add_f32 v21, v21, v25")
e("s_waitcnt lgkmcnt(0)")
e("v_add_f32 v28, v28, v30")
e("v_add_f32 v32, v32, v34")
e("v_add_f32 v29, v29, v31")
e("v_add_f32 v33, v33, v35")
e("v_add_f32 v28, v28, v32")
e("v_add_f32 v29, v29, v33")
e("v_fma_f32 v20, -v48, v28, v20")
e("v_fma_f32 v21, -v48, v29, v21")
e("v_mul_f32 v20, v20, v51")
e("v_mul_f32 v21, v21, v51")
e("v_mul_f32 v22, 0xbfb8aa3b, v20")
e("v_exp_f32 v22, v22")
e("v_mul_f32 v20, v20, v21")
e("v_add_f32 v22, 1.0, v22")
e("v_rcp_f32 v22, v22")
e("s_nop 0")
e("v_mul_f32 v20, v20, v22")
e("s_nop 1")
e("v_mov_b32_dpp v21, v20 quad_perm:[1,1,3,3] row_mask:0xf bank_mask:0xf")
e("s_nop 0")
e("v_cvt_pk_bf16_f32 v20, v20, v21")
e("v_min_u32 v20, -2, v20")
e(f"s_mov_b64 s[{sEX}:{sEX+1}], exec")
e("s_mov_b32 exec_lo, 0x55555555")
e("s_mov_b32 exec_hi, 0x55555555")
e(f"buffer_store_dword v20, v218, s[{R_WS}:{R_WS+3}], s{sCS} offen sc1")
exec_restore()
ts(11)
e("s_branch L_w_fin")
lab("L_t7")
c("---- T7 ----")
e(f"s_sub_u32 s{sCS}, s{sIDX}, 94")
srd(R_B, P_W2, 1728 * 1280)
e(f"v_lshrrev_b32 v9, 2, v{vL}")
e("v_mul_u32_u24 v9, 1280, v9")
e("v_lshl_add_u32 v9, v201, 4, v9")
e(f"s_mul_i32 s{sT0}, s{sWAVE}, {64*1280}")
e(f"s_lshl_b32 s{sT1}, s{sCS}, 6")
e(f"s_add_u32 s{sT0}, s{sT0}, s{sT1}")
e(f"s_lshl_b32 s{sT1}, s{sWAVE}, 12")
for i in range(4):
    if i == 3:
        e(f"s_cmp_ge_u32 s{sWAVE}, 3")
        e("s_cbranch_scc1 L_t7_dma_done")
    for j in range(4):
        e(f"s_add_u32 m0, s{sT1}, {32768*i + 1024*j}")
        e(f"s_add_u32 s{sT2}, s{sT0}, {(8*64*i + 16*j)*1280}")
        e(f"buffer_load_dwordx4 v9, s[{R_B}:{R_B+3}], s{sT2} offen nt lds")
lab("L_t7_dma_done")
srd(R_A, P_X, 2560)
srd(R_C, P_OUT, 2560)
e(f"v_lshrrev_b32 v16, 5, v{vL}")
e(f"v_and_b32 v17, 31, v{vL}")
e("v_mul_u32_u24 v210, 2560, v16")
e("v_lshl_add_u32 v210, v17, 2, v210")
e("v_mul_u32_u24 v211, 1280, v16")
e("v_lshl_add_u32 v211, v17, 1, v211")
e(f"s_lshl_b32 s{sKQ}, s{sCS}, 6")
e(f"buffer_load_ushort v70, v211, s[{R_A}:{R_A+3}], s{sKQ} offen")
if TOUCH:
    e(f"buffer_load_ushort v71, v211, s[{R_C}:{R_C+3}], s{sKQ} offen")
e(f"s_lshl_b32 s{sA0}, s{sCS}, 7")
e(f"s_add_u32 s{sA0}, s{sA0}, {WS_HP}")
for kq in range(1, 4):
    e(f"s_add_u32 s{sA0+kq}, s{sA0}, {5120*kq}")
e("v_lshlrev_b32 v9, 6, v202")
e("v_lshl_add_u32 v9, v201, 3, v9")
e(f"v_add_u32 v9, s{sT1}, v9")
e("v_add_u32 v10, 0x10000, v9")
if OPTB:
    e(f"v_and_b32 v212, 1, v{vL}")
    e("v_mul_u32_u24 v212, 3456, v212")
    e("v_lshl_add_u32 v212, v4, 4, v212")
    e(f"v_bfe_u32 v11, v{vL}, 1, 1")
    e("v_lshl_add_u32 v212, v11, 6, v212")
    e(f"v_bfe_u32 v11, v{vL}, 2, 2")
    e(f"s_cmp_ge_u32 s{sWAVE}, 3")
    e(f"s_cselect_b32 s{sT0}, 2, 3")
    e(f"v_cmp_ge_u32 vcc, s{sT0}, v11")
    e("s_nop 1")
    e("v_cndmask_b32 v11, 0, v11, vcc")
    e("v_lshl_add_u32 v212, v11, 10, v212")
    e(f"s_lshl_b32 s{sB}, s{sWAVE}, 7")
    e(f"s_add_u32 s{sB}, s{sB}, {WS_ACT}")
else:
    e(f"v_and_b32 v212, 1, v{vL}")
    e("v_mul_u32_u24 v212, 3456, v212")
    e("v_lshl_add_u32 v212, v4, 4, v212")
    e(f"v_bfe_u32 v11, v{vL}, 1, 1")
    e("v_lshl_add_u32 v212, v11, 6, v212")
    e(f"s_lshl_b32 s{sB}, s{sWAVE}, 7")
    e(f"s_add_u32 s{sB}, s{sB}, {WS_ACT}")

e("v_lshlrev_b32 v213, 2, v5")
e(f"s_lshl_b32 s{sT0}, s{sWAVE}, 8")
e(f"s_add_u32 s{sT0}, s{sT0}, {LW_RED}")
e(f"v_add_u32 v213, s{sT0}, v213")
e(f"v_lshlrev_b32 v214, 2, v{vL}")
e(f"v_add_u32 v214, {LW_RED}, v214")
if OPTB:
    e("v_and_b32 v11, 1, v4")
    e("v_lshl_add_u32 v215, v11, 7, v213")
    e("v_lshrrev_b32 v11, 1, v4")
    e("v_lshl_add_u32 v215, v11, 6, v215")
for j in range(4):
    e(f"v_mov_b32 v{32+j}, 0")
for j in range(16):
    e(f"v_mov_b32 v{148+j}, 0")
e("s_waitcnt vmcnt(0)")
ts(6)
for i in range(4):
    if i == 3:
        e(f"s_cmp_ge_u32 s{sWAVE}, 3")
        e("s_cbranch_scc1 L_t7_frag_done")
    a_ = "v9" if i < 2 else "v10"
    off = (i & 1) * 32768
    for par in range(2):
        for ct in range(2):
            r = 100 + 16 * i + 8 * par + 4 * ct
            e(f"ds_read_b64_tr_b16 v[{r}:{r+1}], {a_} offset:{off + par*2048 + ct*32}")
            e(f"ds_read_b64_tr_b16 v[{r+2}:{r+3}], {a_} offset:{off + par*2048 + ct*32 + 256}")
    e("s_waitcnt lgkmcnt(0)")
lab("L_t7_frag_done")
e(f"s_cmp_lg_u32 s{sWAVE}, 0")
e("s_cbranch_scc1 L_w_s7_noh")
spin_init()
lab("L_w_h5b")
for kq in range(4):
    e(f"buffer_load_dword v{72+kq}, v210, s[{R_WS}:{R_WS+3}], s{sA0+kq} offen sc1")
e("s_waitcnt vmcnt(0)")
umax_chain(11, range(72, 76))
e("v_cmp_eq_u32 vcc, -1, v11")
spin_retry_if_vcc("L_w_h5b", "L_w_h5bd", 1)
lab("L_w_h5bd")
e("v_lshlrev_b32 v70, 16, v70")
e("v_add_f32 v72, v72, v73")
e("v_add_f32 v74, v74, v75")
e("v_add_f32 v70, v70, v72")
e("v_add_f32 v70, v70, v74")
e("v_cvt_pk_bf16_f32 v70, v70, v70")
e("v_and_b32 v70, 0xffff0000, v70")
lab("L_w_s7_noh")
if OPTB:
    for i in range(4):
        e(f"v_cmp_eq_u32 s[{R_B+0 if i==0 else (R_B+2 if i==1 else (sA0 if i==2 else sA2))}:{(R_B+1) if i==0 else ((R_B+3) if i==1 else (sA1 if i==2 else sA3))}], {i}, v4")
    spin_init()
    lab("L_w_h6")
    e(f"buffer_load_dwordx4 v[20:23], v212, s[{R_WS}:{R_WS+3}], s{sB} offen sc1")
    e("s_waitcnt vmcnt(0)")
    umax_chain(11, range(20, 24))
    e("v_cmp_eq_u32 vcc, -1, v11")
    spin_retry_if_vcc("L_w_h6", "L_w_h6d", 0)
    lab("L_w_h6d")
    ts(10)
    for i in range(4):
        for par in range(2):
            for ct in range(2):
                d = 24 + 16 * i + 8 * par + 4 * ct
                if d >= 68:
                    d += 12
                r = 100 + 16 * i + 8 * par + 4 * ct
                e(f"v_mfma_f32_16x16x32_bf16 v[{d}:{d+3}], v[20:23], v[{r}:{r+3}], 0")
    def D(i, par, ct):
        d = 24 + 16 * i + 8 * par + 4 * ct
        return d + 12 if d >= 68 else d
    e("s_nop 1")
    for i in range(4):
        for ct in range(2):
            for bb in range(2):
                e(f"v_add_f32 v{D(i,0,ct)+bb}, v{D(i,0,ct)+bb}, v{D(i,1,ct)+2+bb}")
    masks = [f"s[{R_B}:{R_B+1}]", f"s[{R_B+2}:{R_B+3}]", f"s[{sA0}:{sA1}]", f"s[{sA2}:{sA3}]"]
    for ct in range(2):
        for bb in range(2):
            dst = D(0, 0, ct) + bb
            for i in range(1, 4):
                e(f"v_cndmask_b32 v{dst}, v{dst}, v{D(i,0,ct)+bb}, {masks[i]}")
    e("s_nop 1")
    e("v_permlane32_swap_b32 v24, v28")
    e("v_permlane32_swap_b32 v25, v29")
    e("s_nop 0")
    e("v_add_f32 v24, v24, v28")
    e("v_add_f32 v25, v25, v29")
    e("s_nop 1")
    e("v_permlane16_swap_b32 v24, v25")
    e("s_nop 0")
    e("v_add_f32 v24, v24, v25")
    e("ds_write_b32 v215, v24")
else:
    spin_init()
    lab("L_w_h6")
    for i in range(3):
        e(f"buffer_load_dwordx4 v[{20+4*i}:{23+4*i}], v212, s[{R_WS}:{R_WS+3}], s{sB} offen offset:{1024*i} sc1")
    e(f"s_cmp_ge_u32 s{sWAVE}, 3")
    e("s_cbranch_scc1 L_w_h6_skip")
    e(f"buffer_load_dwordx4 v[32:35], v212, s[{R_WS}:{R_WS+3}], s{sB} offen offset:{1024*3} sc1")
    lab("L_w_h6_skip")
    e("s_waitcnt vmcnt(0)")
    umax_chain(11, range(20, 36))
    e("v_cmp_eq_u32 vcc, -1, v11")
    spin_retry_if_vcc("L_w_h6", "L_w_h6d", 0)
    lab("L_w_h6d")
    ts(10)
    for i in range(4):
        for par in range(2):
            for ct in range(2):
                d = 40 + 8 * par + 4 * ct
                cc = "0" if i == 0 else f"v[{d}:{d+3}]"
                r = 100 + 16 * i + 8 * par + 4 * ct
                e(f"v_mfma_f32_16x16x32_bf16 v[{d}:{d+3}], v[{20+4*i}:{23+4*i}], v[{r}:{r+3}], {cc}")
    e(f"v_cmp_gt_u32 vcc, 16, v{vL}")
    e("s_nop 6")
    e("v_add_f32 v40, v40, v50")
    e("v_add_f32 v41, v41, v51")
    e("v_add_f32 v44, v44, v54")
    e("v_add_f32 v45, v45, v55")
    exec_save_and()
    e("ds_write_b32 v213, v40")
    e("ds_write_b32 v213, v41 offset:128")
    e("ds_write_b32 v213, v44 offset:64")
    e("ds_write_b32 v213, v45 offset:192")
    exec_restore()

e("s_waitcnt lgkmcnt(0)")
barrier()
e(f"s_cmp_lg_u32 s{sWAVE}, 0")
e("s_cbranch_scc1 L_w_fin")
for i in range(8):
    e(f"ds_read_b32 v{20+i}, v214 offset:{256*i}")
e("s_waitcnt lgkmcnt(0)")
e("v_add_f32 v20, v20, v21")
e("v_add_f32 v22, v22, v23")
e("v_add_f32 v24, v24, v25")
e("v_add_f32 v26, v26, v27")
e("v_add_f32 v20, v20, v22")
e("v_add_f32 v24, v24, v26")
e("v_add_f32 v20, v20, v70")
e("v_add_f32 v20, v20, v24")
e("v_cvt_pk_bf16_f32 v20, v20, v20")
e(f"buffer_store_short v20, v211, s[{R_C}:{R_C+3}], s{sKQ} offen")
ts(11)
if DOUBLE:
    e("s_memrealtime s[98:99]")
    e("s_waitcnt lgkmcnt(0)")
    e("s_sub_u32 s94, s90, s96")
    e("s_min_u32 s94, s94, 10000")
    lab("L_dbl")
    e("s_memrealtime s[92:93]")
    e("s_waitcnt lgkmcnt(0)")
    e("s_sub_u32 s95, s92, s98")
    e("s_cmp_lt_u32 s95, s94")
    e("s_cbranch_scc1 L_dbl")
lab("L_w_fin")
ts_flush(12)
e("s_endpgm")

LA_C = 0
LA_Q = 131072
LA_P = LA_Q
LA_MX = LA_Q + 8192
LA_LS = LA_Q + 8704
LA_O = 0
LA_WUV = 32768
LA_CX = 65536
LA_CF = 73728
LA_STG = 74752

lab("L_arole")
c("================= A role =================")
LA_WQ = 90112
LA_XN = LA_Q
LA_SQ = LA_Q + 4096
e(f"s_sub_u32 s{sIDX}, s2, 128")
e(f"s_lshr_b32 s{sB}, s{sIDX}, 6")
e(f"s_and_b32 s{sS}, s{sIDX}, 63")
e(f"s_and_b32 s{sH}, s{sIDX}, 31")
e(f"s_lshr_b32 s{sJQ}, s{sIDX}, 5")
srd(R_C, P_X, 2560)
srd(R_B, P_WQ, 640 * 8192)
srd(R_A, P_CKV, 2 * 8192 * 1024)
e(f"v_lshrrev_b32 v4, 4, v{vL}")
e(f"v_and_b32 v5, 15, v{vL}")
e(f"v_lshlrev_b32 v6, 4, v{vL}")
e(f"v_lshlrev_b32 v19, 2, v{vL}")
e(f"s_cmp_ge_u32 s{sWAVE}, 2")
e("s_cbranch_scc1 L_a_nox")
e(f"s_mul_i32 s{sT0}, s{sWAVE}, 1280")
for i in range(5):
    e(f"buffer_load_dword v{12+i}, v19, s[{R_C}:{R_C+3}], s{sT0} offen offset:{256*i}")
lab("L_a_nox")
e("v_lshlrev_b32 v7, 4, v5")
e("v_lshlrev_b32 v18, 5, v4")
e("v_xor_b32 v7, v7, v18")
e("v_lshl_add_u32 v7, v4, 13, v7")
e(f"s_mul_i32 s{sT2}, s{sJQ}, {160*8192}")
e(f"s_lshl_b32 s{sT0}, s{sH}, 8")
e(f"s_add_u32 s{sT2}, s{sT2}, s{sT0}")
e(f"s_mul_i32 s{sT3}, s{sWAVE}, 20")
for i in range(5):
    e(f"s_add_u32 s{sT4}, s{sT3}, {4*i}")
    e(f"s_lshl_b32 s{sT5}, s{sT4}, 4")
    e(f"s_and_b32 s{sT5}, s{sT5}, 128")
    e(f"v_xor_b32 v18, s{sT5}, v7")
    e(f"s_lshl_b32 s{sT5}, s{sT4}, 8")
    e(f"s_add_u32 m0, s{sT5}, {LA_WQ}")
    e(f"s_lshl_b32 s{sT4}, s{sT4}, 13")
    e(f"s_add_u32 s{sT4}, s{sT4}, s{sT2}")
    e(f"buffer_load_dwordx4 v18, s[{R_B}:{R_B+3}], s{sT4} offen nt lds")
e(f"s_and_b32 s{sT0}, s{sWAVE}, 3")
e(f"s_lshl_b32 s{sT0}, s{sT0}, 2")
e(f"s_lshr_b32 s{sT1}, s{sWAVE}, 2")
e(f"s_or_b32 s{sT0}, s{sT0}, s{sT1}")
e(f"v_xor_b32 v145, s{sT0}, v{vL}")
e("v_lshlrev_b32 v145, 4, v145")
e("v_xor_b32 v146, 32, v145")
e(f"s_lshl_b32 s{sCS}, s{sIDX}, 7")
e(f"s_add_u32 s{sCS}, s{sCS}, s{sWAVE}")
e(f"s_lshl_b32 s{sCS}, s{sCS}, 10")
e(f"s_lshl_b32 s{sKQ}, s{sWAVE}, 10")
if ROT:
    e(f"s_lshr_b32 s{sT0}, s{sIDX}, 3")
    e(f"s_xor_b32 s{sT0}, s{sT0}, s{sIDX}")
    e(f"s_lshr_b32 s{sT1}, s{sIDX}, 6")
    e(f"s_xor_b32 s{sT0}, s{sT0}, s{sT1}")
    e(f"s_and_b32 s{sT0}, s{sT0}, 7")
    e(f"s_lshl_b32 s100, s{sT0}, 14")
def c_dma(i):
    if ROT:
        e(f"s_add_u32 s{sT3}, s100, {8192*i}")
        e(f"s_and_b32 s{sT3}, s{sT3}, 0x1ffff")
        e(f"s_add_u32 m0, s{sKQ}, s{sT3}")
        e(f"s_add_u32 s{sT2}, s{sCS}, s{sT3}")
    else:
        e(f"s_add_u32 m0, s{sKQ}, {8192*i + LA_C}")
        e(f"s_add_u32 s{sT2}, s{sCS}, {8192*i}")
    e(f"buffer_load_dwordx4 v{145 + (i & 1)}, s[{R_A}:{R_A+3}], s{sT2} offen nt lds")
e(f"s_cmp_lg_u32 s{sWAVE}, 7")
e("s_cbranch_scc1 L_a_np1")
e(f"s_and_b32 s{sA1}, s{sH}, 7")
e(f"s_lshl_b32 s{sA1}, s{sA1}, 2")
e(f"buffer_load_dword v147, v3, s[{R_DBG}:{R_DBG+3}], s{sA1} offen offset:132 sc1")
lab("L_a_np1")
for i in range(NF):
    c_dma(i)
if TOUCH:
    e(f"s_cmp_lg_u32 s{sWAVE}, 6")
    e("s_cbranch_scc1 L_a_notouch")
    e(f"buffer_load_dword v150, v3, s[{R_A}:{R_A+3}], s{sCS} offen")
    e(f"v_and_b32 v151, 3, v{vL}")
    e("v_lshlrev_b32 v151, 20, v151")
    e(f"s_lshl_b32 s{sT0}, s{sH}, 15")
    e(f"s_add_u32 s{sT0}, s{sT0}, {WS_OP}")
    e(f"buffer_load_dword v152, v151, s[{R_WS}:{R_WS+3}], s{sT0} offen sc1")
    srd(R_C, P_WUV, 512 * 8192)
    e(f"s_lshl_b32 s{sT0}, s{sJQ}, 20")
    e(f"buffer_load_dword v153, v3, s[{R_C}:{R_C+3}], s{sT0} offen")
    lab("L_a_notouch")
ts(1)
e(f"s_cmp_ge_u32 s{sWAVE}, 2")
e("s_cbranch_scc1 L_a_noln")
e(f"s_waitcnt vmcnt({5+NF})")
for i in range(5):
    e(f"v_lshlrev_b32 v{20+2*i}, 16, v{12+i}")
    e(f"v_and_b32 v{21+2*i}, 0xffff0000, v{12+i}")
e("v_add_f32 v30, v20, v21")
for i in range(2, 10):
    e(f"v_add_f32 v30, v30, v{20+i}")
allreduce("add", 30, 31)
e(f"v_mul_f32 v30, {fl(1.0/640.0)}, v30")
for i in range(10):
    e(f"v_sub_f32 v{20+i}, v{20+i}, v30")
e("v_mul_f32 v32, v20, v20")
for i in range(1, 10):
    e(f"v_fmac_f32 v32, v{20+i}, v{20+i}")
allreduce("add", 32, 31)
e(f"v_mov_b32 v33, {fl(1e-5)}")
e(f"v_fmac_f32 v33, {fl(1.0/640.0)}, v32")
e("v_rsq_f32 v33, v33")
e("s_nop 0")
for i in range(10):
    e(f"v_mul_f32 v{20+i}, v{20+i}, v33")
for i in range(5):
    e(f"v_cvt_pk_bf16_f32 v{12+i}, v{20+2*i}, v{21+2*i}")
e(f"s_mul_i32 s{sT0}, s{sWAVE}, 1280")
e(f"s_add_u32 s{sT0}, s{sT0}, {LA_XN}")
e(f"v_add_u32 v19, s{sT0}, v19")
for i in range(5):
    e(f"ds_write_b32 v19, v{12+i} offset:{256*i}")
lab("L_a_noln")
e(f"v_bfe_u32 v11, v{vL}, 2, 2")
e("v_and_b32 v10, 1, v4")
e("v_lshl_or_b32 v10, v10, 2, v11")
e(f"v_xor_b32 v10, s{sWAVE}, v10")
e("v_lshlrev_b32 v10, 5, v10")
e("v_lshl_add_u32 v140, v4, 3, v11")
e("v_lshl_add_u32 v140, v140, 8, v10")
e(f"v_and_b32 v10, 3, v{vL}")
e("v_lshl_add_u32 v140, v10, 3, v140")
e(f"v_add_u32 v140, {LA_WQ}, v140")
e(f"v_and_b32 v10, 1, v{vL}")
e("v_mul_u32_u24 v141, 1280, v10")
e("v_lshl_add_u32 v141, v4, 4, v141")
e(f"s_mul_i32 s{sT0}, s{sJQ}, 320")
e(f"s_add_u32 s{sT0}, s{sT0}, {LA_XN}")
e(f"v_add_u32 v141, s{sT0}, v141")
e("v_lshlrev_b32 v142, 8, v10")
e("v_lshl_add_u32 v142, v4, 3, v142")
e(f"s_lshl_b32 s{sT1}, s{sWAVE}, 5")
e(f"s_add_u32 s{sT1}, s{sT1}, {LA_SQ}")
e(f"v_add_u32 v142, s{sT1}, v142")
e("v_and_b32 v144, 511, v6")
e(f"v_add_u32 v143, {LA_SQ}, v144")
e(f"s_lshl_b32 s{sA0}, s{sH}, 2")
e(f"s_add_u32 s{sA0}, s{sA0}, s{sJQ}")
e(f"s_lshl_b32 s{sA0}, s{sA0}, 9")
if GOPT:
    e(f"v_and_b32 v10, 1, v{vL}")
    e("v_lshlrev_b32 v142, 8, v10")
    e("v_lshl_add_u32 v142, v4, 3, v142")
    e(f"s_lshl_b32 s{sT1}, s{sWAVE}, 5")
    e(f"s_add_u32 s{sA0}, s{sA0}, s{sT1}")
    e(f"s_waitcnt vmcnt({NF}) lgkmcnt(0)")
    e(f"s_cmp_lg_u32 s{sWAVE}, 7")
    e("s_cbranch_scc1 L_a_polld")
    spin_init()
    lab("L_a_poll")
    e("v_cmp_eq_u32 vcc, 0, v147")
    e("s_cbranch_vccz L_a_polld")
    e(f"s_add_u32 s{sSPIN}, s{sSPIN}, 1")
    e(f"s_cmp_ge_u32 s{sSPIN}, {SPIN_MAX}")
    e("s_cbranch_scc1 L_a_polld")
    e(f"buffer_load_dword v147, v3, s[{R_DBG}:{R_DBG+3}], s{sA1} offen offset:132 sc1")
    e("s_waitcnt vmcnt(0)")
    e("s_branch L_a_poll")
    lab("L_a_polld")
    e("v_cmp_gt_u32 vcc, 2, v5")
    barrier()
    for ks in range(5):
        e(f"ds_read_b64_tr_b16 v[{20+4*ks}:{21+4*ks}], v140 offset:{ks*8192}")
        e(f"ds_read_b64_tr_b16 v[{22+4*ks}:{23+4*ks}], v140 offset:{ks*8192 + 1024}")
        e(f"ds_read_b128 v[{40+4*ks}:{43+4*ks}], v141 offset:{ks*64}")
    for ks in range(5):
        e(f"s_waitcnt lgkmcnt({3*(4-ks)})")
        cc = "0" if ks == 0 else "v[60:63]"
        e(f"v_mfma_f32_16x16x32_bf16 v[60:63], v[{20+4*ks}:{23+4*ks}], v[{40+4*ks}:{43+4*ks}], {cc}")
    e("s_nop 7")
    e("v_cvt_pk_bf16_f32 v64, v60, v61")
    e("v_cvt_pk_bf16_f32 v65, v62, v63")
    e("v_min_u32 v64, -2, v64")
    e("v_min_u32 v65, -2, v65")
    exec_save_and()
    e(f"buffer_store_dwordx2 v[64:65], v142, s[{R_WS}:{R_WS+3}], s{sA0} offen sc1")
    exec_restore()
    barrier()
    if TS:
        ts(11)
else:
    if PSLEEP:
        e(f"s_cmp_lg_u32 s{sWAVE}, 7")
        e("s_cbranch_scc1 L_a_np2")
        for r in (148, 149, 150):
            e(f"s_sleep {PSLEEP}")
            e(f"buffer_load_dword v{r}, v3, s[{R_DBG}:{R_DBG+3}], s{sA1} offen offset:132 sc1")
        e("s_waitcnt vmcnt(0)")
        e("v_or3_b32 v147, v147, v148, v149")
        e("v_or_b32 v147, v147, v150")
        lab("L_a_np2")
    e("v_cmp_gt_u32 vcc, 2, v5")
    if TOUCH:
        e(f"s_cmp_lg_u32 s{sWAVE}, 6")
        e("s_cbranch_scc1 L_a_b1w")
        e(f"s_waitcnt vmcnt({NF+3}) lgkmcnt(0)")
        e("s_branch L_a_b1x")
        lab("L_a_b1w")
    e(f"s_waitcnt vmcnt({NF}) lgkmcnt(0)")
    if TOUCH:
        lab("L_a_b1x")
    barrier()
    for ks in range(5):
        e(f"ds_read_b64_tr_b16 v[{20+4*ks}:{21+4*ks}], v140 offset:{ks*8192}")
        e(f"ds_read_b64_tr_b16 v[{22+4*ks}:{23+4*ks}], v140 offset:{ks*8192 + 1024}")
        e(f"ds_read_b128 v[{40+4*ks}:{43+4*ks}], v141 offset:{ks*64}")
    for ks in range(5):
        e(f"s_waitcnt lgkmcnt({3*(4-ks)})")
        cc = "0" if ks == 0 else "v[60:63]"
        e(f"v_mfma_f32_16x16x32_bf16 v[60:63], v[{20+4*ks}:{23+4*ks}], v[{40+4*ks}:{43+4*ks}], {cc}")
    e("s_nop 7")
    e("v_cvt_pk_bf16_f32 v64, v60, v61")
    e("v_cvt_pk_bf16_f32 v65, v62, v63")
    exec_save_and()
    e("ds_write_b64 v142, v[64:65]")
    exec_restore()
    e("s_waitcnt lgkmcnt(0)")
    barrier()
    e(f"s_cmp_lg_u32 s{sWAVE}, 7")
    e("s_cbranch_scc1 L_a_notcomm")
    e("ds_read_b128 v[60:63], v143")
    spin_init()
    lab("L_a_poll")
    e("v_cmp_eq_u32 vcc, 0, v147")
    e("s_cbranch_vccz L_a_polld")
    e(f"s_add_u32 s{sSPIN}, s{sSPIN}, 1")
    e(f"s_cmp_ge_u32 s{sSPIN}, {SPIN_MAX}")
    e("s_cbranch_scc1 L_a_polld")
    e(f"buffer_load_dword v147, v3, s[{R_DBG}:{R_DBG+3}], s{sA1} offen offset:132 sc1")
    e("s_waitcnt vmcnt(0)")
    e("s_branch L_a_poll")
    lab("L_a_polld")
    e(f"v_cmp_gt_u32 vcc, 32, v{vL}")
    e("s_waitcnt lgkmcnt(0)")
    for i in range(4):
        e(f"v_min_u32 v{60+i}, -2, v{60+i}")
    exec_save_and()
    e(f"buffer_store_dwordx4 v[60:63], v144, s[{R_WS}:{R_WS+3}], s{sA0} offen sc1")
    exec_restore()
    lab("L_a_notcomm")
    barrier()
    if TS:
        ts(11)

F2POS = 6
for i in range(NF, GPOS):
    if i == F2POS:
        e(f"buffer_load_dword v7, v3, s[{R_DBG}:{R_DBG+3}], 0 offen offset:128 sc1")
    c_dma(i)
e(f"s_waitcnt vmcnt({GPOS-F2POS})")
spin_init()
lab("L_a_f2")
e("v_cmp_eq_u32 vcc, 0, v7")
e("s_cbranch_vccz L_a_f2d")
e(f"s_add_u32 s{sSPIN}, s{sSPIN}, 1")
e(f"s_cmp_ge_u32 s{sSPIN}, {SPIN_MAX}")
e("s_cbranch_scc1 L_a_f2d")
e(f"buffer_load_dword v7, v3, s[{R_DBG}:{R_DBG+3}], 0 offen offset:128 sc1")
e("s_waitcnt vmcnt(0)")
e("s_branch L_a_f2")
lab("L_a_f2d")
barrier()
e("v_lshlrev_b32 v240, 4, v0")
e(f"s_lshl_b32 s{sA0}, s{sB}, 15")
e(f"s_add_u32 s{sA0}, s{sA0}, {WS_QA}")
for i in range(1, 4):
    e(f"s_add_u32 s{sA0+i}, s{sA0}, {8192*i}")
def qa_gather():
    for i in range(4):
        e(f"buffer_load_dwordx4 v[{20+4*i}:{23+4*i}], v240, s[{R_WS}:{R_WS+3}], s{sA0+i} offen sc1")
qa_gather()
for i in range(GPOS, 16):
    c_dma(i)
e("v_and_b32 v8, 3, v5")
e("v_lshrrev_b32 v9, 2, v5")
e("v_lshl_or_b32 v8, v8, 2, v9")
e(f"v_lshrrev_b32 v9, 5, v{vL}")
e(f"v_and_b32 v17, 31, v{vL}")
e("v_lshlrev_b32 v10, 10, v17")
e(f"s_and_b32 s{sT0}, s{sWAVE}, 3")
e(f"s_lshl_b32 s{sT0}, s{sT0}, 15")
for kk in range(8):
    e(f"v_add_u32 v11, {2*kk}, v9")
    e("v_xor_b32 v11, v11, v8")
    e("v_lshl_add_u32 v11, v11, 4, v10")
    e(f"v_add_u32 v{200+kk}, s{sT0}, v11")
    e(f"v_add_u32 v{208+kk}, {LA_Q}, v11")
e(f"v_bfe_u32 v11, v{vL}, 2, 2")
e("v_lshrrev_b32 v12, 1, v4")
e("v_lshl_or_b32 v13, v11, 2, v12")
e("v_lshl_add_u32 v14, v12, 2, v11")
e("v_lshlrev_b32 v14, 10, v14")
e(f"s_lshr_b32 s{sT0}, s{sWAVE}, 1")
e(f"s_lshl_b32 s{sT0}, s{sT0}, 8")
e(f"v_add_u32 v14, s{sT0}, v14")
e(f"v_and_b32 v15, 1, v{vL}")
e("v_lshl_add_u32 v14, v15, 3, v14")
e("v_and_b32 v15, 1, v4")
e("v_lshlrev_b32 v15, 1, v15")
e(f"v_bfe_u32 v16, v{vL}, 1, 1")
e("v_or_b32 v15, v15, v16")
e(f"s_and_b32 s{sT0}, s{sWAVE}, 1")
e(f"s_lshl_b32 s{sT0}, s{sT0}, 3")
e(f"v_or_b32 v15, s{sT0}, v15")
e("v_xor_b32 v15, v15, v13")
for ct in range(2):
    for rd in range(2):
        x = (4 * ct) ^ (2 * rd)
        r = 216 + 4 * ct + 2 * rd
        e(f"v_xor_b32 v16, {x}, v15")
        e(f"v_lshl_add_u32 v{r}, v16, 4, v14")
        if rd:
            e(f"v_add_u32 v{r}, 8192, v{r}")
        e(f"v_add_u32 v{r+1}, 0x10000, v{r}")
e(f"s_and_b32 s{sT0}, s{sWAVE}, 3")
e(f"s_lshl_b32 s{sT0}, s{sT0}, 2")
e(f"s_lshr_b32 s{sT1}, s{sWAVE}, 2")
e(f"s_or_b32 s{sT0}, s{sT0}, s{sT1}")
e(f"v_xor_b32 v241, s{sT0}, v{vL}")
e("v_lshlrev_b32 v241, 4, v241")
e(f"s_lshl_b32 s{sT1}, s{sWAVE}, 10")
e(f"s_add_u32 s{sT1}, s{sT1}, {LA_Q}")
e(f"v_add_u32 v241, s{sT1}, v241")
e("v_xor_b32 v242, 32, v241")
e("v_lshlrev_b32 v243, 4, v17")
e(f"v_add_u32 v243, {LA_MX}, v243")
e(f"s_and_b32 s{sT0}, s{sWAVE}, 3")
e(f"s_lshl_b32 s{sT1}, s{sT0}, 2")
e(f"v_add_u32 v244, s{sT1}, v243")
e(f"v_add_u32 v246, {LA_P}, v6")
e(f"s_lshl_b32 s{sT1}, s{sT0}, 11")
e(f"v_add_u32 v245, s{sT1}, v246")
e("v_lshl_add_u32 v12, v9, 3, v10")
e(f"s_lshl_b32 s{sT0}, s{sWAVE}, 3")
e(f"v_xor_b32 v13, s{sT0}, v5")
for j in range(8):
    e(f"v_xor_b32 v14, {j}, v13")
    e(f"v_lshl_add_u32 v{160+j}, v14, 4, v12")
e(f"s_lshl_b32 s{sT0}, s{sWAVE}, 2")
for i in range(4):
    e(f"s_add_u32 s{sT2}, s{sT0}, {i}")
    e(f"s_and_b32 s{sT3}, s{sT2}, 15")
    e(f"v_xor_b32 v14, s{sT3}, v{vL}")
    e("v_lshlrev_b32 v14, 4, v14")
    e(f"s_lshl_b32 s{sT2}, s{sT2}, 10")
    e(f"v_add_u32 v{168+i}, s{sT2}, v14")
e("v_lshlrev_b32 v172, 14, v4")
e("v_lshl_add_u32 v172, v5, 4, v172")
e(f"s_lshl_b32 s{sCS}, s{sB}, 5")
e(f"s_add_u32 s{sCS}, s{sCS}, s{sT0}")
e(f"s_lshl_b32 s{sCS}, s{sCS}, 16")
e(f"s_lshl_b32 s{sT2}, s{sS}, 8")
e(f"s_add_u32 s{sCS}, s{sCS}, s{sT2}")
e(f"s_add_u32 s{sCS}, s{sCS}, {WS_OP}")
e("v_lshlrev_b32 v173, 3, v17")
e(f"s_lshl_b32 s{sKQ}, s{sIDX}, 8")
e(f"s_add_u32 s{sKQ}, s{sKQ}, {WS_ST}")
srd(R_B, P_WUV, 512 * 8192)
e("v_lshlrev_b32 v174, 4, v5")
e("v_lshlrev_b32 v14, 5, v4")
e("v_xor_b32 v174, v174, v14")
e("v_lshl_add_u32 v174, v4, 13, v174")
e("v_xor_b32 v175, 128, v174")
e(f"s_lshl_b32 s{sT0}, s{sWAVE}, 12")
e(f"s_add_u32 s{sT0}, s{sT0}, {LA_WUV}")
e(f"v_add_u32 v176, s{sT0}, v6")
e("v_and_b32 v14, 1, v4")
e("v_lshl_or_b32 v14, v14, 2, v11")
e(f"v_xor_b32 v14, s{sWAVE}, v14")
e("v_lshlrev_b32 v14, 5, v14")
e("v_lshl_add_u32 v177, v4, 3, v11")
e("v_lshl_add_u32 v177, v177, 8, v14")
e(f"v_and_b32 v14, 3, v{vL}")
e("v_lshl_add_u32 v177, v14, 3, v177")
e(f"v_add_u32 v177, {LA_WUV}, v177")
if AOPT:
    e(f"v_and_b32 v178, 3, v{vL}")
    e("v_lshl_add_u32 v178, v178, 2, v4")
    e("v_lshlrev_b32 v178, 8, v178")
else:
    e(f"v_lshlrev_b32 v178, 8, v{vL}")
e("v_lshlrev_b32 v179, 8, v4")
e("v_lshl_add_u32 v179, v5, 4, v179")
e(f"v_and_b32 v14, 3, v{vL}")
e("v_lshl_add_u32 v14, v4, 2, v14")
e("v_lshl_add_u32 v14, v14, 2, v11")
e("v_lshlrev_b32 v180, 2, v14")
e(f"s_lshr_b32 s{sT0}, s{sWAVE}, 2")
e(f"s_lshl_b32 s{sT0}, s{sT0}, 8")
e(f"s_add_u32 s{sT0}, s{sT0}, {LA_CF}")
e(f"v_add_u32 v180, s{sT0}, v180")
e(f"s_and_b32 s{sT1}, s{sWAVE}, 3")
e(f"s_lshl_b32 s{sT1}, s{sT1}, 6")
e(f"s_add_u32 s{sT0}, s{sT0}, s{sT1}")
e("v_lshlrev_b32 v181, 4, v4")
e(f"v_add_u32 v181, s{sT0}, v181")
e(f"s_lshl_b32 s{sT0}, s{sWAVE}, 2")
e(f"v_add_u32 v14, s{sT0}, v4")
e("v_and_b32 v15, 15, v14")
e("v_xor_b32 v15, v15, v5")
e("v_lshlrev_b32 v15, 4, v15")
e("v_lshl_add_u32 v182, v14, 8, v15")
e(f"v_add_u32 v182, {LA_CX}, v182")
e("v_lshlrev_b32 v14, 8, v5")
e(f"v_add_u32 v14, {LA_CX}, v14")
for ks in range(4):
    e(f"v_add_u32 v15, {4*ks}, v4")
    e("v_xor_b32 v15, v15, v5")
    e(f"v_lshl_add_u32 v{184+ks}, v15, 4, v14")
e("v_lshlrev_b32 v188, 8, v9")
e("v_lshl_add_u32 v188, v5, 1, v188")
e(f"s_lshl_b32 s{sT0}, s{sWAVE}, 5")
e(f"s_add_u32 s{sT0}, s{sT0}, {LA_STG}")
e(f"v_add_u32 v188, s{sT0}, v188")
e("v_and_b32 v189, 511, v6")
e(f"v_add_u32 v189, {LA_STG}, v189")
e("v_lshlrev_b32 v190, 13, v4")
e("v_lshl_add_u32 v190, v5, 4, v190")
spin_init()
e(f"s_waitcnt vmcnt({16-GPOS})")
e("s_branch L_a_h2c")
lab("L_a_h2")
e("s_waitcnt vmcnt(0)")
lab("L_a_h2c")
if TS == 4:
    e(f"s_cmp_lg_u32 s{sSPIN}, 0")
    e("s_cbranch_scc1 L_a_h2x")
    ts(13)
    lab("L_a_h2x")
umax_chain(11, range(20, 36))
e("v_cmp_eq_u32 vcc, -1, v11")
e("s_cbranch_vccz L_a_h2d")
e("s_sleep 2")
e(f"s_add_u32 s{sSPIN}, s{sSPIN}, 1")
e(f"s_cmp_ge_u32 s{sSPIN}, {SPIN_MAX}")
e("s_cbranch_scc1 L_a_h2d")
qa_gather()
e("s_branch L_a_h2")
lab("L_a_h2d")
ts(2)
if TS == 4:
    e("s_waitcnt lgkmcnt(0)")
    e(f"v_mov_b32 v8, s{sTSB+24}")
    e(f"v_mov_b32 v9, s{sTSB+26}")
    e(f"v_mov_b32 v10, s{sSPIN}")
    e(f"v_mov_b32 v11, s{sTSB+4}")
    e(f"s_lshl_b32 s{sT0}, s{sIDX}, 3")
    e(f"s_add_u32 s{sT0}, s{sT0}, s{sWAVE}")
    e(f"s_lshl_b32 s{sT0}, s{sT0}, 4")
    e(f"s_add_u32 s{sT0}, s{sT0}, {WS_TS + 0x10000}")
    e(f"s_mov_b64 s[{sEX}:{sEX+1}], exec")
    e("s_mov_b64 exec, 1")
    e(f"buffer_store_dwordx4 v[8:11], v3, s[{R_WS}:{R_WS+3}], s{sT0} offen")
    exec_restore()
    e("s_waitcnt vmcnt(0)")
for i in range(4):
    a = "v241" if (i & 1) == 0 else "v242"
    e(f"ds_write_b128 {a}, v[{20+4*i}:{23+4*i}] offset:{8192*i}")
e(f"s_lshl_b32 s{sT5}, s{sJQ}, 7")
e(f"s_lshl_b32 s{sT1}, s{sWAVE}, 4")
e(f"s_add_u32 s{sT5}, s{sT5}, s{sT1}")
e(f"s_lshl_b32 s{sT5}, s{sT5}, 13")
e(f"s_lshl_b32 s{sT1}, s{sH}, 8")
e(f"s_add_u32 s{sT5}, s{sT5}, s{sT1}")
e("s_waitcnt vmcnt(0) lgkmcnt(0)")
barrier()
ts(3)
def ld_marker():
    e(f"s_cmp_lg_u32 s{sWAVE}, 7")
    e("s_cbranch_scc1 L_a_nold")
    e(f"s_lshl_b32 s{sT0}, s{sIDX}, 5")
    e(f"s_add_u32 s{sT0}, s{sT0}, {WS_LD}")
    e(f"s_mov_b64 s[{sEX}:{sEX+1}], exec")
    e("s_mov_b64 exec, 1")
    e(f"buffer_store_dword v3, v3, s[{R_WS}:{R_WS+3}], s{sT0} offen sc1")
    exec_restore()
    lab("L_a_nold")
if USE_LD == 1:
    ld_marker()
e(f"s_cmp_ge_u32 s{sWAVE}, 4")
e("s_cbranch_scc1 L_a_s_done")
DEPTH = 6
def s_read(ks):
    slot = ks % 8
    j, kk = ks >> 3, ks & 7
    e(f"ds_read_b128 v[{20+8*slot}:{23+8*slot}], v{200+kk} offset:{256*j}")
    e(f"ds_read_b128 v[{24+8*slot}:{27+8*slot}], v{208+kk} offset:{256*j}")
for ks in range(DEPTH):
    s_read(ks)
for ks in range(32):
    outstanding = min(DEPTH, 32 - ks)
    e(f"s_waitcnt lgkmcnt({2*(outstanding-1)})")
    slot = ks % 8
    cc = "0" if ks == 0 else "v[100:115]"
    e(f"v_mfma_f32_32x32x16_bf16 v[100:115], v[{20+8*slot}:{23+8*slot}], v[{24+8*slot}:{27+8*slot}], {cc}")
    if ks + DEPTH < 32:
        s_read(ks + DEPTH)
lab("L_a_s_done")
for i in range(4):
    a = "v174" if (i >> 1) == 0 else "v175"
    if i:
        e(f"s_add_u32 s{sT5}, s{sT5}, {4*8192}")
    e(f"buffer_load_dwordx4 v[{224+4*i}:{227+4*i}], {a}, s[{R_B}:{R_B+3}], s{sT5} offen nt")
barrier()
ts(4)
e(f"s_cmp_ge_u32 s{sWAVE}, 4")
e("s_cbranch_scc1 L_a_mx_done")
e("s_nop 9")
e("v_max3_f32 v20, v100, v101, v102")
e("v_max3_f32 v21, v103, v104, v105")
e("v_max3_f32 v22, v106, v107, v108")
e("v_max3_f32 v23, v109, v110, v111")
e("v_max3_f32 v24, v112, v113, v114")
e("v_max3_f32 v20, v20, v21, v115")
e("v_max3_f32 v22, v22, v23, v24")
e("v_max_f32 v20, v20, v22")
e("v_mov_b32 v21, v20")
e("s_nop 1")
e("v_permlane32_swap_b32 v21, v20")
e("s_nop 0")
e("v_max_f32 v20, v20, v21")
e("ds_write_b32 v244, v20")
e("s_waitcnt lgkmcnt(0)")
lab("L_a_mx_done")
if USE_LD == 2:
    ld_marker()
barrier()
e(f"s_cmp_ge_u32 s{sWAVE}, 4")
e("s_cbranch_scc1 L_a_p_done")
e("ds_read_b128 v[24:27], v243")
e("s_waitcnt lgkmcnt(0)")
e("v_max3_f32 v247, v24, v25, v26")
e("v_max_f32 v247, v247, v27")
for i in range(16):
    e(f"v_sub_f32 v{100+i}, v{100+i}, v247")
    if i >= 1:
        e(f"v_exp_f32 v{100+i-1}, v{100+i-1}")
e("v_exp_f32 v115, v115")
for i in range(4):
    e(f"v_cvt_pk_bf16_f32 v{28+i}, v{100+2*i}, v{101+2*i}")
e("ds_write_b128 v245, v[28:31]")
for i in range(4, 8):
    e(f"v_cvt_pk_bf16_f32 v{28+i}, v{100+2*i}, v{101+2*i}")
e("ds_write_b128 v245, v[32:35] offset:1024")
e("s_waitcnt lgkmcnt(0)")
if OPTV:
    lab("L_a_p_done")
    def pv_c(kk):
        base = 64 + 8 * (kk % 4)
        hi = kk >> 2
        off = (kk & 3) * 16384
        for ct in range(2):
            for rd in range(2):
                r = base + 4 * ct + 2 * rd
                e(f"ds_read_b64_tr_b16 v[{r}:{r+1}], v{216+4*ct+2*rd+hi} offset:{off}")
    for kk in range(3):
        pv_c(kk)
    barrier()
    ts(5)
    for kk in range(3):
        e(f"ds_read_b128 v[{32+4*kk}:{35+4*kk}], v246 offset:{1024*kk}")
    for i in range(8):
        e(f"v_add_f32 v{20+i}, v{100+2*i}, v{101+2*i}")
    for i in range(4):
        e(f"v_add_f32 v{20+i}, v{20+2*i}, v{21+2*i}")
    e("v_add_f32 v20, v20, v21")
    e("v_add_f32 v22, v22, v23")
    e("v_add_f32 v20, v20, v22")
    e("v_mov_b32 v21, v20")
    e("s_nop 1")
    e("v_permlane32_swap_b32 v21, v20")
    e("s_nop 0")
    e("v_add_f32 v248, v20, v21")
    pend = [("P", 0), ("P", 1), ("P", 2)]
    for kk in range(8):
        idx = max(i for i, o in enumerate(pend) if o[1] <= kk) if any(o[1] <= kk for o in pend) else -1
        e(f"s_waitcnt lgkmcnt({len(pend) - 1 - idx})")
        pend = pend[idx+1:]
        base = 64 + 8 * (kk % 4)
        for ct in range(2):
            d = 100 + 16 * ct
            cc = "0" if kk == 0 else f"v[{d}:{d+15}]"
            e(f"v_mfma_f32_32x32x16_bf16 v[{d}:{d+15}], v[{base+4*ct}:{base+4*ct+3}], v[{32+4*kk}:{35+4*kk}], {cc}")
        if kk + 3 < 8:
            k2 = kk + 3
            e(f"ds_read_b128 v[{32+4*k2}:{35+4*k2}], v246 offset:{1024*k2}")
            pv_c(k2)
            pend += [("P", k2)] + [("C", k2)] * 4
else:
    lab("L_a_p_done")
    barrier()
    ts(5)
    def pv_read(kk):
        base = 64 + 8 * (kk % 4)
        hi = kk >> 2
        off = (kk & 3) * 16384
        e(f"ds_read_b128 v[{32+4*kk}:{35+4*kk}], v246 offset:{1024*kk}")
        for ct in range(2):
            for rd in range(2):
                r = base + 4 * ct + 2 * rd
                e(f"ds_read_b64_tr_b16 v[{r}:{r+1}], v{216+4*ct+2*rd+hi} offset:{off}")
    PD = 3
    for kk in range(PD):
        pv_read(kk)
    for i in range(8):
        e(f"v_add_f32 v{20+i}, v{100+2*i}, v{101+2*i}")
    for i in range(4):
        e(f"v_add_f32 v{20+i}, v{20+2*i}, v{21+2*i}")
    e("v_add_f32 v20, v20, v21")
    e("v_add_f32 v22, v22, v23")
    e("v_add_f32 v20, v20, v22")
    e("v_mov_b32 v21, v20")
    e("s_nop 1")
    e("v_permlane32_swap_b32 v21, v20")
    e("s_nop 0")
    e("v_add_f32 v248, v20, v21")
    for kk in range(8):
        outstanding = min(PD, 8 - kk)
        e(f"s_waitcnt lgkmcnt({5*(outstanding-1)})")
        base = 64 + 8 * (kk % 4)
        for ct in range(2):
            d = 100 + 16 * ct
            cc = "0" if kk == 0 else f"v[{d}:{d+15}]"
            e(f"v_mfma_f32_32x32x16_bf16 v[{d}:{d+15}], v[{base+4*ct}:{base+4*ct+3}], v[{32+4*kk}:{35+4*kk}], {cc}")
        if kk + PD < 8:
            pv_read(kk + PD)

e(f"s_cmp_ge_u32 s{sWAVE}, 4")
e("s_cbranch_scc1 L_a_ls_done")
e(f"ds_write_b32 v244, v248 offset:{LA_LS - LA_MX}")
lab("L_a_ls_done")
barrier()
ts(6)
e("s_nop 7")
for ct in range(2):
    for i4 in range(4):
        d = 100 + 16 * ct + 4 * i4
        t = 20 + 2 * (4 * ct + i4)
        e(f"v_cvt_pk_bf16_f32 v{t}, v{d}, v{d+1}")
        e(f"v_cvt_pk_bf16_f32 v{t+1}, v{d+2}, v{d+3}")
        e(f"ds_write_b64 v{160+4*ct+i4}, v[{t}:{t+1}] offset:{LA_O}")
e("s_waitcnt lgkmcnt(0)")
barrier()
for i in range(4):
    e(f"ds_read_b128 v[{40+4*i}:{43+4*i}], v{168+i} offset:{LA_O}")
e(f"ds_read_b128 v[24:27], v243 offset:{LA_LS - LA_MX}")
for i in range(4):
    e(f"s_waitcnt lgkmcnt({4-i})")
    if i:
        e(f"s_add_u32 s{sCS}, s{sCS}, 65536")
    e(f"buffer_store_dwordx4 v[{40+4*i}:{43+4*i}], v172, s[{R_WS}:{R_WS+3}], s{sCS} offen sc1")
ts(7)
e("s_waitcnt vmcnt(4)")
for i in range(4):
    e(f"ds_write_b128 v176, v[{224+4*i}:{227+4*i}] offset:{1024*i}")
e("v_add_f32 v24, v24, v25")
e("v_add_f32 v26, v26, v27")
e("v_add_f32 v25, v24, v26")
e("v_min_u32 v24, -2, v247")
e("v_min_u32 v25, -2, v25")
e(f"v_cmp_gt_u32 vcc, 32, v{vL}")
e("s_waitcnt vmcnt(0) lgkmcnt(0)")
barrier()
ts(8)
e(f"s_cmp_lg_u32 s{sWAVE}, 0")
e("s_cbranch_scc1 L_a_st_done")
exec_save_and()
e(f"buffer_store_dwordx2 v[24:25], v173, s[{R_WS}:{R_WS+3}], s{sKQ} offen sc1")
exec_restore()
lab("L_a_st_done")
for ks in range(4):
    e(f"ds_read_b64_tr_b16 v[{100+4*ks}:{101+4*ks}], v177 offset:{ks*8192}")
    e(f"ds_read_b64_tr_b16 v[{102+4*ks}:{103+4*ks}], v177 offset:{ks*8192 + 1024}")
e(f"s_lshr_b32 s{sT0}, s{sWAVE}, 2")
e(f"s_lshl_b32 s{sA0}, s{sT0}, 14")
e(f"s_lshl_b32 s{sT1}, s{sH}, 3")
e(f"s_add_u32 s{sA0}, s{sA0}, s{sT1}")
e(f"s_add_u32 s{sA0}, s{sA0}, {WS_ST}")
e(f"s_lshl_b32 s{sA1}, s{sT0}, 5")
e(f"s_add_u32 s{sA1}, s{sA1}, s{sH}")
e(f"s_lshl_b32 s{sA1}, s{sA1}, 2")
e(f"s_add_u32 s{sA1}, s{sA1}, s{sJQ}")
e(f"s_lshl_b32 s{sA1}, s{sA1}, 6")
e(f"s_and_b32 s{sT3}, s{sWAVE}, 3")
e(f"s_lshl_b32 s{sT1}, s{sT3}, 4")
e(f"s_add_u32 s{sA1}, s{sA1}, s{sT1}")
e(f"s_lshl_b32 s{sA1}, s{sA1}, 8")
e(f"s_add_u32 s{sA1}, s{sA1}, {WS_OP}")
e(f"s_lshl_b32 s{sA2}, s{sJQ}, 14")
e(f"s_lshl_b32 s{sT1}, s{sH}, 8")
e(f"s_add_u32 s{sA2}, s{sA2}, s{sT1}")
e(f"s_add_u32 s{sA2}, s{sA2}, {WS_CP}")
if AOPT:
    e(f"s_lshl_b32 s{sT1}, s{sT3}, 12")
    e(f"s_add_u32 s{sA0}, s{sA0}, s{sT1}")
    e(f"s_lshl_b32 s{sT1}, s{sWAVE}, 3")
    e(f"s_add_u32 s{sT1}, s{sT1}, {LA_CF}")
    e(f"v_mov_b32 v180, s{sT1}")
    e(f"s_lshr_b32 s{sT1}, s{sWAVE}, 2")
    e(f"s_lshl_b32 s{sT1}, s{sT1}, 5")
    e(f"s_add_u32 s{sT1}, s{sT1}, {LA_CF}")
    e(f"v_mov_b32 v181, s{sT1}")
    e("v_lshlrev_b32 v193, 3, v4")
    e(f"v_add_u32 v193, {LA_CF}, v193")
    spin_init()
    lab("L_a_h3")
    e(f"buffer_load_dwordx2 v[14:15], v178, s[{R_WS}:{R_WS+3}], s{sA0} offen sc1")
    e("s_waitcnt vmcnt(0)")
    e("v_max_u32 v11, v14, v15")
    e("v_cmp_eq_u32 vcc, -1, v11")
    spin_retry_if_vcc("L_a_h3", "L_a_h3d", 1)
    lab("L_a_h3d")
    ts(9)
    for i in range(4):
        e(f"buffer_load_dwordx4 v[{20+4*i}:{23+4*i}], v179, s[{R_WS}:{R_WS+3}], s{sA1} offen offset:{1024*i} sc1")
    def red16(op, v, t):
        for pat in ("quad_perm:[1,0,3,2]", "quad_perm:[2,3,0,1]"):
            e("s_nop 1")
            e(f"v_{op}_f32_dpp v{v}, v{v}, v{v} {pat} row_mask:0xf bank_mask:0xf")
        e(f"v_mov_b32 v{t}, v{v}")
        e("s_nop 1")
        e(f"v_permlane16_swap_b32 v{t}, v{v}")
        e("s_nop 0")
        e(f"v_{op}_f32 v{v}, v{v}, v{t}")
        e(f"v_mov_b32 v{t}, v{v}")
        e("s_nop 1")
        e(f"v_permlane32_swap_b32 v{t}, v{v}")
        e("s_nop 0")
        e(f"v_{op}_f32 v{v}, v{v}, v{t}")
    e("v_mov_b32 v16, v14")
    red16("max", 16, 17)
    e("v_sub_f32 v18, v14, v16")
    e("v_exp_f32 v18, v18")
    e("s_nop 0")
    e("v_mul_f32 v17, v18, v15")
    red16("add", 17, 19)
    e("ds_write_b64 v180, v[16:17]")
    e("s_nop 0")
    for i in range(4):
        e(f"v_mov_b32_dpp v{40+i}, v18 quad_perm:[{i},{i},{i},{i}] row_mask:0xf bank_mask:0xf")
    for i in range(4):
        e(f"s_waitcnt vmcnt({3-i})")
        for j in range(4):
            src = 20 + 4 * i + j
            e(f"v_lshlrev_b32 v{44+2*j}, 16, v{src}")
            e(f"v_and_b32 v{45+2*j}, 0xffff0000, v{src}")
        for j in range(8):
            if i == 0:
                e(f"v_mul_f32 v{52+j}, v{40+i}, v{44+j}")
            else:
                e(f"v_fmac_f32 v{52+j}, v{40+i}, v{44+j}")
    if not OPTA:
        e("s_waitcnt lgkmcnt(0)")
        barrier()
        e("ds_read_b128 v[40:43], v181")
        e("ds_read_b128 v[44:47], v181 offset:16")
        e("s_waitcnt lgkmcnt(0)")
        e("v_max3_f32 v18, v40, v42, v44")
        e("v_max_f32 v18, v18, v46")
        e("v_sub_f32 v40, v40, v18")
        e("v_sub_f32 v42, v42, v18")
        e("v_sub_f32 v44, v44, v18")
        e("v_sub_f32 v46, v46, v18")
        e("v_sub_f32 v16, v16, v18")
        e("v_exp_f32 v40, v40")
        e("v_exp_f32 v42, v42")
        e("v_exp_f32 v44, v44")
        e("v_exp_f32 v46, v46")
        e("v_exp_f32 v16, v16")
        e("v_mul_f32 v41, v40, v41")
        e("v_mul_f32 v45, v44, v45")
        e("v_fmac_f32 v41, v42, v43")
        e("v_fmac_f32 v45, v46, v47")
        e("v_add_f32 v41, v41, v45")
        e("v_rcp_f32 v41, v41")
        e("s_nop 0")
        e("v_mul_f32 v16, v16, v41")
        for j in range(8):
            e(f"v_mul_f32 v{52+j}, v16, v{52+j}")

else:
    e(f"s_cmp_lg_u32 s{sT3}, 1")
    e("s_cbranch_scc1 L_a_h3d")
    spin_init()
    lab("L_a_h3")
    e(f"buffer_load_dwordx2 v[14:15], v178, s[{R_WS}:{R_WS+3}], s{sA0} offen sc1")
    e("s_waitcnt vmcnt(0)")
    e("v_max_u32 v11, v14, v15")
    e("v_cmp_eq_u32 vcc, -1, v11")
    spin_retry_if_vcc("L_a_h3", "L_a_h3d", 1)
    lab("L_a_h3d")
    barrier()
    ts(9)
    for i in range(4):
        e(f"buffer_load_dwordx4 v[{20+4*i}:{23+4*i}], v179, s[{R_WS}:{R_WS+3}], s{sA1} offen offset:{1024*i} sc1")
    e(f"s_cmp_lg_u32 s{sT3}, 1")
    e("s_cbranch_scc1 L_a_cf_done")
    e("v_mov_b32 v16, v14")
    allreduce("max", 16, 17)
    e("v_sub_f32 v16, v14, v16")
    e("v_exp_f32 v16, v16")
    e("s_nop 0")
    e("v_mul_f32 v18, v16, v15")
    allreduce("add", 18, 17)
    e("v_rcp_f32 v18, v18")
    e("s_nop 0")
    e("v_mul_f32 v16, v16, v18")
    e("ds_write_b32 v180, v16")
    e("s_waitcnt lgkmcnt(0)")
    lab("L_a_cf_done")
    barrier()
    e("ds_read_b128 v[40:43], v181")
    e("s_waitcnt lgkmcnt(0)")
    for i in range(4):
        e(f"s_waitcnt vmcnt({3-i})")
        for j in range(4):
            src = 20 + 4 * i + j
            e(f"v_lshlrev_b32 v{44+2*j}, 16, v{src}")
            e(f"v_and_b32 v{45+2*j}, 0xffff0000, v{src}")
        for j in range(8):
            if i == 0:
                e(f"v_mul_f32 v{52+j}, v{40+i}, v{44+j}")
            else:
                e(f"v_fmac_f32 v{52+j}, v{40+i}, v{44+j}")

for j in range(4):
    e(f"v_cvt_pk_bf16_f32 v{60+j}, v{52+2*j}, v{53+2*j}")
e("ds_write_b128 v182, v[60:63]")
e("s_waitcnt lgkmcnt(0)")
barrier()
if OPTA:
    ts(10)
    e(f"v_mov_b32 v70, {LA_CF}")
    e("ds_read_b128 v[72:75], v70")
    e("ds_read_b128 v[76:79], v70 offset:16")
    e("ds_read_b128 v[80:83], v70 offset:32")
    e("ds_read_b128 v[84:87], v70 offset:48")
    e("ds_read_b32 v88, v193")
    e("ds_read_b32 v89, v193 offset:32")
    for ks in range(4):
        e(f"ds_read_b128 v[{20+8*ks}:{23+8*ks}], v{184+ks}")
        e(f"ds_read_b128 v[{24+8*ks}:{27+8*ks}], v{184+ks} offset:4096")
    e("s_waitcnt lgkmcnt(8)")
    e("v_max3_f32 v90, v72, v74, v76")
    e("v_max3_f32 v91, v80, v82, v84")
    e("v_max_f32 v90, v90, v78")
    e("v_max_f32 v91, v91, v86")
    for r in (72, 74, 76, 78, 88):
        e(f"v_sub_f32 v{r}, v{r}, v90")
    for r in (80, 82, 84, 86, 89):
        e(f"v_sub_f32 v{r}, v{r}, v91")
    k = 0
    exps = [72, 74, 76, 78, 80, 82, 84, 86, 88, 89]
    for ks in range(4):
        e(f"s_waitcnt lgkmcnt({2*(3-ks)})")
        c0 = "0" if ks == 0 else "v[60:63]"
        c1 = "0" if ks == 0 else "v[64:67]"
        e(f"v_mfma_f32_16x16x32_bf16 v[60:63], v[{20+8*ks}:{23+8*ks}], v[{100+4*ks}:{103+4*ks}], {c0}")
        e(f"v_mfma_f32_16x16x32_bf16 v[64:67], v[{24+8*ks}:{27+8*ks}], v[{100+4*ks}:{103+4*ks}], {c1}")
        for r in exps[3*ks:3*ks+3]:
            e(f"v_exp_f32 v{r}, v{r}")
    e(f"v_cmp_gt_u32 vcc, 32, v{vL}")
    e("v_mul_f32 v73, v72, v73")
    e("v_mul_f32 v81, v80, v81")
    e("v_fmac_f32 v73, v74, v75")
    e("v_fmac_f32 v81, v82, v83")
    e("v_fmac_f32 v73, v76, v77")
    e("v_fmac_f32 v81, v84, v85")
    e("v_fmac_f32 v73, v78, v79")
    e("v_fmac_f32 v81, v86, v87")
    e("v_rcp_f32 v73, v73")
    e("v_rcp_f32 v81, v81")
    e("v_add_f32 v60, v60, v61")
    e("v_add_f32 v62, v62, v63")
    e("v_add_f32 v64, v64, v65")
    e("v_add_f32 v66, v66, v67")
    e("v_mul_f32 v88, v88, v73")
    e("v_mul_f32 v89, v89, v81")
    e("v_add_f32 v60, v60, v62")
    e("v_add_f32 v64, v64, v66")
    e("v_mul_f32 v60, v60, v88")
    e("v_mul_f32 v64, v64, v89")
else:
    ts(10)
    for ks in range(4):
        e(f"ds_read_b128 v[{20+8*ks}:{23+8*ks}], v{184+ks}")
        e(f"ds_read_b128 v[{24+8*ks}:{27+8*ks}], v{184+ks} offset:4096")
    for ks in range(4):
        e(f"s_waitcnt lgkmcnt({2*(3-ks)})")
        c0 = "0" if ks == 0 else "v[60:63]"
        c1 = "0" if ks == 0 else "v[64:67]"
        e(f"v_mfma_f32_16x16x32_bf16 v[60:63], v[{20+8*ks}:{23+8*ks}], v[{100+4*ks}:{103+4*ks}], {c0}")
        e(f"v_mfma_f32_16x16x32_bf16 v[64:67], v[{24+8*ks}:{27+8*ks}], v[{100+4*ks}:{103+4*ks}], {c1}")
    e(f"v_cmp_gt_u32 vcc, 32, v{vL}")
    e("s_nop 6")
    e("v_add_f32 v60, v60, v61")
    e("v_add_f32 v62, v62, v63")
    e("v_add_f32 v64, v64, v65")
    e("v_add_f32 v66, v66, v67")
    e("v_add_f32 v60, v60, v62")
    e("v_add_f32 v64, v64, v66")

e("s_nop 1")
e("v_permlane32_swap_b32 v60, v64")
e("s_nop 0")
e("v_add_f32 v60, v60, v64")
e("v_mov_b32 v61, v60")
e("s_nop 1")
e("v_permlane16_swap_b32 v61, v60")
e("s_nop 0")
e("v_add_f32 v60, v60, v61")
e("v_cvt_pk_bf16_f32 v60, v60, v60")
e("ds_write_b16 v188, v60")
e("s_waitcnt lgkmcnt(0)")
barrier()
e(f"s_cmp_lg_u32 s{sWAVE}, 0")
e("s_cbranch_scc1 L_a_fin")
e("ds_read_b128 v[60:63], v189")
e("s_waitcnt lgkmcnt(0)")
for i in range(4):
    e(f"v_min_u32 v{60+i}, -2, v{60+i}")
exec_save_and()
e(f"buffer_store_dwordx4 v[60:63], v190, s[{R_WS}:{R_WS+3}], s{sA2} offen sc1")
exec_restore()
lab("L_a_fin")
ts_flush(12)
lab("L_end")
e("s_endpgm")
lab("L_code_end")

tail = [
    '.section .rodata,"a"',
    ".p2align 6",
    f".amdhsa_kernel {NAME}_kernel",
    "  .amdhsa_next_free_vgpr 256",
    "  .amdhsa_next_free_sgpr 102",
    "  .amdhsa_accum_offset 256",
    "  .amdhsa_group_segment_fixed_size 0",
    "  .amdhsa_kernarg_size 104",
    "  .amdhsa_user_sgpr_count 2",
    "  .amdhsa_user_sgpr_kernarg_segment_ptr 1",
    "  .amdhsa_system_sgpr_workgroup_id_x 1",
    ".end_amdhsa_kernel",
]
open(OUT, "w").write("\n".join(head + L + tail) + "\n")
print("wrote", OUT, len(L), "lines")
```
